```python
import torch

def _softmax(x, axis=-1):
    return torch.softmax(x, dim=axis)
def _gelu(x):
    return torch.nn.functional.gelu(x, approximate="tanh")
def _silu(x):
    return torch.nn.functional.silu(x)
def _sigmoid(x):
    return torch.sigmoid(x)
def _layernorm(x, axis=-1, eps=1e-5):
    m = x.mean(dim=axis, keepdim=True)
    v = x.var(dim=axis, keepdim=True, unbiased=False)
    return (x - m) / torch.sqrt(v + eps)
def _scatter_add(tgt, idx, src, axis=0):
    return tgt.clone().index_add_(axis, idx, src)
def _segment_sum(src, seg, n):
    out = torch.zeros((n,) + src.shape[1:], dtype=src.dtype)
    return out.index_add_(0, seg, src)
def _pad(x, pw):
    flat = tuple(v for pair in reversed(pw) for v in pair)
    return torch.nn.functional.pad(x, flat)

kernel_name = 'concat_heads__mha_block_cached__gqa_block_cached__near_ridge'

def setup_inputs():

    _w = (lambda a: (lambda t: t.to(torch.bfloat16) if t.is_floating_point() else t)(torch.as_tensor(a)))
    def _A_setup():
        B, Sq, D = 8, 240, 512
        H, Sk, Dh = 32, 1024, 128
        return {
            "x": _w((lambda *s: torch.randn(*s, dtype=torch.bfloat16) * 0.8)(B, Sq, D)),
            "k_cache": _w((lambda *s: torch.randn(*s, dtype=torch.bfloat16) * 0.8)(B, H, Sk, Dh)),
            "v_cache": _w((lambda *s: torch.randn(*s, dtype=torch.bfloat16) * 0.05)(B, H, Sk, Dh)),
            "wq": _w((lambda *s: torch.randn(*s, dtype=torch.bfloat16) * 0.8)(D, H * Dh) * (D ** -0.5)),
            "wo": _w((lambda *s: torch.randn(*s, dtype=torch.bfloat16) * 0.05)(H * Dh, D) * ((H * Dh) ** -0.5)),
        }
    _A_in = _A_setup()

    def _B_setup():
        B, Sq, D = 8, 240, 512
        Hq, Hkv, Sk, Dh = 32, 32, 1024, 128
        assert Hq % Hkv == 0, (Hq, Hkv)
        return {
            "x": _w((lambda *s: torch.randn(*s, dtype=torch.bfloat16) * 0.8)(B, Sq, D)),
            "k_cache": _w((lambda *s: torch.randn(*s, dtype=torch.bfloat16) * 0.8)(B, Hkv, Sk, Dh)),
            "v_cache": _w((lambda *s: torch.randn(*s, dtype=torch.bfloat16) * 0.05)(B, Hkv, Sk, Dh)),
            "wq": _w((lambda *s: torch.randn(*s, dtype=torch.bfloat16) * 0.8)(D, Hq * Dh) * (D ** -0.5)),
            "wo": _w((lambda *s: torch.randn(*s, dtype=torch.bfloat16) * 0.05)(Hq * Dh, D) * ((Hq * Dh) ** -0.5)),
        }
    _B_in = _B_setup()

    return {
        "A_x": _A_in["x"],
        "A_k_cache": _A_in["k_cache"],
        "A_v_cache": _A_in["v_cache"],
        "A_wq": _A_in["wq"],
        "A_wo": _A_in["wo"],
        "B_x": _B_in["x"],
        "B_k_cache": _B_in["k_cache"],
        "B_v_cache": _B_in["v_cache"],
        "B_wq": _B_in["wq"],
        "B_wo": _B_in["wo"],
    }

def reference(A_x, A_k_cache, A_v_cache, A_wq, A_wo, B_x, B_k_cache, B_v_cache, B_wq, B_wo):
    def _A_ref(x, k_cache, v_cache, wq, wo):
        B, Sq, D = x.shape
        H, Dh = 32, 128
        q = (lambda x, *d: x.permute(*d))((x @ wq).reshape(B, Sq, H, Dh), 0, 2, 1, 3)
        scores = torch.einsum("bhqd,bhkd->bhqk", q, k_cache) * (Dh ** -0.5)
        p = _softmax(scores, axis=-1)
        o = torch.einsum("bhqk,bhkd->bhqd", p, v_cache)
        return (lambda x, *d: x.permute(*d))(o, 0, 2, 1, 3).reshape(B, Sq, H * Dh) @ wo

    def _B_ref(x, k_cache, v_cache, wq, wo):
        B, Sq, D = x.shape
        Hq, Dh = 32, 128
        Hkv = k_cache.shape[1]
        rep = Hq // Hkv
        q = (lambda x, *d: x.permute(*d))((x @ wq).reshape(B, Sq, Hq, Dh), 0, 2, 1, 3)
        k = (lambda x, n, axis: torch.repeat_interleave(x, n, dim=axis))(k_cache, rep, axis=1)
        v = (lambda x, n, axis: torch.repeat_interleave(x, n, dim=axis))(v_cache, rep, axis=1)
        scores = torch.einsum("bhqd,bhkd->bhqk", q, k) * (Dh ** -0.5)
        p = _softmax(scores, axis=-1)
        o = torch.einsum("bhqk,bhkd->bhqd", p, v)
        return (lambda x, *d: x.permute(*d))(o, 0, 2, 1, 3).reshape(B, Sq, Hq * Dh) @ wo

    a = _A_ref(A_x, A_k_cache, A_v_cache, A_wq, A_wo)
    b = _B_ref(B_x, B_k_cache, B_v_cache, B_wq, B_wo)
    return torch.concatenate([a, b], axis=-1)
```

```python
class Asm:
    def __init__(self):
        self.L = []
        self.vm = []
    def __call__(self, s):
        for ln in s.split("\n"):
            ln = ln.strip()
            if not ln: continue
            if ln.endswith(":") or ln.startswith(".") or ln.startswith(";"):
                self.L.append(ln)
            else:
                self.L.append("    " + ln)
    def c(self, s): self.L.append("    ; " + s)
    def emit_item(self, it):
        if it is None: return
        if callable(it): it(); return
        if isinstance(it, list):
            for x in it: self.emit_item(x)
            return
        if isinstance(it, tuple):
            self(it[0]); self.vm.append(it[1]); return
        self(it)
    def vm_need(self, tags):
        if isinstance(tags, str): tags = [tags]
        last = -1
        for i, t in enumerate(self.vm):
            if t in tags: last = i
        n = len(self.vm) - 1 - last
        assert n <= 63, n
        self.vm = self.vm[last + 1:]
        return n
    def text(self): return "\n".join(self.L) + "\n"

class Gaps:
    def __init__(self, mfmas):
        self.m = mfmas
        self.g = [[] for _ in mfmas]
        self.pre = []
    def put(self, gap, item): self.g[gap].append(item)
    def spread(self, items, start, end):
        n = len(items); span = end - start
        for i, it in enumerate(items):
            self.g[start + (i * span) // n].append(it)
    def emit(self, a):
        for it in self.pre: a.emit_item(it)
        for m, g in zip(self.m, self.g):
            a(m)
            for it in g: a.emit_item(it)

def vr(b, n): return f"v[{b}:{b+n-1}]" if n > 1 else f"v{b}"
def ar(b, n): return f"a[{b}:{b+n-1}]" if n > 1 else f"a{b}"
def sr(b, n): return f"s[{b}:{b+n-1}]" if n > 1 else f"s{b}"

COST = {"E": 8, "V": 4, "M": 4, "S": 4}
def kind_of(s):
    if isinstance(s, tuple): s = s[0]
    mn = s.split()[0]
    if mn in ("v_exp_f32", "v_rcp_f32"): return "E"
    if mn.startswith("v_"): return "V"
    if mn.startswith("ds_") or mn.startswith("buffer_") or mn.startswith("global_"): return "M"
    return "S"

class Sched:
    def __init__(self, mfmas):
        self.m = list(mfmas)
        n = len(self.m)
        self.cap = [24 if "32x32" in x else 8 for x in self.m]
        self.S = [[] for _ in range(n)]
        self.M = [[] for _ in range(n)]
        self.V = [[] for _ in range(n)]
        self.T = [[] for _ in range(n)]
        self.post = []
    def _cost(self, g, it):
        k = kind_of(it)
        if k == "S" and not self.S[g]: return 0
        return COST[k]
    def put(self, g, it):
        k = kind_of(it)
        self.cap[g] -= self._cost(g, it)
        {"S": self.S, "M": self.M}.get(k, self.V)[g].append(it)
    def tail(self, g, it): self.T[g].append(it)
    def fill(self, stream, start=0, end=None, maxper=99):
        if end is None: end = len(self.m)
        g = start; cnt = 0; lastk = None
        order = {"S": 0, "M": 1, "V": 2, "E": 2}
        over = False
        for it in stream:
            at = 0; new = False
            if isinstance(it, dict): at = it.get("at", 0); new = it.get("new", False); it = it["i"]
            k = kind_of(it)
            if not over:
                if at > g: g = at; cnt = 0; lastk = None
                elif (new and cnt) or (lastk is not None and order[k] < order[lastk]): g += 1; cnt = 0; lastk = None
                while g < end and (self.cap[g] < self._cost(g, it) or cnt >= maxper):
                    g += 1; cnt = 0; lastk = None
                if g >= end: over = True
            if over:
                self.post.append(it)
            else:
                self.put(g, it); cnt += 1; lastk = k
        return g
    def emit(self, a):
        for i, m in enumerate(self.m):
            a(m)
            for lst in (self.S[i], self.M[i], self.V[i], self.T[i]):
                for it in lst: a.emit_item(it)
        for it in self.post: a.emit_item(it)
```

```python
from asmlib import *
import struct

MF = "v_mfma_f32_16x16x32_bf16"
MF32 = "v_mfma_f32_32x32x16_bf16"
def QACC(qt, s, y): return 32*qt + (2*s+y)*4
def S(b, qt, kt=0): return 32*qt + 8*b + 4*kt
def P(b, qt): return 32*qt + 16 + 4*b
def NEGM(qt): return 32*qt + 24
def TMPQ(qt): return 32*qt + 28
def QF(qt, s): return 128 + (qt*4+s)*4
KRD, VRD, KDM, VDM, XDM, WDM, XRD, WRD, OST, QST = 192, 196, 204, 208, 210, 214, 216, 217, 221, 222
ONES = 224
ZERO = 228
T0 = 232
def OA(qt, dt): return (qt*8+dt)*4
def LA(qt): return 128 + qt*4
KF, VF, XF = 144, 176, 208
WSET = [144, 176]
XSET = [208, 224]
SK, SV, SX, SW, SO, SQ = 4, 8, 12, 16, 20, 24
SPTR, SWS = 28, 36
SW4K, SR, SB_, SH, SBR = 38, 39, 40, 41, 42
SCNT, SKO, SVO, SM0K, SM0V, SDK, SDV, SA_, SBB, SN = 43, 44, 45, 46, 47, 48, 49, 50, 51, 52
SOO = 53
SC, STMP, SWW, SBIAS, S4K = 57, 58, 59, 60, 61
STS = 64
VRING, WREG, KRING = 0, 49152, 98304
WHALF = 8224
def xslot(st): return ((st + 2) % 3) * 16384
def wslot(st, hd): return (((st + 2) % 3) * 2 + hd) * WHALF
def kslot(t): return KRING + ((t + 1) & 3) * 16384
def vslot(t): return VRING + (t & 3) * 16384

CSCALE = struct.unpack("<I", struct.pack("<f", 1.4426950408889634 * 128 ** -0.5))[0]
QSTASH = 0x3000000

def gen_k1(a, name, opt):
    stamps = opt.get("stamps", False)
    KVNT = " nt" if opt.get("kv_nt", True) else ""
    nstamp = [0]
    XWP = opt.get("xw_pol", "")
    qstamps = opt.get("qstamps", False)
    def stamp(q=False):
        if qstamps:
            if q or nstamp[0] == 0:
                a(f"s_memtime {sr(STS + 2*nstamp[0], 2)}")
                nstamp[0] += 1
        elif stamps and not q:
            a(f"s_memtime {sr(STS + 2*nstamp[0], 2)}")
            a(f"s_memrealtime {sr(STS + 2*nstamp[0] + 2, 2)}")
            nstamp[0] += 2
    a(f".globl {name}\n.p2align 8\n.type {name},@function\n{name}:")
    a(f"""
    s_cmp_ge_u32 s2, 256
    s_cbranch_scc1 K1_END
    s_bfe_u32 s{SBR}, s2, 0x10002
    s_mul_i32 s3, s{SBR}, 40
    s_load_dwordx8 {sr(SPTR,8)}, s[0:1], s3
    s_load_dwordx2 {sr(SWS,2)}, s[0:1], 96
    """)
    stamp()
    W, LN = T0, T0 + 1
    t2, t3, t4, t5, t6, t7, t8, t9 = range(T0 + 2, T0 + 10)
    a(f"""
    v_lshrrev_b32 v{W}, 6, v0
    v_and_b32 v{LN}, 63, v0
    v_readfirstlane_b32 s3, v{W}
    s_lshl_b32 s{SW4K}, s3, 12
    s_mul_i32 s{SWW}, s3, 2056
    s_cmp_eq_u32 s3, 3
    s_cselect_b32 s{SBIAS}, 0xf149f2ca, 0
    s_mov_b32 s{SR}, 0
    s_mov_b32 s{SC}, 0x{CSCALE:08x}
    s_and_b32 s{STMP}, s2, 1
    s_lshl_b32 s{SB_}, s{STMP}, 2
    s_bfe_u32 s{STMP}, s2, 0x20003
    s_add_u32 s{SB_}, s{SB_}, s{STMP}
    s_bfe_u32 s{STMP}, s2, 0x10001
    s_lshl_b32 s{SH}, s{STMP}, 3
    s_lshr_b32 s{STMP}, s2, 5
    s_add_u32 s{SH}, s{SH}, s{STMP}
    s_lshl_b32 s{SH}, s{SH}, 1
    s_mov_b32 s{SOO}, 0
    s_mov_b32 s{SOO+1}, 131072
    s_mov_b32 s{SOO+2}, 262144
    s_mov_b32 s{SOO+3}, 393216
    s_mov_b32 s{S4K}, 4096
    s_mov_b32 s{S4K+1}, 8192
    s_mov_b32 s{S4K+2}, 12288
    """)
    a(f"""
    v_lshrrev_b32 v{t2}, 2, v{LN}
    v_lshl_add_u32 v{t2}, v{W}, 6, v{t2}
    v_lshlrev_b32 v{t2}, 10, v{t2}
    v_lshrrev_b32 v{t3}, 4, v{LN}
    v_and_b32 v{t4}, 2, v{t3}
    v_and_b32 v{t5}, 3, v{LN}
    v_xor_b32 v{t4}, v{t4}, v{t5}
    v_lshl_add_u32 v{XDM}, v{t4}, 4, v{t2}
    v_add_u32 v{XDM+1}, {15*1024}, v{XDM}
    v_add_u32 v{XDM+2}, {30*1024}, v{XDM}
    v_add_u32 v{XDM+3}, {45*1024}, v{XDM}
    """)
    a(f"""
    v_and_b32 v{t2}, 15, v{LN}
    v_lshlrev_b32 v{t4}, 2, v{t3}
    v_xor_b32 v{t4}, v{t4}, v{t2}
    v_lshlrev_b32 v{t4}, 4, v{t4}
    v_lshl_add_u32 v{t5}, v{W}, 3, v{t3}
    v_lshl_add_u32 v{WDM}, v{t5}, 13, v{t4}
    v_add_u32 v{WDM+1}, {4*8192-1024}, v{WDM}
    s_waitcnt lgkmcnt(0)
    """)
    stamp(True)
    a(f"""
    s_mul_i32 s3, s{SB_}, 245760
    s_add_u32 s{SX}, s{SPTR}, s3
    s_addc_u32 s{SX+1}, s{SPTR+1}, 0
    s_mov_b32 s{SX+2}, 245760
    s_mov_b32 s{SX+3}, 0x20000
    s_lshl_b32 s3, s{SH}, 8
    s_add_u32 s{SW}, s{SPTR+6}, s3
    s_addc_u32 s{SW+1}, s{SPTR+7}, 0
    s_sub_u32 s{SW+2}, 4194304, s3
    s_mov_b32 s{SW+3}, 0x20000
    """)
    def x_dma(st):
        r = [f"s_add_u32 m0, s{SW4K}, {xslot(st)}", f"s_mov_b32 s3, {st*64}"]
        return r + [(f"buffer_load_dwordx4 v{XDM+i}, {sr(SX,4)}, s3 offen offset:{1024*i}{XWP} lds", f"s{st}") for i in range(4)]
    def w_dma(st):
        r = []
        for hd in (1, 0):
            r += [f"s_add_u32 m0, s{SWW}, {WREG + wslot(st, hd)}", f"s_mov_b32 s3, {st*262144 + hd*256}"]
            r += [(f"buffer_load_dwordx4 v{WDM+i}, {sr(SW,4)}, s3 offen offset:{1024*i}{XWP} lds", f"s{st}") for i in range(2)]
        return r
    def kv_dma(kind, tile):
        base = kslot(tile) if kind == "k" else vslot(tile)
        srd = SK if kind == "k" else SV
        r = [f"s_add_u32 m0, s{SW4K}, {base}", f"s_mov_b32 s3, {tile*16384}"]
        for i in range(4):
            vo = KDM + i if kind == "k" else VDM + (i & 1)
            r.append((f"buffer_load_dwordx4 v{vo}, {sr(srd,4)}, s3 offen offset:{1024*i}{KVNT} lds", f"{kind}{tile}"))
        return r
    for st in range(3):
        for it in w_dma(st) + x_dma(st): a.emit_item(it)
    a(f"""
    v_lshlrev_b32 v{t5}, 8, v{t3}
    v_lshl_add_u32 v{t5}, v{W}, 12, v{t5}
    """)
    for i in range(4):
        a(f"v_add_u32 v{t6}, {4*i}, v{t3}")
        a(f"v_xor_b32 v{t7}, v{t6}, v{t2}")
        a(f"v_lshl_add_u32 v{KDM+i}, v{t7}, 4, v{t5}")
        if i < 2:
            a(f"v_lshlrev_b32 v{t6}, 1, v{t6}")
            a(f"v_xor_b32 v{t7}, v{t6}, v{t2}")
            a(f"v_lshl_add_u32 v{VDM+i}, v{t7}, 4, v{t5}")
    a(f"""
    s_lshl_b32 s3, s{SB_}, 5
    s_add_u32 s3, s3, s{SH}
    s_lshl_b32 s3, s3, 18
    s_add_u32 s{SK}, s{SPTR+2}, s3
    s_addc_u32 s{SK+1}, s{SPTR+3}, 0
    s_mov_b32 s{SK+2}, 524288
    s_mov_b32 s{SK+3}, 0x20000
    s_add_u32 s{SV}, s{SPTR+4}, s3
    s_addc_u32 s{SV+1}, s{SPTR+5}, 0
    s_mov_b32 s{SV+2}, 524288
    s_mov_b32 s{SV+3}, 0x20000
    """)
    stamp(True)
    a(f"v_lshlrev_b32 v{t5}, 8, v{t2}\nv_add_u32 v{t5}, {kslot(0)}, v{t5}")
    for s in range(4):
        a(f"v_add_u32 v{t6}, {4*s}, v{t3}")
        a(f"v_xor_b32 v{t6}, v{t6}, v{t2}")
        a(f"v_lshl_add_u32 v{KRD+s}, v{t6}, 4, v{t5}")
    a(f"""
    v_lshrrev_b32 v{t4}, 2, v{t2}
    v_and_b32 v{t5}, 2, v{t4}
    v_xor_b32 v{t5}, v{t5}, v{t3}
    v_lshlrev_b32 v{t5}, 4, v{t5}
    v_lshl_add_u32 v{t5}, v{t2}, 6, v{t5}
    v_lshl_add_u32 v{XRD}, v{W}, 12, v{t5}
    """)
    a(f"""
    v_and_b32 v{t5}, 3, v{LN}
    v_lshl_add_u32 v{t6}, v{t3}, 2, v{t4}
    v_and_b32 v{t7}, 7, v{t6}
    v_lshlrev_b32 v{t6}, 8, v{t6}
    v_lshl_add_u32 v{t6}, v{t5}, 3, v{t6}
    """)
    for dt in range(8):
        a(f"v_xor_b32 v{t8}, {dt}, v{t7}")
        a(f"v_lshl_add_u32 v{VRD+dt}, v{t8}, 5, v{t6}")
    a(f"""
    v_mul_u32_u24 v{t6}, 2056, v{t3}
    v_lshl_add_u32 v{t6}, v{t4}, 8, v{t6}
    v_lshl_add_u32 v{t6}, v{t5}, 4, v{t6}
    v_add_u32 v{t6}, {WREG}, v{t6}
    """)
    for s in range(4):
        a(f"v_xor_b32 v{t8}, {s}, v{t4}")
        a(f"v_lshl_add_u32 v{WRD+s}, v{t8}, 6, v{t6}")
    a(f"""
    v_lshlrev_b32 v{t6}, 4, v{LN}
    v_lshl_add_u32 v{OST}, v{W}, 19, v{t6}
    v_lshl_add_u32 v{QST}, v{W}, 14, v{t6}
    v_cmp_eq_u32 vcc, 0, v{t5}
    v_mov_b32 v{t6}, 0x3f803f80
    v_mov_b32 v{ZERO}, 0
    v_mov_b32 v{ZERO+1}, 0
    v_mov_b32 v{ZERO+2}, 0
    v_mov_b32 v{ZERO+3}, 0
    v_cndmask_b32 v{ONES}, 0, v{t6}, vcc
    v_cndmask_b32 v{ONES+1}, 0, v{t6}, vcc
    v_cndmask_b32 v{ONES+2}, 0, v{t6}, vcc
    v_cndmask_b32 v{ONES+3}, 0, v{t6}, vcc
    s_mul_i32 s3, s{SBR}, 120
    s_mul_i32 s{STMP}, s{SB_}, 15
    s_add_u32 s3, s3, s{STMP}
    s_lshl_b32 s3, s3, 17
    s_lshl_b32 s{STMP}, s{SH}, 12
    s_add_u32 s3, s3, s{STMP}
    s_add_u32 s{SO}, s{SWS}, s3
    s_addc_u32 s{SO+1}, s{SWS+1}, 0
    s_sub_u32 s{SO+2}, {15*131072}, s{STMP}
    s_mov_b32 s{SO+3}, 0x20000
    s_lshl_b32 s3, s2, 16
    s_add_u32 s3, s3, {QSTASH}
    s_add_u32 s{SQ}, s{SWS}, s3
    s_addc_u32 s{SQ+1}, s{SWS+1}, 0
    s_mov_b32 s{SQ+2}, 65536
    s_mov_b32 s{SQ+3}, 0x20000
    """)

    def w_reads(st, hd, wset):
        r = []
        for s in range(4):
            for y in range(2):
                for aa in range(2):
                    r.append(f"ds_read_b64_tr_b16 {ar(WSET[wset]+(2*s+y)*4+aa*2,2)}, v{WRD+s} offset:{wslot(st,hd) + aa*1024 + 8*y}")
        return r
    def x_reads(st):
        return [f"ds_read_b128 {ar(XSET[st&1]+qt*4,4)}, v{XRD} offset:{xslot(st) + qt*1024}" for qt in range(4)]
    def k_reads(half, dst=KF):
        return [f"ds_read_b128 {ar(dst+(kt*4+s)*4,4)}, v{KRD+s} offset:{(half*2+kt)*4096}" for s in range(4) for kt in range(2)]
    def v_reads(half, dst=VF):
        return [f"ds_read_b64_tr_b16 {ar(dst+dt*4+aa*2,2)}, v{VRD+dt} offset:{half*8192 + aa*4096}" for dt in range(8) for aa in range(2)]
    def qk_mfmas(sb, c0, src=KF, qmajor=False):
        idx = [(s, kt, qt) for s in range(4) for kt in range(2) for qt in range(4)]
        if qmajor: idx = [(s, kt, qt) for qt in range(4) for s in range(4) for kt in range(2)]
        m = []
        for s, kt, qt in idx:
            d = vr(S(sb, qt, kt), 4)
            c = d if s else ("0" if c0 else vr(NEGM(qt), 4))
            m.append(f"{MF} {d}, {ar(src+(kt*4+s)*4,4)}, {vr(QF(qt,s),4)}, {c}")
        return m
    def pv_mfmas(pb, src=VF):
        m = []
        for dt in range(8):
            for qt in range(4):
                d = ar(OA(qt, dt), 4)
                m.append(f"{MF} {d}, {ar(src+dt*4,4)}, {vr(P(pb,qt),4)}, {d}")
        for qt in range(4):
            d = ar(LA(qt), 4)
            m.append(f"{MF} {d}, {vr(ONES,4)}, {vr(P(pb,qt),4)}, {d}")
        return m
    def sm_E(sb, e): r = S(sb, e // 8) + e % 8; return f"v_exp_f32 v{r}, v{r}"
    def sm_C(sb, p): r = S(sb, p // 4) + 2 * (p % 4); return f"v_cvt_pk_bf16_f32 v{P(sb, p//4) + p%4}, v{r}, v{r+1}"
    def sm_place(G1, G2, sb):
        n1 = len(G1.m)
        def put(g, it): (G1.put(g, it) if g < n1 else G2.put(g - n1, it))
        for i in range(32): put(2*i, sm_E(sb, i))
        for p in range(16): put(4*p+3, sm_C(sb, p))
    def sm_stream(sb):
        r = []
        for p in range(16):
            r += [sm_E(sb, 2*p), sm_E(sb, 2*p+1)]
            if p: r.append(sm_C(sb, p-1))
        r.append(sm_C(sb, 15))
        return r

    TP = opt.get("touch_pol", "")
    if opt.get("touch", True):
        a(f"""
        s_lshr_b32 s3, s2, 5
        s_mul_i32 s3, s3, 30720
        v_lshlrev_b32 v{t6}, 7, v0
        v_min_u32 v{t6}, 30592, v{t6}
        """)
        a.emit_item((f"buffer_load_dword v{T0+12}, v{t6}, {sr(SX,4)}, s3 offen{TP}", "touch"))
        a(f"""
        s_bfe_u32 s3, s2, 0x20003
        s_lshl_b32 s3, s3, 20
        v_lshrrev_b32 v{t6}, 2, v0
        v_lshlrev_b32 v{t6}, 13, v{t6}
        v_and_b32 v{t8}, 3, v0
        v_lshl_add_u32 v{t6}, v{t8}, 7, v{t6}
        """)
        a.emit_item((f"buffer_load_dword v{T0+13}, v{t6}, {sr(SW,4)}, s3 offen{TP}", "touch"))
        a(f"s_add_u32 s3, s3, 0x80000")
        a.emit_item((f"buffer_load_dword v{T0+14}, v{t6}, {sr(SW,4)}, s3 offen{TP}", "touch"))
    if opt.get("tlb", True):
        a(f"v_lshlrev_b32 v{t6}, 17, v{W}")
        for srd in (SK, SV):
            a.emit_item((f"buffer_load_dword v{T0+17+srd//4}, v{t6}, {sr(srd,4)}, 0 offen nt", "touch"))
        a(f"v_lshlrev_b32 v{t6}, 19, v{W}")
        a.emit_item((f"buffer_load_dword v{T0+16}, v{t6}, {sr(SO,4)}, 0 offen nt", "touch"))
        a.emit_item((f"buffer_load_dword v{T0+17}, v{QST}, {sr(SQ,4)}, 0 offen nt", "touch"))
    seq = [(st, hd) for st in range(14) for hd in (1, 0)] + [(14, 1), (15, 1), (14, 0), (15, 0)]
    a(f"s_waitcnt vmcnt({a.vm_need('s0')})")
    stamp(True)
    a("s_barrier")
    for r in x_reads(0) + w_reads(0, 1, 0): a(r)
    q2fin = []
    n = 0
    for qt in range(4):
        for s in range(4):
            tb = T0 + (n % 2) * 12; n += 1
            src = OA(qt, 2*s)
            q2fin += [f"v_accvgpr_read_b32 v{tb+i}, a{src+i}" for i in range(8)]
            q2fin += [f"v_mul_f32 v{tb+i}, s{SC}, v{tb+i}" for i in range(8)]
            q2fin += [f"v_cvt_pk_bf16_f32 v{tb+8+p}, v{tb+2*p}, v{tb+2*p+1}" for p in range(4)]
            so = "0" if qt == 0 else f"s{S4K+qt-1}"
            q2fin.append((f"buffer_store_dwordx4 {vr(tb+8,4)}, v{QST}, {sr(SQ,4)}, {so} offen offset:{s*1024}", "qst"))
    for k, (st, hd) in enumerate(seq):
        bar = None
        if hd == 0 and st <= 13: bar = f"s{st+1}"
        if (st, hd) == (14, 1): bar = "s15"
        if (st, hd) == (15, 0): bar = "k0"
        if bar:
            a(f"s_waitcnt vmcnt({a.vm_need(bar)}) lgkmcnt(0)")
            a("s_barrier")
        else:
            a("s_waitcnt lgkmcnt(0)")
        if k % 2 == 0 and k < 24: stamp(True)
        m = []
        idx = [(s, y, qt) for s in range(4) for y in range(2) for qt in range(4)]
        if k == 31: idx = [(s, y, qt) for qt in range(4) for s in range(4) for y in range(2)]
        for s, y, qt in idx:
            d = vr(QACC(qt, s, y), 4) if hd == 0 else ar(OA(qt, 2*s+y), 4)
            c = "0" if st == 0 else d
            m.append(f"{MF} {d}, {ar(WSET[k&1]+(2*s+y)*4,4)}, {ar(XSET[st&1]+qt*4,4)}, {c}")
        G = Sched(m)
        rd = []
        if k + 1 < len(seq):
            nst, nhd = seq[k+1]
            if nhd == 1: rd += x_reads(nst)
            rd += w_reads(nst, nhd, (k+1) & 1)
        else:
            rd = k_reads(0)
        G.fill(rd, 0, 26, maxper=1)
        dm = []
        if hd == 0 and st + 3 < 16: dm = w_dma(st+3) + x_dma(st+3)
        if (st, hd) == (13, 1): dm = kv_dma("k", 0) + kv_dma("v", 0)
        if (st, hd) == (13, 0): dm = kv_dma("k", 1) + kv_dma("k", 2)
        if (st, hd) == (14, 1): dm = kv_dma("v", 1)
        if (st, hd) == (15, 1): dm = kv_dma("v", 2)
        if (st, hd) == (15, 0): dm = kv_dma("k", 3)
        stride = opt.get("qdma_stride", 4)
        nd = 0
        for j, it in enumerate(dm):
            if isinstance(it, tuple):
                dm[j] = {"i": it, "at": 2 + nd * stride}; nd += 1
        G.fill(dm, 0, 32, maxper=1)
        assert not G.post
        if k >= 30:
            G2 = G
            g0 = 4 if k == 30 else 0
            G.fill(q2fin, g0, 32)
            q2fin = G.post; G.post = []
        G.emit(a)
    stamp()
    for qt in range(4):
        for s in range(4):
            b = QACC(qt, s, 0)
            for i in range(8): a(f"v_mul_f32 v{b+i}, s{SC}, v{b+i}")
            for p in range(4): a(f"v_cvt_pk_bf16_f32 v{QF(qt,s)+p}, v{b+2*p}, v{b+2*p+1}")
    for it in q2fin: a.emit_item(it)
    a(f"""
    s_mov_b32 s{SKO}, {3*16384}
    s_mov_b32 s{SVO}, {3*16384}
    """)
    pro_vm = list(a.vm)
    a("K1_PRO:")
    stamp()
    a("s_waitcnt lgkmcnt(0)")
    zm = [f"{MF32} {ar(16*i,16)}, {vr(ZERO,4)}, {vr(ZERO,4)}, 0" for i in range(9)]
    G = Sched(qk_mfmas(0, True, KF, True) + zm + qk_mfmas(1, False, VF, True))
    G.fill(k_reads(1, VF), 0, 16, maxper=1)
    G.tail(40, "s_waitcnt lgkmcnt(0)")
    mx = []
    for qt in range(4):
        s0 = S(0, qt); m_ = TMPQ(qt); t_ = m_ + 1; ng = NEGM(qt)
        bias = f"s{SBIAS}" if qt == 3 else "0"
        ch = [f"v_max3_f32 v{m_}, v{s0}, v{s0+1}, v{s0+2}", f"v_max3_f32 v{t_}, v{s0+3}, v{s0+4}, v{s0+5}",
              f"v_max3_f32 v{m_}, v{m_}, v{s0+6}, v{s0+7}", f"v_max_f32 v{m_}, v{m_}, v{t_}", f"v_mov_b32 v{t_}, v{m_}",
              {"i": f"v_permlane16_swap_b32 v{m_}, v{t_}", "new": True}, f"v_max_f32 v{m_}, v{m_}, v{t_}", f"v_mov_b32 v{t_}, v{m_}",
              {"i": f"v_permlane32_swap_b32 v{m_}, v{t_}", "new": True}, f"v_max_f32 v{m_}, v{m_}, v{t_}",
              f"v_sub_f32 v{ng}, {bias}, v{m_}"] + [f"v_mov_b32 v{ng+i}, v{ng}" for i in range(1, 4)] + \
             [f"v_add_f32 v{s0+i}, v{s0+i}, v{ng}" for i in range(8)]
        ch[0] = {"i": ch[0], "at": 8*qt + 11}
        mx += ch
    g = G.fill(mx, 0, len(G.m))
    assert not G.post, len(G.post)
    for qt in range(4):
        gg = [i for i, v in enumerate(G.V) if f"v_mov_b32 v{NEGM(qt)+3}, v{NEGM(qt)}" in v][0]
        assert gg < 41 + 8*qt - 1, (qt, gg)
    G.fill(sm_stream(0), g, len(G.m))
    G.emit(a)
    a.vm = list(pro_vm)
    a(f"s_waitcnt vmcnt({min(a.vm_need(['k1','v0']), 16)}) lgkmcnt(0)")
    a("s_barrier")
    for s in range(4): a(f"v_add_u32 v{KRD+s}, 16384, v{KRD+s}")
    for r in k_reads(0): a(r)
    a(f"""
    s_add_u32 m0, s{SW4K}, {kslot(0)}
    s_add_u32 s{SKO}, s{SKO}, 16384
    """)
    for i in range(2): a(f"buffer_load_dwordx4 v{KDM+i}, {sr(SK,4)}, s{SKO} offen offset:{1024*i}{KVNT} lds")
    a(f"""
    s_add_u32 s{SM0V}, s{SW4K}, {vslot(3)}
    s_mov_b32 s{SA_}, {kslot(1) - KRING}
    s_mov_b32 s{SBB}, 0
    s_mov_b32 s{SCNT}, 0
    s_waitcnt lgkmcnt(0)
    """)
    stamp()
    a(".p2align 6")
    a("K1_LOOP:")
    vd = [f"buffer_load_dwordx4 v{VDM+(i&1)}, {sr(SV,4)}, s{SVO} offen offset:{1024*i}{KVNT} lds" for i in range(4)]
    kd = [f"buffer_load_dwordx4 v{KDM+i}, {sr(SK,4)}, s{SKO} offen offset:{1024*i}{KVNT} lds" for i in range(4)]
    G1 = Sched(qk_mfmas(0, False)); G2 = Sched(pv_mfmas(0)); G3 = Sched(qk_mfmas(1, False)); G4 = Sched(pv_mfmas(1))
    sm_place(G1, G2, 1); sm_place(G3, G4, 0)
    def dma_at(G, g, it):
        G.put(g, it); G.cap[g] = 0
    if not opt.get("no_dma"):
        dma_at(G4, 5, kd[0]); dma_at(G4, 21, kd[1]); dma_at(G1, 1, kd[2]); dma_at(G1, 17, kd[3])
        dma_at(G2, 5, vd[0]); dma_at(G2, 21, vd[1]); dma_at(G3, 1, vd[2]); dma_at(G3, 17, vd[3])
    G4.put(2, f"s_mov_b32 m0, s{SM0K}")
    G2.put(2, f"s_mov_b32 m0, s{SM0V}")
    G1.fill(v_reads(0), 0, 30); G1.put(31, "s_waitcnt lgkmcnt(0)")
    G2.fill(k_reads(1), 0, 30, maxper=1)
    G2.put(35, "s_waitcnt lgkmcnt(0)")
    G3.fill(v_reads(1), 0, 30)
    sal = [f"s_add_u32 s{SKO}, s{SKO}, 16384",
           f"s_add_u32 s{SN}, s{SA_}, 16384", f"s_and_b32 s{SN}, s{SN}, 0xffff", f"s_sub_u32 s{SDK}, s{SN}, s{SA_}",
           f"s_add_u32 s{SM0K}, s{SA_}, s{SW4K}", f"s_add_u32 s{SM0K}, s{SM0K}, {KRING}", f"s_mov_b32 s{SA_}, s{SN}",
           f"s_add_u32 s{SN}, s{SBB}, 16384", f"s_and_b32 s{SN}, s{SN}, 0xffff", f"s_sub_u32 s{SDV}, s{SN}, s{SBB}",
           f"s_add_u32 s{SM0V}, s{SBB}, s{SW4K}", f"s_mov_b32 s{SBB}, s{SN}",
           f"s_add_u32 s{SCNT}, s{SCNT}, 1"]
    G2.fill(sal, 4, 30, maxper=1)
    G3.put(20, f"s_add_u32 s{SVO}, s{SVO}, 16384")
    G2.fill([f"v_add_u32 v{KRD+s}, s{SDK}, v{KRD+s}" for s in range(4)], 32, 36)
    G3.put(31, "s_waitcnt vmcnt(16) lgkmcnt(0)" if not opt.get("no_dma") else "s_waitcnt lgkmcnt(0)")
    G3.tail(31, "s_barrier")
    G4.fill(k_reads(0), 0, 30, maxper=1)
    G4.fill([f"v_add_u32 v{VRD+dt}, s{SDV}, v{VRD+dt}" for dt in range(8)], 25, 36)
    G4.put(34, f"s_cmp_lt_u32 s{SCNT}, 15")
    G4.put(35, "s_waitcnt lgkmcnt(0)")
    G4.tail(35, "s_cbranch_scc1 K1_LOOP")
    for G in (G1, G2, G3, G4):
        assert not G.post
        G.emit(a)
    stamp()
    for r in v_reads(0): a(r)
    for r in v_reads(1, XF)[:4]: a(r)
    q2ld = []
    for qt in range(4):
        so = "0" if qt == 0 else f"s{S4K+qt-1}"
        for s in range(4): q2ld.append(f"buffer_load_dwordx4 {vr(QF(qt,s),4)}, v{QST}, {sr(SQ,4)}, {so} offen offset:{s*1024}")
    vm = q2ld + [kd[2], kd[3]] + vd
    a("s_waitcnt lgkmcnt(0)" if stamps else "s_waitcnt lgkmcnt(4)")
    G = Sched(pv_mfmas(0))
    G.fill(v_reads(1, XF)[4:], 0, 36, maxper=2)
    for j in range(4): dma_at(G, 8 + 8*j, vm[j])
    G.fill(sm_stream(1), 0, 36)
    G.emit(a)
    a("s_waitcnt lgkmcnt(0)")
    m = pv_mfmas(1, XF)
    m = m[32:] + m[:32]
    G = Sched(m)
    for j in range(18): dma_at(G, 2*j, vm[4+j])
    G.put(27, f"s_mov_b32 m0, s{SM0V}")
    G.put(35, f"s_add_u32 s{SVO}, s{SVO}, 16384")
    G.fill([f"v_subrev_u32 v{VRD+dt}, {3*16384}, v{VRD+dt}" for dt in range(8)], 0, 36)
    G.fill([f"v_accvgpr_read_b32 v{T0+qt}, a{LA(qt)}" for qt in range(4)] + [f"v_rcp_f32 v{T0+qt}, v{T0+qt}" for qt in range(4)], 12, 36)
    G.emit(a)
    stamp()
    OSTNT = opt.get("o_store", "")
    n = 0
    for qt in range(4):
        for s in range(4):
            tb = (n % 4) * 16; n += 1
            src = OA(qt, 2*s)
            for i in range(8): a(f"v_accvgpr_read_b32 v{tb+i}, a{src+i}")
            for i in range(8): a(f"v_mul_f32 v{tb+i}, v{tb+i}, v{T0+qt}")
            for p in range(4): a(f"v_cvt_pk_bf16_f32 v{tb+8+p}, v{tb+2*p}, v{tb+2*p+1}")
            a(f"buffer_store_dwordx4 {vr(tb+8,4)}, v{OST}, {sr(SO,4)}, s{SOO+qt} offen offset:{s*1024}{OSTNT}")
    stamp()
    if stamps:
        a("s_waitcnt lgkmcnt(0)")
        a(f"""
        s_add_u32 s{SX}, s{SWS}, 0x4000000
        s_addc_u32 s{SX+1}, s{SWS+1}, 0
        s_mov_b32 s{SX+2}, 0x100000
        s_lshl_b32 s3, s2, 1
        s_add_u32 s3, s3, s{SR}
        s_lshl_b32 s3, s3, 9
        s_lshr_b32 s{STMP}, s{SW4K}, 5
        s_add_u32 s3, s3, s{STMP}
        v_mov_b32 v{T0+8}, s3
        """)
        for i in range(nstamp[0]):
            a(f"v_mov_b32 v{T0+10}, s{STS+2*i}\nv_mov_b32 v{T0+11}, s{STS+2*i+1}")
            a(f"buffer_store_dwordx2 v[{T0+10}:{T0+11}], v{T0+8}, {sr(SX,4)}, 0 offen offset:{8*i}")
            a("s_nop 1")
    nst = 22 + (nstamp[0] if stamps else 0)
    a(f"""
    s_add_u32 s{SO}, s{SO}, 4096
    s_addc_u32 s{SO+1}, s{SO+1}, 0
    s_sub_u32 s{SO+2}, s{SO+2}, 4096
    s_add_u32 s{SR}, s{SR}, 1
    s_cmp_lt_u32 s{SR}, 2
    s_waitcnt vmcnt({nst})
    s_cbranch_scc1 K1_PRO
    K1_END:
    s_endpgm
    """)

def desc(name, vgpr=512, acc=256, sgpr=102):
    return f""".amdhsa_kernel {name}
  .amdhsa_next_free_vgpr {vgpr}
  .amdhsa_next_free_sgpr {sgpr}
  .amdhsa_accum_offset {acc}
  .amdhsa_group_segment_fixed_size 0
  .amdhsa_kernarg_size 104
  .amdhsa_user_sgpr_count 2
  .amdhsa_user_sgpr_kernarg_segment_ptr 1
  .amdhsa_system_sgpr_workgroup_id_x 1
.end_amdhsa_kernel
"""

if __name__ == "__main__":
    import sys, json, verify
    opt = json.loads(sys.argv[2]) if len(sys.argv) > 2 else {}
    a = Asm()
    a("; @launch kernel=attn_kernel grid=(256,1,1) block=(256,1,1) lds=163840")
    a('.amdgcn_target "amdgcn-amd-amdhsa--gfx950"\n.text')
    gen_k1(a, "attn_kernel", opt)
    a('.section .rodata,"a"\n.p2align 6')
    txt, fixes = verify.fix(a.text())
    print("hazard nops inserted:", len(fixes), "total states", sum(fixes.values()))
    errs = verify.verify(txt)
    for e in errs[:4]: print(e)
    print(len(errs), "problems")
    open(sys.argv[1], "w").write(txt + desc("attn_kernel"))
```

```python
from asmlib import *
MF = "v_mfma_f32_16x16x32_bf16"
def ACC(q2, nt): return (q2*4+nt)*4
def AF(b, nt): return 32 + b*16 + nt*4
def BF(s, kk, q2): return 64 + (((s & 3)*4+kk)*2+q2)*4
BLD, WDM, ARD = 192, 194, 198
OUTV = 206
T0 = 208
SO, SW, SD = 4, 8, 12
SPTR = 16
SL, SMT, SNT, SBR, SW1K, SBO, SWO, SCNT, STMP, SBON, SWON = 22, 23, 24, 25, 26, 27, 28, 29, 30, 31, 32
STS = 64

def gen_k2(a, name, opt):
    OP = opt.get("k2_o_pol", ""); WP = opt.get("k2_w_pol", "")
    stamps = opt.get("stamps", False)
    nstamp = [0]
    def stamp():
        if stamps:
            a(f"s_memtime {sr(STS + 2*nstamp[0], 2)}")
            a(f"s_memrealtime {sr(STS + 2*nstamp[0] + 2, 2)}")
            nstamp[0] += 2
    a(f".globl {name}\n.p2align 8\n.type {name},@function\n{name}:")
    W, LN, t2, t3, t4, t5, t6, t7 = range(T0, T0 + 8)
    a(f"""
    s_cmp_ge_u32 s2, 240
    s_cbranch_scc1 K2_END
    s_and_b32 s3, s2, 7
    s_mul_i32 s{SL}, s3, 30
    s_lshr_b32 s3, s2, 3
    s_add_u32 s{SL}, s{SL}, s3
    s_lshr_b32 s{SMT}, s{SL}, 3
    s_and_b32 s{SNT}, s{SL}, 7
    s_cmp_ge_u32 s{SMT}, 15
    s_cselect_b32 s{SBR}, 1, 0
    s_mul_i32 s3, s{SBR}, 40
    s_add_u32 s3, s3, 32
    s_load_dwordx2 {sr(SPTR,2)}, s[0:1], s3
    s_load_dwordx2 {sr(SPTR+2,2)}, s[0:1], 80
    s_load_dwordx2 {sr(SPTR+4,2)}, s[0:1], 96
    """)
    stamp()
    a(f"""
    v_lshrrev_b32 v{W}, 6, v0
    v_and_b32 v{LN}, 63, v0
    v_readfirstlane_b32 s3, v{W}
    s_lshl_b32 s{SW1K}, s3, 10
    v_lshlrev_b32 v{t2}, 4, v{LN}
    v_lshl_add_u32 v{BLD}, v{W}, 18, v{t2}
    v_add_u32 v{BLD+1}, 131072, v{BLD}
    v_lshrrev_b32 v{t2}, 3, v{LN}
    v_lshl_add_u32 v{t2}, v{W}, 3, v{t2}
    v_lshlrev_b32 v{t2}, 10, v{t2}
    v_bfe_u32 v{t3}, v{LN}, 1, 2
    v_lshrrev_b32 v{t4}, 4, v{LN}
    v_xor_b32 v{t3}, v{t3}, v{t4}
    v_lshl_add_u32 v{t2}, v{t3}, 5, v{t2}
    v_and_b32 v{t3}, 1, v{LN}
    v_lshl_add_u32 v{WDM}, v{t3}, 4, v{t2}
    v_lshrrev_b32 v{t2}, 2, v{LN}
    v_bfe_u32 v{t3}, v{LN}, 3, 2
    v_and_b32 v{t5}, 3, v{LN}
    v_lshlrev_b32 v{t5}, 3, v{t5}
    v_lshl_add_u32 v{t5}, v{t2}, 7, v{t5}
    """)
    for nt in range(4):
        a(f"v_xor_b32 v{t6}, {nt}, v{t3}")
        a(f"v_lshl_add_u32 v{ARD+nt}, v{t6}, 5, v{t5}")
        a(f"v_add_u32 v{ARD+4+nt}, 65536, v{ARD+nt}")
    a(f"""
    v_and_b32 v{t2}, 15, v{LN}
    v_lshl_add_u32 v{t2}, v{W}, 5, v{t2}
    v_lshlrev_b32 v{t2}, 11, v{t2}
    v_lshl_add_u32 v{OUTV}, v{t4}, 3, v{t2}
    v_add_u32 v{OUTV+1}, 32768, v{OUTV}
    s_waitcnt lgkmcnt(0)
    s_lshl_b32 s3, s{SMT}, 20
    s_add_u32 s{SO}, s{SPTR+4}, s3
    s_addc_u32 s{SO+1}, s{SPTR+5}, 0
    s_mov_b32 s{SO+2}, 1048576
    s_mov_b32 s{SO+3}, 0x20000
    s_lshl_b32 s3, s{SNT}, 7
    s_add_u32 s{SW}, s{SPTR}, s3
    s_addc_u32 s{SW+1}, s{SPTR+1}, 0
    s_sub_u32 s{SW+2}, 4194304, s3
    s_mov_b32 s{SW+3}, 0x20000
    s_mul_i32 s{STMP}, s{SBR}, 15
    s_sub_u32 s{STMP}, s{SMT}, s{STMP}
    s_lshl_b32 s{STMP}, s{STMP}, 18
    s_add_u32 s3, s3, s{STMP}
    s_lshl_b32 s{STMP}, s{SBR}, 10
    s_add_u32 s3, s3, s{STMP}
    s_add_u32 s{SD}, s{SPTR+2}, s3
    s_addc_u32 s{SD+1}, s{SPTR+3}, 0
    s_sub_u32 s{SD+2}, 3932160, s3
    s_mov_b32 s{SD+3}, 0x20000
    """)
    def ops(s, kk):
        return [f"s_add_u32 m0, s{SW1K}, {(s & 7)*16384 + kk*4096}",
                f"buffer_load_dwordx4 {vr(BF(s,kk,0),4)}, v{BLD}, {sr(SO,4)}, s{SBO} offen offset:{kk*1024}{OP}",
                f"buffer_load_dwordx4 {vr(BF(s,kk,1),4)}, v{BLD+1}, {sr(SO,4)}, s{SBO} offen offset:{kk*1024}{OP}",
                f"buffer_load_dwordx4 v{WDM}, {sr(SW,4)}, s{SWO} offen{WP} lds",
                f"s_add_u32 s{SWO}, s{SWO}, 32768"] + \
               ([f"s_add_u32 s{SBO}, s{SBO}, 4096", f"s_cmp_ge_u32 s{SBO}, 131072", f"s_cselect_b32 s{SBO}, 0x40000000, s{SBO}"] if kk == 3 else [])
    def a_reads(s, kk, b):
        off = (s & 3)*16384 + kk*4096
        base = ARD + (4 if (s & 7) >= 4 else 0)
        return [f"ds_read_b64_tr_b16 {vr(AF(b,nt)+aa*2,2)}, v{base+nt} offset:{off + aa*2048}" for nt in range(4) for aa in range(2)]
    a(f"s_mov_b32 s{SBO}, 0\ns_mov_b32 s{SWO}, 0\ns_mov_b32 s{SCNT}, 0")
    for s in range(4):
        for kk in range(4):
            if (s, kk) != (3, 3):
                for x in ops(s, kk): a(x)
    for i in range(32): a(f"v_mov_b32 v{i}, 0")
    stamp()
    a("s_waitcnt vmcnt(33)\ns_barrier")
    for r in a_reads(0, 0, 0): a(r)
    stamp()
    a(".p2align 6\nK2_LOOP:")
    for s in range(8):
        for kk in range(4):
            b = kk & 1
            if kk == 3: a("s_waitcnt vmcnt(30) lgkmcnt(0)\ns_barrier")
            else: a("s_waitcnt lgkmcnt(0)")
            m = [f"{MF} {vr(ACC(q2,nt),4)}, {vr(AF(b,nt),4)}, {vr(BF(s,kk,q2),4)}, {vr(ACC(q2,nt),4)}" for nt in range(4) for q2 in range(2)]
            G = Sched(m)
            ns, nk = (s, kk+1) if kk < 3 else (s+1, 0)
            G.fill(a_reads(ns, nk, b ^ 1), 0, 8, maxper=2)
            ps, pk = (s+4, kk-1) if kk else (s+3, 3)
            G.fill(ops(ps, pk), 3, 8)
            G.emit(a)
    a(f"""
    s_add_u32 s{SCNT}, s{SCNT}, 1
    s_cmp_lt_u32 s{SCNT}, 4
    s_cbranch_scc1 K2_LOOP
    """)
    stamp()
    a("s_nop 7")
    for q2 in range(2):
        for nt in range(4):
            r = ACC(q2, nt); d = 224 + (q2*4+nt)*2
            a(f"v_cvt_pk_bf16_f32 v{d}, v{r}, v{r+1}")
            a(f"v_cvt_pk_bf16_f32 v{d+1}, v{r+2}, v{r+3}")
            a(f"buffer_store_dwordx2 {vr(d,2)}, v{OUTV+q2}, {sr(SD,4)}, 0 offen offset:{nt*32}")
    if stamps:
        a("s_waitcnt lgkmcnt(0) vmcnt(0)")
        stamp()
        a("s_waitcnt lgkmcnt(0)")
        a(f"""
        s_add_u32 s{SO}, s{SPTR+4}, 0x4100000
        s_addc_u32 s{SO+1}, s{SPTR+5}, 0
        s_lshl_b32 s3, s2, 9
        s_lshr_b32 s{STMP}, s{SW1K}, 3
        s_add_u32 s3, s3, s{STMP}
        v_mov_b32 v{T0+8}, s3
        """)
        for i in range(nstamp[0]):
            a(f"v_mov_b32 v{T0+10}, s{STS+2*i}\nv_mov_b32 v{T0+11}, s{STS+2*i+1}")
            a(f"buffer_store_dwordx2 v[{T0+10}:{T0+11}], v{T0+8}, {sr(SO,4)}, 0 offen offset:{8*i}")
            a("s_nop 1")
    a("K2_END:\ns_endpgm")
```

```python
import re, sys

REG = re.compile(r"\b([vas])(?:(\d+)|\[(\d+):(\d+)\])")
TRANS = ("v_exp_f32", "v_rcp_f32", "v_log_f32", "v_rsq_f32", "v_sqrt_f32")

def regs(tok):
    tok = tok.strip()
    out = set()
    if tok in ("vcc",): return {("s", 106), ("s", 107)}
    if tok == "exec": return {("s", 126), ("s", 127)}
    if tok == "m0": return {("s", 124)}
    m = REG.fullmatch(tok.lstrip("-|").rstrip("|"))
    if not m: return out
    f = m.group(1)
    if m.group(2) is not None: lo = hi = int(m.group(2))
    else: lo, hi = int(m.group(3)), int(m.group(4))
    return {(f, i) for i in range(lo, hi + 1)}

class I:
    def __init__(self, line, ln):
        self.line = line; self.ln = ln
        t = line.split(None, 1)
        self.mn = t[0]
        rest = t[1] if len(t) > 1 else ""
        ops = [o.strip() for o in rest.split(",")] if rest else []
        self.mods = ""
        if ops:
            p = ops[-1].split(None, 1)
            if len(p) > 1 and not self.mn.startswith("s_waitcnt"):
                ops[-1] = p[0]; self.mods = p[1]
        self.ops = ops
        mn = self.mn
        self.w = set(); self.r = set()
        self.kind = "other"
        R = [regs(o) for o in ops]
        if mn.startswith("v_mfma"):
            self.kind = "mfma"; self.w = R[0]; self.A = R[1]; self.B = R[2]; self.C = R[3]
            self.r = R[1] | R[2] | R[3]
            self.passes = 8 if "32x32" in mn else 4
        elif mn.startswith("v_permlane"):
            self.kind = "valu"; self.w = R[0] | R[1]; self.r = R[0] | R[1]
        elif mn.startswith("v_cmp"):
            self.kind = "valu"; self.w = R[0]; self.r = set().union(*R[1:])
        elif mn.startswith("v_"):
            self.kind = "valu"; self.w = R[0]; self.r = set().union(*R[1:]) if len(R) > 1 else set()
            if mn.startswith("v_cndmask") and len(ops) == 3: self.r |= regs("vcc")
            if mn.startswith("v_fmac"): self.r |= R[0]
        elif mn.startswith("ds_read"):
            self.kind = "dsr"; self.w = R[0]; self.r = R[1]
        elif mn.startswith("ds_write"):
            self.kind = "dsw"; self.r = set().union(*R)
        elif mn.startswith("buffer_load") or mn.startswith("global_load"):
            if " lds" in (" " + self.mods) :
                self.kind = "dma"; self.r = set().union(*R) | regs("m0")
            else:
                self.kind = "vld"; self.w = R[0]; self.r = set().union(*R[1:])
        elif mn.startswith("buffer_store") or mn.startswith("global_store") or mn.startswith("buffer_atomic"):
            self.kind = "vst"; self.r = set().union(*R); self.data = R[0]
        elif mn.startswith("s_load") or mn.startswith("s_mem"):
            self.kind = "smem"; self.w = R[0]; self.r = set().union(*R[1:]) if len(R) > 1 else set()
        elif mn.startswith("s_waitcnt"): self.kind = "wait"
        elif mn.startswith("s_nop"): self.kind = "nop"
        elif mn.startswith("s_cmp") or mn.startswith("s_cbranch") or mn.startswith("s_branch") or mn in ("s_barrier", "s_endpgm", "s_setprio", "s_sleep"):
            self.kind = "salu"; self.r = set().union(*R) if R else set()
        elif mn.startswith("s_"):
            self.kind = "salu"; self.w = R[0]; self.r = set().union(*R[1:]) if len(R) > 1 else set()
            if "saveexec" in mn: self.w |= regs("exec")
        self.states = int(ops[0]) + 1 if self.kind == "nop" else 1

def check(seq, label="", fixes=None):
    errs = []
    pend_l = []
    pend_v = []
    hist = []
    pos = 0
    def err(i, j, msg): errs.append(f"{label} line {i.ln}: {msg}\n    prod(line {j.ln}): {j.line}\n    cons: {i.line}")
    for i in seq:
        if i.kind == "wait":
            m = re.search(r"lgkmcnt\((\d+)\)", i.line)
            if m:
                n = int(m.group(1))
                if n and any(p.kind == "smem" for p in pend_l): errs.append(f"{label} line {i.ln}: counted lgkmcnt with smem outstanding")
                pend_l = pend_l[len(pend_l) - n:] if n < len(pend_l) and n > 0 else ([] if n == 0 else pend_l)
            m = re.search(r"vmcnt\((\d+)\)", i.line)
            if m:
                n = int(m.group(1))
                pend_v = pend_v[len(pend_v) - n:] if n < len(pend_v) and n > 0 else ([] if n == 0 else pend_v)
        touched = i.r | i.w
        for p in pend_l + pend_v:
            if p.w & touched and not (p.kind == "smem" and i.kind == "smem"): err(i, p, "use of register with load outstanding")
        short = 0
        for j, pj in reversed(hist):
            d = pos - pj - 1 + (0)
            if d > 24: break
            need = 0; why = ""
            if j.kind == "valu":
                vw = {x for x in j.w if x[0] != "s"}; sw = {x for x in j.w if x[0] == "s"}
                if i.kind == "mfma" and vw & i.r: need, why = 2, "valu->mfma"
                if j.mn in TRANS and i.kind == "valu" and i.mn not in TRANS and vw & i.r: need, why = max(need, 1), "trans->valu"
                if j.mn in TRANS and i.kind in ("vst", "dsw") and vw & i.r: need, why = max(need, 1), "trans->mem"
                if i.mn.startswith("v_permlane") and vw & i.r: need, why = max(need, 2), "valu->permlane"
                if i.mn.startswith("v_readfirstlane") or i.mn.startswith("v_readlane"):
                    if vw & i.r: need, why = max(need, 1), "valu->readlane"
                if sw and i.kind in ("dma", "vld", "vst") and sw & i.r: need, why = max(need, 5), "valu sgpr->vmem"
                if sw and i.kind == "valu" and sw & i.r: need, why = max(need, 2), "valu sgpr->valu"
            if j.kind == "mfma":
                p4 = j.passes == 4
                if i.kind == "mfma":
                    if j.w & (i.A | i.B): need, why = (8 if p4 else 12), "mfma D->A/B"
                    elif j.w & i.C and not (j.w == i.C and j.passes == i.passes): need, why = (6 if p4 else 10), "mfma D->C partial"
                    elif j.w & i.w and not (j.w & i.C): need, why = (0), ""
                elif i.kind in ("valu", "dsr", "dsw", "vld", "vst", "dma"):
                    if j.w & touched: need, why = (8 if p4 else 12), "mfma D->other"
                    if i.kind == "valu" and j.C & i.w:
                        n2 = 3 if p4 else 7
                        if n2 > need: need, why = n2, "mfma C WAR"
            if j.kind == "salu" and ("s", 124) in j.w and i.kind == "dma": need, why = max(need, 1), "m0->dma"
            if j.kind == "vst" and len(j.data) >= 3 and (j.data & i.w) and i.kind != "mfma": need, why = max(need, 2), "store data WAR"
            if need > d:
                if fixes is None: err(i, j, f"{why}: need {need} wait states, have {d}")
                else: short = max(short, need - d)
        if short:
            fixes[i.ln] = short
            pos += short
        if i.kind in ("dsr", "dsw", "smem"): pend_l.append(i)
        if i.kind in ("dma", "vld", "vst"): pend_v.append(i)
        hist.append((i, pos + i.states - 1))
        if len(hist) > 40: hist.pop(0)
        pos += i.states
    return errs

def parse(text):
    items = []
    for ln, line in enumerate(text.split("\n"), 1):
        s = line.split(";")[0].strip()
        if not s: continue
        if s.startswith(".section"): break
        if s.startswith("."): continue
        if s.endswith(":"): items.append(("label", s[:-1], ln)); continue
        items.append(("ins", I(s, ln), ln))
    return items

def fix(text):
    items = parse(text)
    seq = [it[1] for it in items if it[0] == "ins"]
    fixes = {}
    check(seq, "", fixes)
    out = []
    for ln, line in enumerate(text.split("\n"), 1):
        if ln in fixes:
            n = fixes[ln]
            while n > 0:
                k = min(n, 8)
                out.append(f"    s_nop {k-1} ; hz")
                n -= k
        out.append(line)
    return "\n".join(out), fixes

def verify(text):
    items = parse(text)
    labels = {it[1]: k for k, it in enumerate(items) if it[0] == "label"}
    seq = [it[1] for it in items if it[0] == "ins"]
    errs = check(seq, "fallthrough")
    for k, it in enumerate(items):
        if it[0] == "ins" and (it[1].mn.startswith("s_cbranch") or it[1].mn == "s_branch"):
            tgt = labels[it[1].ops[0]]
            before = [x[1] for x in items[max(0, k - 400):k + 1] if x[0] == "ins"]
            after = [x[1] for x in items[tgt:tgt + 400] if x[0] == "ins"]
            e = check(before + after, f"branch@{it[2]}")
            base = set(check(before, f"branch@{it[2]}")) | set(check(after, f"branch@{it[2]}"))
            errs += [x for x in e if x not in base]
    return errs

if __name__ == "__main__":
    e = verify(open(sys.argv[1]).read())
    for x in e[:40]: print(x)
    print(len(e), "problems")
```

```python
import sys, json, verify
from asmlib import *
import k1b, k2
HDR = open("concat_heads__mha_block_cached__gqa_block_cached__near_ridge.s.ref").read().split("; Override launch")[0]
def build(opt):
    a = Asm()
    for ln in HDR.strip().split("\n"): a.L.append(ln)
    a("; @launch kernel=attn_kernel grid=(256,1,1) block=(256,1,1) lds=163840")
    a("; @launch kernel=oproj_kernel grid=(240,1,1) block=(256,1,1) lds=131072")
    a('.amdgcn_target "amdgcn-amd-amdhsa--gfx950"\n.text')
    k1b.gen_k1(a, "attn_kernel", opt)
    a.vm = []
    k2.gen_k2(a, "oproj_kernel", opt)
    a('.section .rodata,"a"\n.p2align 6')
    txt, fixes = verify.fix(a.text())
    print("hazard nops inserted:", len(fixes), "total states", sum(fixes.values()))
    errs = verify.verify(txt)
    for e in errs[:4]: print(e)
    print(len(errs), "problems")
    return txt + k1b.desc("attn_kernel") + ".p2align 6\n" + k1b.desc("oproj_kernel", 256, 256)
if __name__ == "__main__":
    opt = json.loads(sys.argv[2]) if len(sys.argv) > 2 else {}
    open(sys.argv[1], "w").write(build(opt))
```

```python
from asmlib import *
import struct

MF = "v_mfma_f32_16x16x32_bf16"
MF32 = "v_mfma_f32_32x32x16_bf16"
def QACC(qt, s, y): return 32*qt + (2*s+y)*4
def S(b, qt, kt=0): return 32*qt + 8*b + 4*kt
def P(b, qt): return 32*qt + 16 + 4*b
def NEGM(qt): return 32*qt + 24
def TMPQ(qt): return 32*qt + 28
def QF(qt, s): return 128 + (qt*4+s)*4
KRD, VRD, KDM, VDM, XDM, WDM, XRD, WRD, OST, QST, LN16 = 192, 196, 204, 208, 210, 214, 209, 217, 221, 222, 223
XRD2 = 216
Q2V = 224
T0 = 224
RCP = 210
def OA(qt, dt): return (qt*8+dt)*4
def LA(qt): return 128 + qt*4
KF, VF, XF = 144, 176, 208
WSET = [144, 176]
XSET = [208, 224]
ONES, ZERO = 240, 244
def Q2ACC(qt, s, y):
    return ar(OA(qt, 2*s+y), 4) if qt < 2 else vr(128 + (qt-2)*32 + (2*s+y)*4, 4)
SK, SV, SX, SW, SO, SQ = 4, 8, 12, 16, 20, 24
SPTR, SWS = 28, 38
SW4K, SR, SB_, SH, SBR = 40, 41, 42, 43, 44
SCNT, SKO, SVO, SM0K, SM0V, SDK, SDV, SA_, SBB, SN = 45, 46, 47, 48, 49, 50, 51, 52, 53, 54
SOO = 55
STMP, SWW, SBIAS = 59, 60, 61
SC = 62
SW1K = 100
SROT, SKL, SVL, ST2, SEV = 101, 28, 29, 30, 31
SXO, SWO0, SWO1, SW8K = 46, 47, 48, 49
STS = 64
VRING, WREG, KRING = 0, 65536, 98304
STASH = 65536
WHALF = 8224
def xslot(u): return (u & 1) * 32768
def wslot(st, hd): return (((3 - st) & 3) * 2 + hd) * WHALF
def kslot(t): return KRING + ((3 - t) & 3) * 16384
def vslot(t): return VRING + (t & 3) * 16384

CSCALE = struct.unpack("<I", struct.pack("<f", 1.4426950408889634 * 128 ** -0.5))[0]

def gen_k1(a, name, opt):
    stamps = opt.get("stamps", False)
    KVNT = " nt" if opt.get("kv_nt", True) else ""
    XWP = opt.get("xw_pol", " nt")
    nstamp = [0]
    fine = opt.get("fine", False)
    def fstamp():
        if fine:
            a(f"s_memtime {sr(STS + 2*nstamp[0], 2)}")
            nstamp[0] += 1
    def stamp():
        if fine:
            if nstamp[0] < 17: fstamp()
        elif stamps:
            a(f"s_memtime {sr(STS + 2*nstamp[0], 2)}")
            a(f"s_memrealtime {sr(STS + 2*nstamp[0] + 2, 2)}")
            nstamp[0] += 2
    a(f".globl {name}\n.p2align 8\n.type {name},@function\n{name}:")
    a(f"""
    s_cmp_ge_u32 s2, 256
    s_cbranch_scc1 K1_END
    s_bfe_u32 s{SBR}, s2, 0x10002
    s_mul_i32 s3, s{SBR}, 40
    s_load_dwordx8 {sr(SPTR,8)}, s[0:1], s3
    s_add_u32 s3, s3, 32
    s_load_dwordx2 {sr(SPTR+8,2)}, s[0:1], s3
    s_load_dwordx2 {sr(SWS,2)}, s[0:1], 96
    s_getpc_b64 {sr(SQ,2)}
    K1_PC:
    """)
    stamp()
    W, LN = T0, T0 + 1
    t2, t3, t4, t5, t6, t7, t8, t9 = range(T0 + 2, T0 + 10)
    ROTINIT = (f"s_lshr_b32 s{SROT}, s2, 3\ns_add_u32 s{SROT}, s{SROT}, s2\ns_and_b32 s{SROT}, s{SROT}, 15\ns_lshl_b32 s{SROT}, s{SROT}, 14"
               if opt.get("rot", False) else f"s_mov_b32 s{SROT}, 0")
    TD = T0 + 12
    a(f"""
    v_lshrrev_b32 v{W}, 6, v0
    v_and_b32 v{LN}, 63, v0
    v_readfirstlane_b32 s3, v{W}
    v_lshlrev_b32 v{LN16}, 4, v{LN}
    s_lshl_b32 s{SW4K}, s3, 12
    s_lshl_b32 s{SW1K}, s3, 10
    s_lshl_b32 s{SW8K}, s3, 13
    s_mul_i32 s{SWW}, s3, 2056
    s_cmp_eq_u32 s3, 3
    s_cselect_b32 s{SBIAS}, 0xf149f2ca, 0
    s_mov_b32 s{SR}, 0
    s_mov_b32 s{SC}, 0x{CSCALE:08x}
    s_mov_b32 s{SC+1}, 0x{CSCALE:08x}
    s_and_b32 s{STMP}, s2, 1
    s_lshl_b32 s{SB_}, s{STMP}, 2
    s_bfe_u32 s{STMP}, s2, 0x20003
    s_add_u32 s{SB_}, s{SB_}, s{STMP}
    s_bfe_u32 s{STMP}, s2, 0x10001
    s_lshl_b32 s{SH}, s{STMP}, 3
    s_lshr_b32 s{STMP}, s2, 5
    s_add_u32 s{SH}, s{SH}, s{STMP}
    s_lshl_b32 s{SH}, s{SH}, 1
    {ROTINIT}
    s_mov_b32 s{SOO}, 0
    s_mov_b32 s{SOO+1}, 131072
    s_mov_b32 s{SOO+2}, 262144
    s_mov_b32 s{SOO+3}, 393216
    """)
    if opt.get("code_pf", True):
        a(f"""
        s_mov_b32 s{SQ+2}, CODE_BYTES
        s_mov_b32 s{SQ+3}, 0x20000
        s_lshr_b32 s3, s2, 3
        s_lshl_b32 s3, s3, 10
        v_lshl_add_u32 v{t2}, v{W}, 15, v{LN16}
        """)
        a.emit_item((f"buffer_load_dwordx4 {vr(TD,4)}, v{t2}, {sr(SQ,4)}, s3 offen", "touch"))
    a(f"""
    v_lshrrev_b32 v{t2}, 3, v{LN}
    v_lshl_add_u32 v{t2}, v{W}, 6, v{t2}
    v_lshlrev_b32 v{t2}, 10, v{t2}
    v_lshrrev_b32 v{t3}, 4, v{LN}
    v_and_b32 v{t5}, 7, v{LN}
    v_xor_b32 v{t4}, v{t3}, v{t5}
    v_lshl_add_u32 v{XDM}, v{t4}, 4, v{t2}
    v_xor_b32 v{XDM+1}, 64, v{XDM}
    v_add_u32 v{XDM+1}, {7*1024}, v{XDM+1}
    v_add_u32 v{XDM+2}, {14*1024}, v{XDM}
    v_add_u32 v{XDM+3}, {14*1024}, v{XDM+1}
    """)
    a(f"""
    v_and_b32 v{t2}, 15, v{LN}
    v_lshlrev_b32 v{t4}, 2, v{t3}
    v_xor_b32 v{t4}, v{t4}, v{t2}
    v_lshlrev_b32 v{t4}, 4, v{t4}
    v_lshl_add_u32 v{t5}, v{W}, 3, v{t3}
    v_lshl_add_u32 v{WDM}, v{t5}, 13, v{t4}
    v_add_u32 v{WDM+1}, {4*8192-1024}, v{WDM}
    s_mov_b32 s{SXO}, 0
    s_mov_b32 s{SWO0}, 0
    s_mov_b32 s{SWO1}, 256
    s_waitcnt lgkmcnt(0)
    """)
    fstamp()
    a(f"""
    s_mul_i32 s3, s{SB_}, 245760
    s_add_u32 s{SX}, s{SPTR}, s3
    s_addc_u32 s{SX+1}, s{SPTR+1}, 0
    s_mov_b32 s{SX+2}, 245760
    s_mov_b32 s{SX+3}, 0x20000
    s_lshl_b32 s3, s{SH}, 8
    s_add_u32 s{SW}, s{SPTR+6}, s3
    s_addc_u32 s{SW+1}, s{SPTR+7}, 0
    s_sub_u32 s{SW+2}, 4194304, s3
    s_mov_b32 s{SW+3}, 0x20000
    """)
    def w_dma(st):
        r = []
        for hd, so in ((1, SWO1), (0, SWO0)):
            r += [f"s_add_u32 m0, s{SWW}, {WREG + wslot(st, hd)}"]
            r += [(f"buffer_load_dwordx4 v{WDM+i}, {sr(SW,4)}, s{so} offen offset:{1024*i}{XWP} lds", f"w{st}") for i in range(2)]
            r += [f"s_add_u32 s{so}, s{so}, 262144"]
        return r
    def x_dma(u):
        r = []
        for hf in range(2):
            r += [f"s_add_u32 m0, s{SW8K}, {xslot(u) + hf*4096}"]
            r += [(f"buffer_load_dwordx4 v{XDM+i}, {sr(SX,4)}, s{SXO} offen offset:{1024*i}{XWP} lds", f"x{u}") for i in range(4)]
            r += [f"s_add_u32 s{SXO}, s{SXO}, 32768" if hf == 0 else f"s_sub_u32 s{SXO}, s{SXO}, {32768-128}"]
        return r
    CONTIG = opt.get("contig", True)
    ROT = opt.get("rot", False)
    def rot_calc(dst, lin):
        if isinstance(lin, int):
            return [f"s_add_u32 s{dst}, s{SROT}, {lin}", f"s_and_b32 s{dst}, s{dst}, 0x3ffff"]
        return [f"s_add_u32 s{dst}, s{lin[0]}, s{SROT}", f"s_and_b32 s{dst}, s{dst}, 0x3ffff", f"s_and_b32 s{ST2}, s{lin[0]}, 0xfffc0000",
                f"s_or_b32 s{dst}, s{dst}, s{ST2}", f"s_add_u32 s{lin[0]}, s{lin[0]}, 16384"]
    def kv_dma(kind, tile):
        base = kslot(tile) if kind == "k" else vslot(tile)
        srd = SK if kind == "k" else SV
        if CONTIG:
            r = []
            for i in range(4):
                r += (rot_calc(3, tile*16384) if i == 0 else ["s_add_u32 s3, s3, 4096"])
                r += [f"s_add_u32 m0, s{SW1K}, {base + 4096*i}",
                      (f"buffer_load_dwordx4 v{KDM if kind == 'k' else VDM}, {sr(srd,4)}, s3 offen{KVNT} lds", f"{kind}{tile}")]
            return r
        r = [f"s_add_u32 m0, s{SW4K}, {base}", f"s_mov_b32 s3, {tile*16384}"]
        for i in range(4):
            vo = KDM + i if kind == "k" else VDM + (i & 1)
            r.append((f"buffer_load_dwordx4 v{vo}, {sr(srd,4)}, s3 offen offset:{1024*i}{KVNT} lds", f"{kind}{tile}"))
        return r
    for it in w_dma(0) + x_dma(0): a.emit_item(it)
    a(f"""
    s_lshl_b32 s3, s{SB_}, 5
    s_add_u32 s3, s3, s{SH}
    s_lshl_b32 s3, s3, 18
    s_add_u32 s{SK}, s{SPTR+2}, s3
    s_addc_u32 s{SK+1}, s{SPTR+3}, 0
    s_mov_b32 s{SK+2}, 524288
    s_mov_b32 s{SK+3}, 0x20000
    s_add_u32 s{SV}, s{SPTR+4}, s3
    s_addc_u32 s{SV+1}, s{SPTR+5}, 0
    s_mov_b32 s{SV+2}, 524288
    s_mov_b32 s{SV+3}, 0x20000
    s_mul_i32 s3, s{SBR}, 120
    s_mul_i32 s{STMP}, s{SB_}, 15
    s_add_u32 s3, s3, s{STMP}
    s_lshl_b32 s3, s3, 17
    s_lshl_b32 s{STMP}, s{SH}, 12
    s_add_u32 s3, s3, s{STMP}
    s_add_u32 s{SO}, s{SWS}, s3
    s_addc_u32 s{SO+1}, s{SWS+1}, 0
    s_sub_u32 s{SO+2}, {15*131072}, s{STMP}
    s_mov_b32 s{SO+3}, 0x20000
    s_and_b32 s3, s2, 3
    s_lshl_b32 s3, s3, 5
    s_lshr_b32 s{STMP}, s2, 3
    s_add_u32 s3, s3, s{STMP}
    s_lshl_b32 s3, s3, 15
    s_add_u32 s{SQ}, s{SPTR+8}, s3
    s_addc_u32 s{SQ+1}, s{SPTR+9}, 0
    s_mov_b32 s{SQ+2}, 32768
    s_mov_b32 s{SQ+3}, 0x20000
    """)
    if opt.get("tlb", True):
        a(f"v_lshlrev_b32 v{t6}, 17, v{W}")
        a.emit_item((f"buffer_load_dword v{TD+4}, v{t6}, {sr(SK,4)}, 0 offen nt", "touch"))
        a.emit_item((f"buffer_load_dword v{TD+5}, v{t6}, {sr(SV,4)}, 0 offen nt", "touch"))
        a(f"v_lshlrev_b32 v{t6}, 19, v{W}")
        a.emit_item((f"buffer_load_dword v{TD+6}, v{t6}, {sr(SO,4)}, 0 offen nt", "touch"))
        a(f"v_lshlrev_b32 v{t6}, 20, v{W}")
        a(f"v_add_u32 v{t6}, 0xfe000, v{t6}")
        a.emit_item((f"buffer_load_dword v{TD+7}, v{t6}, {sr(SW,4)}, 0 offen", "touch"))
    fstamp()
    if CONTIG:
        a(f"""
        v_lshl_add_u32 v{t6}, v{W}, 2, v{t3}
        v_lshlrev_b32 v{t5}, 8, v{t6}
        v_xor_b32 v{t7}, v{t6}, v{t2}
        v_lshl_add_u32 v{KDM}, v{t7}, 4, v{t5}
        v_and_b32 v{t6}, 7, v{t6}
        v_lshlrev_b32 v{t6}, 1, v{t6}
        v_xor_b32 v{t7}, v{t6}, v{t2}
        v_lshl_add_u32 v{VDM}, v{t7}, 4, v{t5}
        """)
    else:
        a(f"""
        v_lshlrev_b32 v{t5}, 8, v{t3}
        v_lshl_add_u32 v{t5}, v{W}, 12, v{t5}
        """)
        for i in range(4):
            a(f"v_add_u32 v{t6}, {4*i}, v{t3}")
            a(f"v_xor_b32 v{t7}, v{t6}, v{t2}")
            a(f"v_lshl_add_u32 v{KDM+i}, v{t7}, 4, v{t5}")
            if i < 2:
                a(f"v_lshlrev_b32 v{t6}, 1, v{t6}")
                a(f"v_xor_b32 v{t7}, v{t6}, v{t2}")
                a(f"v_lshl_add_u32 v{VDM+i}, v{t7}, 4, v{t5}")
    a(f"v_lshlrev_b32 v{t5}, 8, v{t2}\nv_add_u32 v{t5}, {kslot(0)}, v{t5}")
    for s in range(4):
        a(f"v_add_u32 v{t6}, {4*s}, v{t3}")
        a(f"v_xor_b32 v{t6}, v{t6}, v{t2}")
        a(f"v_lshl_add_u32 v{KRD+s}, v{t6}, 4, v{t5}")
    a(f"""
    v_lshrrev_b32 v{t4}, 1, v{t2}
    v_xor_b32 v{t5}, v{t4}, v{t3}
    v_lshlrev_b32 v{t5}, 4, v{t5}
    v_lshl_add_u32 v{t5}, v{t2}, 7, v{t5}
    v_lshl_add_u32 v{XRD}, v{W}, 13, v{t5}
    v_xor_b32 v{XRD2}, 64, v{XRD}
    v_lshrrev_b32 v{t4}, 2, v{t2}
    """)
    a(f"""
    v_and_b32 v{t5}, 3, v{LN}
    v_lshl_add_u32 v{t6}, v{t3}, 2, v{t4}
    v_and_b32 v{t7}, 7, v{t6}
    v_lshlrev_b32 v{t6}, 8, v{t6}
    v_lshl_add_u32 v{t6}, v{t5}, 3, v{t6}
    """)
    for dt in range(8):
        a(f"v_xor_b32 v{t8}, {dt}, v{t7}")
        a(f"v_lshl_add_u32 v{VRD+dt}, v{t8}, 5, v{t6}")
    a(f"""
    v_mul_u32_u24 v{t6}, 2056, v{t3}
    v_lshl_add_u32 v{t6}, v{t4}, 8, v{t6}
    v_lshl_add_u32 v{t6}, v{t5}, 4, v{t6}
    v_add_u32 v{t6}, {WREG}, v{t6}
    """)
    for s in range(4):
        a(f"v_xor_b32 v{t8}, {s}, v{t4}")
        a(f"v_lshl_add_u32 v{WRD+s}, v{t8}, 6, v{t6}")
    a(f"""
    v_lshl_add_u32 v{OST}, v{W}, 19, v{LN16}
    v_lshl_add_u32 v{LN16}, v{W}, 13, v{LN16}
    v_add_u32 v{QST}, {STASH}, v{LN16}
    v_cmp_eq_u32 vcc, 0, v{t5}
    v_mov_b32 v{t6}, 0x3f803f80
    s_nop 0
    v_cndmask_b32 v{t6}, 0, v{t6}, vcc
    """)
    for i in range(4):
        a(f"v_accvgpr_write_b32 a{ONES+i}, v{t6}")
        a(f"v_accvgpr_write_b32 a{ZERO+i}, 0")
    Z = ar(ZERO, 4)
    for i in range(12): a(f"{MF32} {vr(16*i,16)}, {Z}, {Z}, 0")
    for i in range(4): a(f"{MF32} {ar(16*i,16)}, {Z}, {Z}, 0")

    def w_reads(st, hd, wset):
        return [f"ds_read_b64_tr_b16 {ar(WSET[wset]+(2*s+y)*4+aa*2,2)}, v{WRD+s} offset:{wslot(st,hd) + aa*1024 + 8*y}"
                for s in range(4) for y in range(2) for aa in range(2)]
    def x_reads(st):
        return [f"ds_read_b128 {ar(XSET[st&1]+qt*4,4)}, v{XRD2 if st & 1 else XRD} offset:{xslot(st>>1) + qt*2048}" for qt in range(4)]
    def k_reads(half, dst=KF):
        return [f"ds_read_b128 {ar(dst+(kt*4+s)*4,4)}, v{KRD+s} offset:{(half*2+kt)*4096}" for s in range(4) for kt in range(2)]
    def v_reads(half, dst=VF):
        return [f"ds_read_b64_tr_b16 {ar(dst+dt*4+aa*2,2)}, v{VRD+dt} offset:{half*8192 + aa*4096}" for dt in range(8) for aa in range(2)]
    def qk_mfmas(sb, c0, src=KF, qmajor=False):
        idx = [(s, kt, qt) for s in range(4) for kt in range(2) for qt in range(4)]
        if qmajor: idx = [(s, kt, qt) for qt in range(4) for s in range(4) for kt in range(2)]
        m = []
        for s, kt, qt in idx:
            d = vr(S(sb, qt, kt), 4)
            c = d if s else ("0" if c0 else vr(NEGM(qt), 4))
            m.append(f"{MF} {d}, {ar(src+(kt*4+s)*4,4)}, {vr(QF(qt,s),4)}, {c}")
        return m
    def pv_mfmas(pb, src=VF, qmajor=False):
        def pv(dt, qt): d = ar(OA(qt, dt), 4); return f"{MF} {d}, {ar(src+dt*4,4)}, {vr(P(pb,qt),4)}, {d}"
        def ls(qt): d = ar(LA(qt), 4); return f"{MF} {d}, {ar(ONES,4)}, {vr(P(pb,qt),4)}, {d}"
        if qmajor: return [ls(qt) for qt in range(4)] + [pv(dt, qt) for qt in range(4) for dt in range(8)]
        return [pv(dt, qt) for dt in range(8) for qt in range(4)] + [ls(qt) for qt in range(4)]
    def sm_E(sb, e): r = S(sb, e // 8) + e % 8; return f"v_exp_f32 v{r}, v{r}"
    def sm_C(sb, p): r = S(sb, p // 4) + 2 * (p % 4); return f"v_cvt_pk_bf16_f32 v{P(sb, p//4) + p%4}, v{r}, v{r+1}"
    def sm_place(G1, G2, sb):
        n1 = len(G1.m)
        def put(g, it): (G1.put(g, it) if g < n1 else G2.put(g - n1, it))
        for i in range(32): put(2*i, sm_E(sb, i))
        for p in range(16): put(4*p+3, sm_C(sb, p))
    def sm_stream(sb):
        r = []
        for p in range(16):
            r += [sm_E(sb, 2*p), sm_E(sb, 2*p+1)]
            if p: r.append(sm_C(sb, p-1))
        r.append(sm_C(sb, 15))
        return r
    def dma_at(G, g, it):
        G.put(g, it); G.cap[g] = 0
    def spaced(dm, first, stride):
        out = []; nd = 0
        for it in dm:
            if isinstance(it, tuple): out.append({"i": it, "at": first + nd * stride}); nd += 1
            else: out.append(it)
        return out
    SWQ = SW1K if CONTIG else SW4K
    def piece(kind, i):
        srd, so = (SK, SKO) if kind == "k" else (SV, SVO)
        if CONTIG:
            ins = f"buffer_load_dwordx4 v{KDM if kind == 'k' else VDM}, {sr(srd,4)}, s{so} offen{KVNT} lds"
            if i == 3: return ins, rot_calc(so, (SKL if kind == "k" else SVL,))
            return ins, [f"s_add_u32 s{so}, s{so}, 4096", f"s_add_u32 m0, m0, 4096"]
        vo = KDM + i if kind == "k" else VDM + (i & 1)
        ins = f"buffer_load_dwordx4 v{vo}, {sr(srd,4)}, s{so} offen offset:{1024*i}{KVNT} lds"
        return ins, ([f"s_add_u32 s{so}, s{so}, 16384"] if i == 3 else [])
    def piece_at(G, g, kind, i):
        ins, post = piece(kind, i)
        if opt.get("win") is not None: G.put(g, f"s_waitcnt vmcnt({opt['win']})")
        if not opt.get("no_dma"): dma_at(G, g, ins)
        for j, p in enumerate(post): G.put(g + 1 + j, p)
    def pkmul(r, s): return f"v_pk_mul_f32 {vr(r,2)}, {vr(r,2)}, {s}"

    for it in w_dma(1): a.emit_item(it)
    fstamp()
    a(f"s_waitcnt vmcnt({a.vm_need(['w0','x0'])})")
    a("s_barrier")
    for r in x_reads(0) + w_reads(0, 1, 0): a(r)
    a(f"s_mov_b32 s{SCNT}, 0")
    stamp()
    def half_step(k, st, hd, nxt, wait, dm, extra=None, order=None):
        a(wait)
        if k > 24: fstamp()
        idx = [(s, y, qt) for s in range(4) for y in range(2) for qt in range(4)]
        if order: idx = [(s, y, qt) for qt in order for s in range(4) for y in range(2)]
        m = []
        for s, y, qt in idx:
            d = vr(QACC(qt, s, y), 4) if hd == 0 else Q2ACC(qt, s, y)
            m.append(f"{MF} {d}, {ar(WSET[k&1]+(2*s+y)*4,4)}, {ar(XSET[st&1]+qt*4,4)}, {d}")
        G = Sched(m)
        if nxt is None: rd = k_reads(0)
        else: rd = (x_reads(nxt[0]) if nxt[1] == 1 else []) + w_reads(nxt[0], nxt[1], (k+1) & 1)
        G.fill(rd, 0, 26, maxper=1)
        nd = sum(isinstance(x, tuple) for x in dm)
        G.fill(spaced(dm, 1 if nd > 8 else 2, {16: 2, 8: 4}.get(nd, 7)), 0, 32, maxper=(2 if nd > 8 else 1))
        post = G.post; G.post = []
        left = None
        if extra:
            G.fill(extra[0], extra[1], 32)
            left = G.post; G.post = []
        G.post = post
        G.emit(a)
        return left
    NPF = opt.get("l2pf", 0)
    SPF = 50
    PFS = opt.get("l2pf_stride", 16384)
    def pf_dma():
        r = []
        for i in range(NPF):
            kind = "k" if (i & 1) == 0 or not opt.get("l2pf_v") else "v"
            r += [(f"buffer_load_dwordx4 {vr(Q2V + 4*(i%4),4)}, v{KDM if kind == 'k' else VDM}, {sr(SK if kind == 'k' else SV,4)}, s{SPF} offen{opt.get('l2pf_pol','')}", "pf")]
            if kind == "v" or not opt.get("l2pf_v"): r += [f"s_add_u32 s{SPF}, s{SPF}, {PFS}"]
        return r
    a(f"s_mov_b32 s{SPF}, {opt.get('l2pf_first', 4)*16384}")
    half_step(0, 0, 1, (0, 0), "s_waitcnt lgkmcnt(0)", w_dma(2) + x_dma(1) + w_dma(3))
    for it in pf_dma(): a.emit_item(it)
    a(f"s_waitcnt vmcnt({16+NPF}) lgkmcnt(0)")
    a("s_branch K1_QENTRY")
    a(".p2align 6\nK1_QLOOP:")
    for st in range(4):
        half_step(2*st, st, 1, (st, 0), "s_waitcnt lgkmcnt(0)", x_dma((st+3)//2) if st & 1 else pf_dma())
        dm = w_dma(st + 4)
        if st == 3: dm += [f"s_add_u32 s{SCNT}, s{SCNT}, 1", f"s_cmp_lt_u32 s{SCNT}, 3"]
        n = 16 + (NPF if st & 1 else 2*NPF)
        half_step(2*st+1, st, 0, (st+1, 1), f"s_waitcnt vmcnt({n}) lgkmcnt(0)\n" + ("K1_QENTRY:\n" if st == 0 else "") + "s_barrier", dm)
    a("s_cbranch_scc1 K1_QLOOP")
    stamp()
    a.vm = ["w13"]*4 + ["pf"]*NPF + ["w14"]*4 + ["x7"]*8 + ["w15"]*4
    finv = []
    for qt in (2, 3):
        for s in range(4):
            b = 128 + (qt-2)*32 + s*8
            finv += [f"v_mul_f32 v{b+i}, s{SC}, v{b+i}" for i in range(8)]
            finv += [f"v_cvt_pk_bf16_f32 v{Q2V+((qt-2)*4+s)*4+p}, v{b+2*p}, v{b+2*p+1}" for p in range(4)]
    def bar(tag): return f"s_waitcnt vmcnt({a.vm_need(tag)}) lgkmcnt(0)\ns_barrier"
    L0 = "s_waitcnt lgkmcnt(0)"
    half_step(24, 12, 1, (12, 0), L0, kv_dma("k", 0))
    half_step(25, 12, 0, (13, 1), bar("w13"), [])
    half_step(26, 13, 1, (13, 0), L0, kv_dma("k", 1))
    half_step(27, 13, 0, (14, 1), bar(["w14", "x7"]), [])
    half_step(28, 14, 1, (15, 1), bar("w15"), kv_dma("v", 0))
    left = half_step(29, 15, 1, (14, 0), L0, kv_dma("k", 2), extra=(finv, 20), order=(2, 3, 0, 1))
    left = half_step(30, 14, 0, (15, 0), L0, kv_dma("v", 1), extra=(left, 0))
    fina = []
    for qt in (0, 1):
        for s in range(4):
            tb = 128 + ((qt*4+s) % 4) * 16
            src = OA(qt, 2*s)
            fina += [f"v_accvgpr_read_b32 v{tb+i}, a{src+i}" for i in range(8)]
            fina += [f"v_mul_f32 v{tb+i}, s{SC}, v{tb+i}" for i in range(8)]
            fina += [f"v_cvt_pk_bf16_f32 v{tb+8+p}, v{tb+2*p}, v{tb+2*p+1}" for p in range(4)]
            fina.append(f"ds_write_b128 v{QST}, {vr(tb+8,4)} offset:{(qt*4+s)*1024}")
    left = half_step(31, 15, 0, None, bar("k0"), kv_dma("v", 2), extra=(left + fina, 0), order=(0, 1, 2, 3))
    stamp()
    i = 0
    while i < len(left):
        x = left[i]
        if x.startswith("v_mul_f32") and i + 1 < len(left) and left[i+1].startswith("v_mul_f32"):
            r = int(x.split()[1][1:-1])
            if r % 2 == 0:
                a(pkmul(r, sr(SC, 2))); i += 2; continue
        a(x); i += 1
    for qt in range(4):
        for s in range(4):
            b = QACC(qt, s, 0)
            for i in range(4): a(pkmul(b+2*i, sr(SC, 2)))
        if qt == 0: a("s_waitcnt lgkmcnt(0)")
        k3 = kv_dma("k", 3)
        cut = [j for j, x in enumerate(k3) if isinstance(x, tuple)]
        for it in k3[(cut[qt-1]+1 if qt else 0):cut[qt]+1]: a.emit_item(it)
        for s in range(4):
            b = QACC(qt, s, 0)
            for p in range(4): a(f"v_cvt_pk_bf16_f32 v{QF(qt,s)+p}, v{b+2*p}, v{b+2*p+1}")
    a(f"""
    s_mov_b32 s{SKL}, {5*16384}
    s_mov_b32 s{SEV}, 15
    s_mov_b32 s{SVL}, {4*16384}
    """)
    for x in rot_calc(SKO, 4*16384) + rot_calc(SVO, 3*16384): a(x)
    if opt.get("trip_ts"):
        a("s_mov_b32 s34, 0\ns_mov_b32 s32, 0\nv_mbcnt_lo_u32_b32 v205, -1, 0\nv_mbcnt_hi_u32_b32 v205, -1, v205\nv_mov_b32 v207, 0")
    pro_vm = list(a.vm)
    a("K1_PRO:")
    stamp()
    a("s_waitcnt lgkmcnt(0)")
    zm = [f"{MF32} {ar(16*i,16)}, {Z}, {Z}, 0" for i in range(9)]
    G = Sched(qk_mfmas(0, True, KF, True) + zm + qk_mfmas(1, False, VF, True))
    G.fill(k_reads(1, VF), 0, 16, maxper=1)
    G.tail(40, "s_waitcnt lgkmcnt(0)")
    mx = []
    for qt in range(4):
        s0 = S(0, qt); m_ = TMPQ(qt); t_ = m_ + 1; ng = NEGM(qt)
        bias = f"s{SBIAS}" if qt == 3 else "0"
        ch = [f"v_max3_f32 v{m_}, v{s0}, v{s0+1}, v{s0+2}", f"v_max3_f32 v{t_}, v{s0+3}, v{s0+4}, v{s0+5}",
              f"v_max3_f32 v{m_}, v{m_}, v{s0+6}, v{s0+7}", f"v_max_f32 v{m_}, v{m_}, v{t_}", f"v_mov_b32 v{t_}, v{m_}",
              {"i": f"v_permlane16_swap_b32 v{m_}, v{t_}", "new": True}, f"v_max_f32 v{m_}, v{m_}, v{t_}", f"v_mov_b32 v{t_}, v{m_}",
              {"i": f"v_permlane32_swap_b32 v{m_}, v{t_}", "new": True}, f"v_max_f32 v{m_}, v{m_}, v{t_}",
              f"v_sub_f32 v{ng}, {bias}, v{m_}"] + [f"v_mov_b32 v{ng+i}, v{ng}" for i in range(1, 4)] + \
             [f"v_add_f32 v{s0+i}, v{s0+i}, v{ng}" for i in range(8)]
        ch[0] = {"i": ch[0], "at": 8*qt + 11}
        mx += ch
    g = G.fill(mx, 0, len(G.m))
    assert not G.post, len(G.post)
    for qt in range(4):
        gg = [i for i, v in enumerate(G.V) if f"v_mov_b32 v{NEGM(qt)+3}, v{NEGM(qt)}" in v][0]
        assert gg < 41 + 8*qt - 1, (qt, gg)
    G.fill(sm_stream(0), g, len(G.m))
    tailv = G.post; G.post = []
    G.emit(a)
    a.vm = list(pro_vm)
    for s in range(4): a(f"v_subrev_u32 v{KRD+s}, 16384, v{KRD+s}")
    a(f"s_waitcnt vmcnt({min(a.vm_need(['k1','v0']), 16)}) lgkmcnt(0)")
    a("s_barrier")
    a(f"""
    s_add_u32 m0, s{SWQ}, {kslot(0)}
    """)
    kr = k_reads(0)
    for i in range(2):
        for r in kr[4*i:4*i+4]: a(r)
        ins, post = piece("k", i)
        a(ins)
        for p in post: a(p)
    a(f"""
    s_add_u32 s{SM0V}, s{SWQ}, {vslot(3)}
    s_mov_b32 s{SA_}, {kslot(1) - KRING}
    s_mov_b32 s{SBB}, 0
    s_mov_b32 s{SCNT}, 0
    """)
    for it in tailv: a(it)
    a("s_waitcnt lgkmcnt(0)")
    stamp()
    a(".p2align 6")
    a("K1_LOOP:")
    G1 = Sched(qk_mfmas(0, False)); G2 = Sched(pv_mfmas(0)); G3 = Sched(qk_mfmas(1, False)); G4 = Sched(pv_mfmas(1))
    sm_place(G1, G2, 1); sm_place(G3, G4, 0)
    piece_at(G4, 5, "k", 0); piece_at(G4, 21, "k", 1); piece_at(G1, 1, "k", 2); piece_at(G1, 17, "k", 3)
    piece_at(G2, 5, "v", 0); piece_at(G2, 21, "v", 1); piece_at(G3, 1, "v", 2); piece_at(G3, 17, "v", 3)
    G4.put(2, f"s_mov_b32 m0, s{SM0K}")
    G2.put(2, f"s_mov_b32 m0, s{SM0V}")
    G1.fill(v_reads(0), 0, 30); G1.put(31, "s_waitcnt lgkmcnt(0)")
    G2.fill(k_reads(1), 0, 30, maxper=1)
    G2.put(35, "s_waitcnt lgkmcnt(0)")
    G3.fill(v_reads(1), 0, 30)
    sal = [f"s_sub_u32 s{SN}, s{SA_}, 16384", f"s_and_b32 s{SN}, s{SN}, 0xffff", f"s_sub_u32 s{SDK}, s{SN}, s{SA_}",
           f"s_add_u32 s{SM0K}, s{SA_}, s{SWQ}", f"s_add_u32 s{SM0K}, s{SM0K}, {KRING}", f"s_mov_b32 s{SA_}, s{SN}",
           f"s_add_u32 s{SN}, s{SBB}, 16384", f"s_and_b32 s{SN}, s{SN}, 0xffff", f"s_sub_u32 s{SDV}, s{SN}, s{SBB}",
           f"s_add_u32 s{SM0V}, s{SBB}, s{SWQ}", f"s_mov_b32 s{SBB}, s{SN}",
           f"s_add_u32 s{SCNT}, s{SCNT}, 1"]
    G2.fill(sal, 8, 21, maxper=1)
    G2.fill([f"v_add_u32 v{KRD+s}, s{SDK}, v{KRD+s}" for s in range(4)], 32, 36)
    G3.put(31, "s_waitcnt vmcnt(16) lgkmcnt(0)" if not opt.get("no_dma") else "s_waitcnt lgkmcnt(0)")
    G3.tail(31, "s_barrier")
    G4.fill(k_reads(0), 0, 30, maxper=1)
    G4.fill([f"v_add_u32 v{VRD+dt}, s{SDV}, v{VRD+dt}" for dt in range(8)], 25, 36)
    G4.put(34, f"s_cmp_lt_u32 s{SCNT}, s{SEV}")
    G4.put(35, "s_waitcnt lgkmcnt(0)")
    G4.tail(35, "s_cbranch_scc1 K1_LOOP")
    if opt.get("trip_ts"):
        G4.put(1, "s_memrealtime s[32:33]")
        G1.tail(8, ["s_add_u32 s34, s34, 1", "v_cmp_eq_u32 vcc, s34, v205", "v_mov_b32 v206, s32", "s_nop 0", "v_cndmask_b32 v207, v207, v206, vcc"])
    for G in (G1, G2, G3, G4):
        assert not G.post
        G.emit(a)
    a(f"s_cmp_lt_u32 s{SCNT}, 15\ns_cbranch_scc1 K1_FLUSH")
    stamp()
    for r in v_reads(0): a(r)
    sm = sm_stream(1)
    for x in sm[:9]: a(x)
    a("s_waitcnt lgkmcnt(0)")
    G = Sched(pv_mfmas(0))
    G.fill(v_reads(1, XF), 0, 36, maxper=2)
    piece_at(G, 12, "k", 2); piece_at(G, 24, "k", 3)
    G.fill(sm[9:], 0, 36)
    G.emit(a)
    a("s_waitcnt lgkmcnt(0)")
    OSTNT = opt.get("o_store", " sc1"); OSTNT2 = opt.get("o_store2", OSTNT)
    def oepi(qt, final):
        r = []
        for s in range(4):
            tb = [0, 8, 32, 40][s]
            pb = [64, 68, 72, 76][s]
            if not final and qt >= 2: pb = Q2V + ((qt-2)*4+s)*4
            src = OA(qt, 2*s)
            r += [f"v_accvgpr_read_b32 v{tb+i}, a{src+i}" for i in range(8)]
            r += [f"v_pk_mul_f32 {vr(tb+2*i,2)}, {vr(tb+2*i,2)}, {vr(RCP+2*qt,2)}" for i in range(4)]
            r += [f"v_cvt_pk_bf16_f32 v{pb+p}, v{tb+2*p}, v{tb+2*p+1}" for p in range(4)]
            if final: r.append(f"buffer_store_dwordx4 {vr(pb,4)}, v{OST}, {sr(SO,4)}, s{SOO+qt} offen offset:{s*1024}{OSTNT2}")
            elif qt < 2: r.append(f"ds_write_b128 v{QST}, {vr(pb,4)} offset:{(qt*4+s)*1024}")
        return r
    G = Sched(pv_mfmas(1, XF, True))
    G.put(0, f"s_mov_b32 m0, s{SM0V}")
    for j in range(4): piece_at(G, 1 + 8*j, "v", j)
    G.fill([f"ds_read_b128 {vr(QF(j//4, j%4),4)}, v{QST} offset:{j*1024}" for j in range(8)], 0, 36)
    st1 = [f"v_subrev_u32 v{VRD+dt}, {3*16384}, v{VRD+dt}" for dt in range(8)]
    st1 += [{"i": f"v_accvgpr_read_b32 v{RCP}, a{LA(0)}", "at": 9}] + [f"v_accvgpr_read_b32 v{RCP+2*qt}, a{LA(qt)}" for qt in range(1, 4)]
    st1 += [f"v_rcp_f32 v{RCP+2*qt}, v{RCP+2*qt}" for qt in range(4)]
    st1 += [f"v_mov_b32 v{RCP+2*qt+1}, v{RCP+2*qt}" for qt in range(4)]
    st1 += [f"v_mov_b32 v{QF(2,0)+i}, v{Q2V+i}" for i in range(32)]
    G.fill(st1, 0, 36)
    G.emit(a)
    stamp()
    a("s_waitcnt lgkmcnt(0)")
    F0 = opt.get('flush_at', 12)
    def dump_stamps():
        if not stamps: return
        a("s_waitcnt lgkmcnt(0)")
        a(f"""
        s_add_u32 s{SX}, s{SWS}, 0x4000000
        s_addc_u32 s{SX+1}, s{SWS+1}, 0
        s_mov_b32 s{SX+2}, 0x100000
        s_lshl_b32 s3, s2, 1
        s_add_u32 s3, s3, s{SR}
        s_lshl_b32 s3, s3, 10
        s_lshr_b32 s{STMP}, s{SW4K}, 4
        s_add_u32 s3, s3, s{STMP}
        v_mov_b32 v{96}, s3
        """)
        for i in range(0, nstamp[0], 2):
            for j in range(4): a(f"v_mov_b32 v{100+j}, s{STS+2*i+j}")
            a(f"buffer_store_dwordx4 v[100:103], v96, {sr(SX,4)}, 0 offen offset:{8*i}")
            a("s_nop 1")
        if opt.get("trip_ts"):
            a(f"s_lshl_b32 s3, s2, 8\ns_add_u32 s3, s3, 0x80000\nv_lshlrev_b32 v96, 2, v205\nbuffer_store_dword v207, v96, {sr(SX,4)}, s3 offen")
    a(f"s_cmp_eq_u32 s{SR}, 1\ns_cbranch_scc1 K1_FINAL")
    for qt in range(4):
        for x in oepi(qt, False): a(x)
    n0 = nstamp[0]
    stamp()
    dump_stamps()
    a(f"""
    s_mov_b32 s{SR}, 1
    s_mov_b32 s{SEV}, {F0}
    s_branch K1_PRO
    K1_FLUSH:
    s_add_u32 s{SEV}, s{SEV}, 1
    s_cmp_eq_u32 s{SCNT}, {F0+1}
    s_cbranch_scc1 K1_FLUSH2
    s_cmp_eq_u32 s{SCNT}, {F0+2}
    s_cbranch_scc1 K1_FLUSH3
    """)
    for j in range(8): a(f"ds_read_b128 {ar(XF+4*j,4)}, v{QST} offset:{j*1024}")
    for j in range(8): a(f"buffer_store_dwordx4 {vr(Q2V+4*j,4)}, v{OST}, {sr(SO,4)}, s{SOO+2+j//4} offen offset:{(j%4)*1024}{OSTNT}")
    a("s_branch K1_LOOP\nK1_FLUSH2:")
    for j in range(8): a(f"buffer_store_dwordx4 {ar(XF+4*j,4)}, v{OST}, {sr(SO,4)}, s{SOO+j//4} offen offset:{(j%4)*1024}{OSTNT}")
    a(f"v_add_u32 v{OST}, 4096, v{OST}\ns_branch K1_LOOP\nK1_FLUSH3:\ns_mov_b32 s{STMP}, 4096\ns_mov_b32 s{SEV}, 15")
    a(f"""
    s_lshl_b32 s3, s2, 7
    s_add_u32 s3, s3, 0x3A00000
    s_add_u32 s{SX}, s{SWS}, s3
    s_addc_u32 s{SX+1}, s{SWS+1}, 0
    s_mov_b32 s{SX+2}, 128
    buffer_store_dwordx4 {ar(ZERO,4)}, v{LN16}, {sr(SX,4)}, 0 offen sc1
    """)
    if opt.get("wo_pf", True):
        for j in range(8): a(f"buffer_load_dwordx4 a[248:251], v{LN16}, {sr(SQ,4)}, {'0' if j < 4 else 's%d' % STMP} offen offset:{(j%4)*1024}")
    a(f"""
    s_branch K1_LOOP
    K1_FINAL:
    """)
    for qt in range(4):
        for x in oepi(qt, True): a(x)
    nstamp[0] = n0
    stamp()
    dump_stamps()
    a(f"""
    K1_END:
    s_endpgm
    """)

def desc(name, vgpr=512, acc=256, sgpr=102):
    return f""".amdhsa_kernel {name}
  .amdhsa_next_free_vgpr {vgpr}
  .amdhsa_next_free_sgpr {sgpr}
  .amdhsa_accum_offset {acc}
  .amdhsa_group_segment_fixed_size 0
  .amdhsa_kernarg_size 104
  .amdhsa_user_sgpr_count 2
  .amdhsa_user_sgpr_kernarg_segment_ptr 1
  .amdhsa_system_sgpr_workgroup_id_x 1
.end_amdhsa_kernel
"""
```

```python
from asmlib import *
MF = "v_mfma_f32_16x16x32_bf16"
def ACC(q2, nt): return (q2*4+nt)*4
def AF(b, nt): return 32 + b*16 + nt*4
def BF(s, kk, q2): return 64 + (((s & 3)*4+kk)*2+q2)*4
BLD, WDM, ARD = 192, 194, 198
OUTV = 206
T0 = 208
SO, SW, SD = 4, 8, 12
SPTR = 16
SL, SMT, SNT, SBR, SW1K, SBO, SWO, SCNT, STMP, SBON, SWON = 22, 23, 24, 25, 26, 27, 28, 29, 30, 31, 32
STS = 64

def gen_k2(a, name, opt):
    OP = opt.get("k2_o_pol", ""); WP = opt.get("k2_w_pol", "")
    stamps = opt.get("stamps", False)
    nstamp = [0]
    def stamp():
        if stamps:
            a(f"s_memtime {sr(STS + 2*nstamp[0], 2)}")
            a(f"s_memrealtime {sr(STS + 2*nstamp[0] + 2, 2)}")
            nstamp[0] += 2
    a(f".globl {name}\n.p2align 8\n.type {name},@function\n{name}:")
    W, LN, t2, t3, t4, t5, t6, t7 = range(T0, T0 + 8)
    a(f"""
    s_cmp_ge_u32 s2, 240
    s_cbranch_scc1 K2_END
    s_and_b32 s3, s2, 7
    s_mul_i32 s{SL}, s3, 30
    s_lshr_b32 s3, s2, 3
    s_add_u32 s{SL}, s{SL}, s3
    s_lshr_b32 s{SMT}, s{SL}, 3
    s_and_b32 s{SNT}, s{SL}, 7
    s_cmp_ge_u32 s{SMT}, 15
    s_cselect_b32 s{SBR}, 1, 0
    s_mul_i32 s3, s{SBR}, 40
    s_add_u32 s3, s3, 32
    s_load_dwordx2 {sr(SPTR,2)}, s[0:1], s3
    s_load_dwordx2 {sr(SPTR+2,2)}, s[0:1], 80
    s_load_dwordx2 {sr(SPTR+4,2)}, s[0:1], 96
    """)
    stamp()
    a(f"""
    v_lshrrev_b32 v{W}, 6, v0
    v_and_b32 v{LN}, 63, v0
    v_readfirstlane_b32 s3, v{W}
    s_lshl_b32 s{SW1K}, s3, 10
    v_lshlrev_b32 v{t2}, 4, v{LN}
    v_lshl_add_u32 v{BLD}, v{W}, 18, v{t2}
    v_add_u32 v{BLD+1}, 131072, v{BLD}
    v_lshrrev_b32 v{t2}, 3, v{LN}
    v_lshl_add_u32 v{t2}, v{W}, 3, v{t2}
    v_lshlrev_b32 v{t2}, 10, v{t2}
    v_bfe_u32 v{t3}, v{LN}, 1, 2
    v_lshrrev_b32 v{t4}, 4, v{LN}
    v_xor_b32 v{t3}, v{t3}, v{t4}
    v_lshl_add_u32 v{t2}, v{t3}, 5, v{t2}
    v_and_b32 v{t3}, 1, v{LN}
    v_lshl_add_u32 v{WDM}, v{t3}, 4, v{t2}
    v_lshrrev_b32 v{t2}, 2, v{LN}
    v_bfe_u32 v{t3}, v{LN}, 3, 2
    v_and_b32 v{t5}, 3, v{LN}
    v_lshlrev_b32 v{t5}, 3, v{t5}
    v_lshl_add_u32 v{t5}, v{t2}, 7, v{t5}
    """)
    for nt in range(4):
        a(f"v_xor_b32 v{t6}, {nt}, v{t3}")
        a(f"v_lshl_add_u32 v{ARD+nt}, v{t6}, 5, v{t5}")
    a(f"""
    v_and_b32 v{t2}, 15, v{LN}
    v_lshl_add_u32 v{t2}, v{W}, 5, v{t2}
    v_lshlrev_b32 v{t2}, 11, v{t2}
    v_lshl_add_u32 v{OUTV}, v{t4}, 3, v{t2}
    v_add_u32 v{OUTV+1}, 32768, v{OUTV}
    s_waitcnt lgkmcnt(0)
    s_lshl_b32 s3, s{SMT}, 20
    s_add_u32 s{SO}, s{SPTR+4}, s3
    s_addc_u32 s{SO+1}, s{SPTR+5}, 0
    s_mov_b32 s{SO+2}, {0 if opt.get('k2_noO') else 1048576}
    s_mov_b32 s{SO+3}, 0x20000
    s_lshl_b32 s3, s{SNT}, 7
    s_add_u32 s{SW}, s{SPTR}, s3
    s_addc_u32 s{SW+1}, s{SPTR+1}, 0
    s_sub_u32 s{SW+2}, 4194304, s3
    s_mov_b32 s{SW+3}, 0x20000
    {'s_mov_b32 s%d, 0' % (SW+2) if opt.get('k2_noW') else ''}
    s_mul_i32 s{STMP}, s{SBR}, 15
    s_sub_u32 s{STMP}, s{SMT}, s{STMP}
    s_lshl_b32 s{STMP}, s{STMP}, 18
    s_add_u32 s3, s3, s{STMP}
    s_lshl_b32 s{STMP}, s{SBR}, 10
    s_add_u32 s3, s3, s{STMP}
    s_add_u32 s{SD}, s{SPTR+2}, s3
    s_addc_u32 s{SD+1}, s{SPTR+3}, 0
    s_sub_u32 s{SD+2}, 3932160, s3
    s_mov_b32 s{SD+3}, 0x20000
    """)
    SM = SBON
    def ops(s, kk):
        return [f"s_add_u32 m0, s{SM}, {(s & 3)*16384 + kk*4096}",
                (f"buffer_load_dwordx4 {vr(BF(s,kk,0),4)}, v{BLD}, {sr(SO,4)}, s{SBO} offen offset:{kk*1024}{OP}", f"s{s}"),
                (f"buffer_load_dwordx4 {vr(BF(s,kk,1),4)}, v{BLD+1}, {sr(SO,4)}, s{SBO} offen offset:{kk*1024}{OP}", f"s{s}"),
                (f"buffer_load_dwordx4 v{WDM}, {sr(SW,4)}, s{SWO} offen{WP} lds", f"s{s}"),
                f"s_add_u32 s{SWO}, s{SWO}, 32768"] + \
               ([f"s_add_u32 s{SBO}, s{SBO}, 4096"] if kk == 3 else []) + \
               ([f"s_xor_b32 s{SM}, s{SM}, 65536"] if kk == 3 and (s & 3) == 3 else [])
    def a_reads(s, kk, b):
        off = (s & 3)*16384 + kk*4096
        return [f"ds_read_b64_tr_b16 {vr(AF(b,nt)+aa*2,2)}, v{ARD+nt} offset:{off + aa*2048}" for nt in range(4) for aa in range(2)]
    a(f"s_mov_b32 s{SBO}, 0\ns_mov_b32 s{SWO}, 0\ns_mov_b32 s{SCNT}, 0\ns_mov_b32 s{SM}, s{SW1K}")
    for s in range(4):
        for kk in range(4):
            if (s, kk) != (3, 3):
                for x in ops(s, kk): a.emit_item(x)
    for i in range(32): a(f"v_mov_b32 v{i}, 0")
    stamp()
    a("s_waitcnt vmcnt(33)\ns_barrier")
    for r in a_reads(0, 0, 0): a(r)
    stamp()
    def kstep(s, kk, tail):
        b = kk & 1
        if kk == 3 and s < 31:
            n = a.vm_need(f"s{s+1}") if tail else 30
            if (s & 3) == 3:
                for nt in range(4): a(f"v_xor_b32 v{ARD+nt}, 65536, v{ARD+nt}")
            a(f"s_waitcnt vmcnt({n}) lgkmcnt(0)\ns_barrier")
        else: a("s_waitcnt lgkmcnt(0)")
        m = [f"{MF} {vr(ACC(q2,nt),4)}, {vr(AF(b,nt),4)}, {vr(BF(s,kk,q2),4)}, {vr(ACC(q2,nt),4)}" for nt in range(4) for q2 in range(2)]
        G = Sched(m)
        ns, nk = (s, kk+1) if kk < 3 else (s+1, 0)
        if ns < 32: G.fill(a_reads(ns, nk, b ^ 1), 0, 8, maxper=2)
        ps, pk = (s+4, kk-1) if kk else (s+3, 3)
        if ps < 32: G.fill(ops(ps, pk), 3, 8)
        G.emit(a)
    a(".p2align 6\nK2_LOOP:")
    for s in range(4):
        for kk in range(4): kstep(s, kk, False)
    a(f"""
    s_add_u32 s{SCNT}, s{SCNT}, 1
    s_cmp_lt_u32 s{SCNT}, 7
    s_cbranch_scc1 K2_LOOP
    """)
    a.vm = ["s29"]*12 + ["s30"]*12 + ["s31"]*9
    for s in range(28, 32):
        for kk in range(4): kstep(s, kk, True)
    stamp()
    a("s_nop 7")
    for q2 in range(2):
        for nt in range(4):
            r = ACC(q2, nt); d = 224 + (q2*4+nt)*2
            a(f"v_cvt_pk_bf16_f32 v{d}, v{r}, v{r+1}")
            a(f"v_cvt_pk_bf16_f32 v{d+1}, v{r+2}, v{r+3}")
            a(f"buffer_store_dwordx2 {vr(d,2)}, v{OUTV+q2}, {sr(SD,4)}, 0 offen offset:{nt*32}")
    if stamps:
        a("s_waitcnt lgkmcnt(0) vmcnt(0)")
        stamp()
        a("s_waitcnt lgkmcnt(0)")
        a(f"""
        s_add_u32 s{SO}, s{SPTR+4}, 0x4100000
        s_addc_u32 s{SO+1}, s{SPTR+5}, 0
        s_mov_b32 s{SO+2}, 1048576
        s_lshl_b32 s3, s2, 9
        s_lshr_b32 s{STMP}, s{SW1K}, 3
        s_add_u32 s3, s3, s{STMP}
        v_mov_b32 v{T0+8}, s3
        """)
        for i in range(nstamp[0]):
            a(f"v_mov_b32 v{T0+10}, s{STS+2*i}\nv_mov_b32 v{T0+11}, s{STS+2*i+1}")
            a(f"buffer_store_dwordx2 v[{T0+10}:{T0+11}], v{T0+8}, {sr(SO,4)}, 0 offen offset:{8*i}")
            a("s_nop 1")
    a("K2_END:\ns_endpgm")
```

```python
from asmlib import *
MF = "v_mfma_f32_16x16x32_bf16"
def ACC(q, l): return (l*4+q)*4
BLD, WDM, ARD, OUTV, EXV = 128, 132, 134, 142, 143
T0 = 144
NARCH = 152
def AF(l): return l*4
def BF(k, q): return 32 + ((k & 3)*4+q)*4
SO, SW, SD, SE = 4, 8, 12, 16
SPTR = 20
SBR, SKQ, SB_, SNB, SW2K, SBO, SWO, SCNT, STMP, SL = 26, 27, 28, 29, 30, 31, 32, 33, 34, 35
SEX = 36
SOQ = 42
STS = 64
EXOFF, FLAGOFF = 0x2000000, 0x3A00000

def gen_k2(a, name, opt):
    OP = opt.get("k2_o_pol", ""); WP = opt.get("k2_w_pol", "")
    stamps = opt.get("stamps", False)
    nstamp = [0]
    def stamp():
        if stamps:
            a(f"s_memtime {sr(STS + 2*nstamp[0], 2)}")
            a(f"s_memrealtime {sr(STS + 2*nstamp[0] + 2, 2)}")
            a("s_waitcnt lgkmcnt(0)")
            nstamp[0] += 2
    a(f".globl {name}\n.p2align 8\n.type {name},@function\n{name}:")
    W, LN, t2, t3, t4, t5, t6, t7 = range(T0, T0 + 8)
    a(f"""
    s_cmp_ge_u32 s2, 256
    s_cbranch_scc1 K2_END
    s_bfe_u32 s{SBR}, s2, 0x10002
    s_mul_i32 s3, s{SBR}, 40
    s_add_u32 s3, s3, 32
    s_load_dwordx2 {sr(SPTR,2)}, s[0:1], s3
    s_load_dwordx2 {sr(SPTR+2,2)}, s[0:1], 80
    s_load_dwordx2 {sr(SPTR+4,2)}, s[0:1], 96
    """)
    if stamps: a(f"s_memtime {sr(STS,2)}\ns_memrealtime {sr(STS+2,2)}"); nstamp[0] = 2
    a(f"""
    s_and_b32 s{SKQ}, s2, 3
    s_lshr_b32 s{SB_}, s2, 5
    s_bfe_u32 s{SNB}, s2, 0x20003
    v_lshrrev_b32 v{W}, 6, v0
    v_and_b32 v{LN}, 63, v0
    v_readfirstlane_b32 s3, v{W}
    v_lshlrev_b32 v{t2}, 4, v{LN}
    s_lshl_b32 s{SW2K}, s3, 11
    v_lshl_add_u32 v{BLD}, v{W}, 19, v{t2}
    v_lshl_add_u32 v{EXV}, v{W}, 13, v{t2}
    v_add_u32 v{BLD+1}, 131072, v{BLD}
    v_add_u32 v{BLD+2}, 262144, v{BLD}
    v_add_u32 v{BLD+3}, 393216, v{BLD}
    v_lshrrev_b32 v{t3}, 4, v{LN}
    v_and_b32 v{t2}, 15, v{LN}
    v_lshl_add_u32 v{t4}, v{W}, 3, v{t3}
    v_lshlrev_b32 v{t4}, 10, v{t4}
    v_lshlrev_b32 v{t5}, 1, v{t3}
    v_xor_b32 v{t5}, v{t5}, v{t2}
    v_lshl_add_u32 v{WDM}, v{t5}, 4, v{t4}
    v_xor_b32 v{WDM+1}, 128, v{WDM}
    v_add_u32 v{WDM+1}, 3072, v{WDM+1}
    v_lshl_add_u32 v{t4}, v{W}, 6, v{t2}
    v_lshlrev_b32 v{t4}, 11, v{t4}
    v_lshl_add_u32 v{OUTV}, v{t3}, 3, v{t4}
    v_lshrrev_b32 v{t4}, 2, v{LN}
    v_and_b32 v{t5}, 7, v{t4}
    s_lshl_b32 s3, s{SKQ}, 1
    v_xor_b32 v{t5}, s3, v{t5}
    v_and_b32 v{t6}, 3, v{LN}
    v_lshlrev_b32 v{t6}, 3, v{t6}
    v_lshl_add_u32 v{t6}, v{t4}, 8, v{t6}
    """)
    for l in range(8):
        a(f"v_xor_b32 v{t7}, {l}, v{t5}")
        a(f"v_lshl_add_u32 v{ARD+l}, v{t7}, 5, v{t6}")
    a(f"""
    s_mov_b32 s{SBO}, 0
    s_mov_b32 s{SWO}, 0
    s_mov_b32 s{SCNT}, 0
    s_waitcnt lgkmcnt(0)
    s_lshl_b32 s3, s{SKQ}, 20
    s_lshl_b32 s{STMP}, s{SNB}, 8
    s_add_u32 s3, s3, s{STMP}
    s_add_u32 s{SW}, s{SPTR}, s3
    s_addc_u32 s{SW+1}, s{SPTR+1}, 0
    s_sub_u32 s{SW+2}, 1048576, s{STMP}
    s_mov_b32 s{SW+3}, 0x20000
    ; O SRD
    s_mul_i32 s3, s{SBR}, 120
    s_mul_i32 s{STMP}, s{SB_}, 15
    s_add_u32 s3, s3, s{STMP}
    s_lshl_b32 s3, s3, 17
    s_lshl_b32 s{STMP}, s{SKQ}, 15
    s_add_u32 s3, s3, s{STMP}
    s_add_u32 s{SO}, s{SPTR+4}, s3
    s_addc_u32 s{SO+1}, s{SPTR+5}, 0
    s_sub_u32 s{SO+2}, {15*131072}, s{STMP}
    s_mov_b32 s{SO+3}, 0x20000
    """)
    def d_ops(k):
        return [f"s_add_u32 m0, s{SW2K}, {(k & 7)*8192}",
                {"i": f"buffer_load_dwordx4 v{WDM}, {sr(SW,4)}, s{SWO} offen{WP} lds", "new": True},
                f"buffer_load_dwordx4 v{WDM+1}, {sr(SW,4)}, s{SWO} offen offset:1024{WP} lds",
                f"s_add_u32 s{SWO}, s{SWO}, 32768"]
    def b_ops(k):
        r = [f"buffer_load_dwordx4 {ar(BF(k,q),4)}, v{BLD+q}, {sr(SO,4)}, s{SBO} offen offset:{(k&3)*1024}{OP}" for q in range(4)]
        if k & 3 == 3: r += [f"s_add_u32 s{SBO}, s{SBO}, 4096", f"s_cmp_ge_u32 s{SBO}, 32768", f"s_cselect_b32 s{SBO}, 0x40000000, s{SBO}"]
        return r
    def a_reads(k, l):
        return [f"ds_read_b64_tr_b16 {ar(AF(l)+aa*2,2)}, v{ARD+l} offset:{(k&7)*8192 + aa*4096}" for aa in range(2)]
    def plain(x): return x["i"] if isinstance(x, dict) else x
    for x in d_ops(0) + d_ops(1) + d_ops(2) + b_ops(0): a(plain(x))
    a(f"""
    s_lshl_b32 s3, s{SBR}, 3
    s_add_u32 s3, s3, s{SB_}
    s_lshl_b32 s3, s3, 2
    s_add_u32 s3, s3, s{SNB}
    s_lshl_b32 s{SL}, s3, 2
    s_mul_i32 s3, s3, {12*32768}
    s_add_u32 s3, s3, {EXOFF}
    s_add_u32 s{SE}, s{SPTR+4}, s3
    s_addc_u32 s{SE+1}, s{SPTR+5}, 0
    s_mov_b32 s{SE+2}, {12*32768}
    s_mov_b32 s{SE+3}, 0x20000
    s_lshl_b32 s3, s{SBR}, 10
    s_lshl_b32 s{STMP}, s{SNB}, 8
    s_add_u32 s3, s3, s{STMP}
    s_lshl_b32 s{STMP}, s{SKQ}, 6
    s_add_u32 s3, s3, s{STMP}
    s_sub_u32 s{SD+2}, {240*2048}, s3
    s_mul_i32 s{STMP}, s{SB_}, {240*2048}
    s_add_u32 s3, s3, s{STMP}
    s_add_u32 s{SD}, s{SPTR+2}, s3
    s_addc_u32 s{SD+1}, s{SPTR+3}, 0
    s_mov_b32 s{SD+3}, 0x20000
    """)
    for j in range(1, 4):
        a(f"s_xor_b32 s3, s{SKQ}, {j}\ns_mul_i32 s3, s3, {3*32768}\ns_add_u32 s{SEX+2*(j-1)}, s3, {(j-1)*32768}\ns_add_u32 s{SEX+2*(j-1)+1}, s{SEX+2*(j-1)}, 4096")
    for q in range(4): a(f"s_mov_b32 s{SOQ+q}, {q*32768}")
    for i in range(128): a(f"v_mov_b32 v{i}, 0")
    for x in d_ops(3) + b_ops(1) + d_ops(4) + b_ops(2): a(plain(x))
    stamp()
    a("s_waitcnt vmcnt(18)\ns_barrier")
    for l in range(8):
        for r in a_reads(0, l): a(r)
    a("s_waitcnt lgkmcnt(0)")
    stamp()
    a(".p2align 6\nK2_LOOP:")
    for k in range(8):
        a("s_waitcnt vmcnt(12)" + ("\ns_barrier" if k & 1 else ""))
        m = [f"{MF} {vr(ACC(q,l),4)}, {ar(AF(l),4)}, {ar(BF(k,q),4)}, {vr(ACC(q,l),4)}" for l in range(8) for q in range(4)]
        G = Sched(m)
        for l in range(8):
            G.put(4*l + 3, "s_waitcnt lgkmcnt(8)")
            rd = a_reads(k+1, l)
            if l < 7:
                G.put(4*l + 4, rd[0]); G.put(4*l + 5, rd[1])
            else:
                G.tail(31, rd)
        vm = d_ops(k+5) + b_ops(k+3)
        pos = iter([2, 6, 10, 14, 18, 22])
        vm2 = []
        for x in vm:
            if plain(x).startswith("buffer"): vm2.append({"i": plain(x), "at": next(pos)})
            else: vm2.append(x)
        G.fill(vm2, 0, 31, maxper=1)
        assert not G.post
        if k == 7: G.fill([f"s_add_u32 s{SCNT}, s{SCNT}, 1", f"s_cmp_lt_u32 s{SCNT}, 4"], 28, 31, maxper=1)
        G.emit(a)
    a("s_cbranch_scc1 K2_LOOP")
    stamp()
    BF16X = opt.get("k2_bf16x", True); XP = opt.get("k2_x_pol", " sc1")
    def ex(l, q):
        j = l >> 1; idx = q*2 + (l & 1)
        return j, idx
    if BF16X:
        for j in range(1, 4):
            for c in range(4):
                r = 32*j + 8*c
                for p in range(4): a(f"v_cvt_pk_bf16_f32 v{r+p}, v{r+2*p}, v{r+2*p+1}")
                a(f"buffer_store_dwordx4 {vr(r,4)}, v{EXV}, {sr(SE,4)}, s{SEX+2*(j-1)} offen offset:{c*1024}{XP}")
    else:
        for l in range(2, 8):
            for q in range(4):
                j, idx = ex(l, q)
                a(f"buffer_store_dwordx4 {vr(ACC(q,l),4)}, v{EXV}, {sr(SE,4)}, s{SEX+2*(j-1)+idx//4} offen offset:{(idx%4)*1024}{XP}")
    a(f"s_mul_i32 s3, s{SKQ}, {3*32768}")
    for j in range(1, 4):
        a(f"s_add_u32 s{SEX+2*(j-1)}, s3, {(j-1)*32768}\ns_add_u32 s{SEX+2*(j-1)+1}, s{SEX+2*(j-1)}, 4096")
    a(f"""
    s_lshl_b32 s3, s{SL}, 7
    s_add_u32 s3, s3, {FLAGOFF}
    s_add_u32 s{SW}, s{SPTR+4}, s3
    s_addc_u32 s{SW+1}, s{SPTR+5}, 0
    s_mov_b32 s{SW+2}, 512
    v_xor_b32 v{t2}, s{SKQ}, v{LN}
    v_lshlrev_b32 v{t2}, 7, v{t2}
    v_lshl_add_u32 v{t2}, v{LN}, 2, v{t2}
    v_lshl_add_u32 v{t2}, v{W}, 13, v{t2}
    v_mov_b32 v{t3}, 1
    s_lshl_b32 s{STMP}, s{SKQ}, 7
    v_mov_b32 v{BLD}, 0
    s_waitcnt vmcnt(0) lgkmcnt(0)
    s_barrier
    buffer_store_dword v{t3}, v{t2}, {sr(SW,4)}, 0 offen sc1
    s_mov_b32 s{SCNT}, 0
    K2_POLL:
    buffer_load_dwordx4 {vr(t4,4)}, v{BLD}, {sr(SW,4)}, s{STMP} offen sc1
    s_add_u32 s{SCNT}, s{SCNT}, 1
    s_waitcnt vmcnt(0)
    v_and_b32 v{t4}, v{t5}, v{t6}
    v_and_b32 v{t4}, v{t4}, v{t7}
    s_nop 0
    v_readfirstlane_b32 s3, v{t4}
    s_cmp_gt_u32 s{SCNT}, 0x20000
    s_cbranch_scc1 K2_GO
    s_cmp_eq_u32 s3, 1
    s_cbranch_scc0 K2_POLL
    K2_GO:
    s_barrier
    """)
    stamp()
    if BF16X:
        for c in range(4):
            for j in range(1, 4):
                a(f"buffer_load_dwordx4 {vr(32*j+8*c,4)}, v{EXV}, {sr(SE,4)}, s{SEX+2*(j-1)} offen offset:{c*1024}{XP}")
        a(f"s_mov_b32 s3, 0xffff0000")
        for c in range(4):
            a(f"s_waitcnt vmcnt({3*(3-c)})")
            for j in range(1, 4):
                r = 32*j + 8*c
                for p in (3, 2, 1, 0):
                    a(f"v_and_b32 v{r+2*p+1}, s3, v{r+p}")
                    a(f"v_lshlrev_b32 v{r+2*p}, 16, v{r+p}")
                for p in range(4): a(f"v_pk_add_f32 {vr(8*c+2*p,2)}, {vr(8*c+2*p,2)}, {vr(r+2*p,2)}")
    else:
        for l in range(2, 8):
            for q in range(4):
                j, idx = ex(l, q)
                a(f"buffer_load_dwordx4 {vr(ACC(q,l),4)}, v{EXV}, {sr(SE,4)}, s{SEX+2*(j-1)+idx//4} offen offset:{(idx%4)*1024}{XP}")
        for j in range(1, 4):
            a(f"s_waitcnt vmcnt({8*(3-j)})")
            for i in range(16): a(f"v_pk_add_f32 {vr(2*i,2)}, {vr(2*i,2)}, {vr(32*j+2*i,2)}")
    for l in range(2):
        for q in range(4):
            r = ACC(q, l); d = 32 + (l*4+q)*2
            a(f"v_cvt_pk_bf16_f32 v{d}, v{r}, v{r+1}")
            a(f"v_cvt_pk_bf16_f32 v{d+1}, v{r+2}, v{r+3}")
            a(f"buffer_store_dwordx2 {vr(d,2)}, v{OUTV}, {sr(SD,4)}, s{SOQ+q} offen offset:{l*32}")
    if stamps:
        a("s_waitcnt vmcnt(0)")
        stamp()
        a(f"""
        s_add_u32 s{SO}, s{SPTR+4}, 0x4100000
        s_addc_u32 s{SO+1}, s{SPTR+5}, 0
        s_mov_b32 s{SO+2}, 1048576
        s_lshl_b32 s3, s2, 9
        s_lshr_b32 s{STMP}, s{SW2K}, 4
        s_add_u32 s3, s3, s{STMP}
        v_mov_b32 v{T0}, s3
        """)
        for i in range(nstamp[0]):
            a(f"v_mov_b32 v{T0+2}, s{STS+2*i}\nv_mov_b32 v{T0+3}, s{STS+2*i+1}")
            a(f"buffer_store_dwordx2 v[{T0+2}:{T0+3}], v{T0}, {sr(SO,4)}, 0 offen offset:{8*i}")
            a("s_nop 1")
    a("K2_END:\ns_endpgm")
```

```python
from asmlib import *
MF = "v_mfma_f32_16x16x32_bf16"
def ACC(q, l): return (l*2+q)*4
BLD, WDM, ARD, OUTV, EXV = 64, 66, 68, 76, 77
T0 = 80
NARCH = 88
def AF(l): return l*4
def BF(k, q): return 32 + ((k & 3)*2+q)*4
SO, SW, SD, SE, SF = 4, 8, 12, 16, 44
SPTR = 20
SBR, SKH, SMT, SNB, SW2K, SBO, SWO, SCNT, STMP, SL = 26, 27, 28, 29, 30, 31, 32, 33, 34, 35
SEX = 36
SBE, SWE, S32K = 40, 41, 42
STS = 64
EXOFF, FLAGOFF = 0x2000000, 0x3A00000

def gen_k2(a, name, opt):
    OP = opt.get("k2_o_pol", ""); WP = opt.get("k2_w_pol", "")
    T1 = opt.get("k2_t1", 7); T2 = (128 - 16*T1) // 8
    P1 = 8*T1; C0 = P1; C1 = 128 - P1
    stamps = opt.get("stamps", False)
    nstamp = [0]
    def stamp():
        if stamps:
            a(f"s_memtime {sr(STS + 2*nstamp[0], 2)}")
            a(f"s_memrealtime {sr(STS + 2*nstamp[0] + 2, 2)}")
            a("s_waitcnt lgkmcnt(0)")
            nstamp[0] += 2
    a(f".globl {name}\n.p2align 8\n.type {name},@function\n{name}:")
    W, LN, t2, t3, t4, t5, t6, t7 = range(T0, T0 + 8)
    a(f"""
    s_cmp_ge_u32 s2, 240
    s_cbranch_scc1 K2_END
    s_bfe_u32 s{SBR}, s2, 0x10002
    s_mul_i32 s3, s{SBR}, 40
    s_add_u32 s3, s3, 32
    s_load_dwordx2 {sr(SPTR,2)}, s[0:1], s3
    s_load_dwordx2 {sr(SPTR+2,2)}, s[0:1], 80
    s_load_dwordx2 {sr(SPTR+4,2)}, s[0:1], 96
    """)
    if stamps: a(f"s_memtime {sr(STS,2)}\ns_memrealtime {sr(STS+2,2)}"); nstamp[0] = 2
    a(f"""
    s_bfe_u32 s{SKH}, s2, 0x10001
    s_and_b32 s3, s2, 1
    s_mul_i32 s{SL}, s3, 30
    s_lshr_b32 s3, s2, 3
    s_add_u32 s{SL}, s{SL}, s3
    s_lshr_b32 s{SMT}, s{SL}, 2
    s_and_b32 s{SNB}, s{SL}, 3
    v_lshrrev_b32 v{W}, 6, v0
    v_and_b32 v{LN}, 63, v0
    v_readfirstlane_b32 s3, v{W}
    v_lshlrev_b32 v{t2}, 4, v{LN}
    s_lshl_b32 s{SW2K}, s3, 11
    v_lshl_add_u32 v{BLD}, v{W}, 18, v{t2}
    v_lshl_add_u32 v{EXV}, v{W}, 13, v{t2}
    v_add_u32 v{BLD+1}, 131072, v{BLD}
    v_lshrrev_b32 v{t3}, 4, v{LN}
    v_and_b32 v{t2}, 15, v{LN}
    v_lshl_add_u32 v{t4}, v{W}, 3, v{t3}
    v_lshlrev_b32 v{t4}, 10, v{t4}
    v_lshlrev_b32 v{t5}, 1, v{t3}
    v_xor_b32 v{t5}, v{t5}, v{t2}
    v_lshl_add_u32 v{WDM}, v{t5}, 4, v{t4}
    v_xor_b32 v{WDM+1}, 128, v{WDM}
    v_add_u32 v{WDM+1}, 3072, v{WDM+1}
    v_lshl_add_u32 v{t4}, v{W}, 5, v{t2}
    v_lshlrev_b32 v{t4}, 11, v{t4}
    v_lshl_add_u32 v{OUTV}, v{t3}, 3, v{t4}
    v_lshrrev_b32 v{t4}, 2, v{LN}
    v_and_b32 v{t5}, 7, v{t4}
    s_lshl_b32 s3, s{SKH}, 2
    v_xor_b32 v{t5}, s3, v{t5}
    v_and_b32 v{t6}, 3, v{LN}
    v_lshlrev_b32 v{t6}, 3, v{t6}
    v_lshl_add_u32 v{t6}, v{t4}, 8, v{t6}
    """)
    for l in range(8):
        a(f"v_xor_b32 v{t7}, {l}, v{t5}")
        a(f"v_lshl_add_u32 v{ARD+l}, v{t7}, 5, v{t6}")
    a(f"""
    s_mul_i32 s{SBO}, s{SKH}, {C1*1024}
    s_mul_i32 s{SWO}, s{SKH}, {C1*32768}
    s_mov_b32 s{SCNT}, 0
    s_waitcnt lgkmcnt(0)
    s_lshl_b32 s{STMP}, s{SNB}, 8
    s_add_u32 s{SW}, s{SPTR}, s{STMP}
    s_addc_u32 s{SW+1}, s{SPTR+1}, 0
    s_sub_u32 s{SW+2}, 4194304, s{STMP}
    s_mov_b32 s{SW+3}, 0x20000
    s_mul_i32 s3, s{SBR}, 15
    s_add_u32 s3, s3, s{SMT}
    s_lshl_b32 s3, s3, 20
    s_add_u32 s{SO}, s{SPTR+4}, s3
    s_addc_u32 s{SO+1}, s{SPTR+5}, 0
    s_mov_b32 s{SO+2}, 1048576
    s_mov_b32 s{SO+3}, 0x20000
    """)
    HUGE = "0x40000000"
    def d_ops(k):
        r = [f"s_add_u32 m0, s{SW2K}, {(k & 7)*8192}",
             f"buffer_load_dwordx4 v{WDM}, {sr(SW,4)}, s{SWO} offen{WP} lds",
             f"buffer_load_dwordx4 v{WDM+1}, {sr(SW,4)}, s{SWO} offen offset:1024{WP} lds",
             f"s_add_u32 s{SWO}, s{SWO}, 32768"]
        if k & 7 == 7:
            r += [f"s_cmp_eq_u32 s{SWO}, {C1*32768}", f"s_cselect_b32 s{SWO}, {HUGE}, s{SWO}",
                  f"s_cmp_eq_u32 s{SWO}, {128*32768}", f"s_cselect_b32 s{SWO}, {C0*32768 if T2 else HUGE}, s{SWO}"]
        return r
    def b_ops(k):
        r = [f"buffer_load_dwordx4 {ar(BF(k,q),4)}, v{BLD+q}, {sr(SO,4)}, s{SBO} offen offset:{(k&3)*1024}{OP}" for q in range(2)]
        if k & 3 == 3: r += [f"s_add_u32 s{SBO}, s{SBO}, 4096"]
        if k & 7 == 7:
            r += [f"s_cmp_eq_u32 s{SBO}, {C1*1024}", f"s_cselect_b32 s{SBO}, {HUGE}, s{SBO}",
                  f"s_cmp_eq_u32 s{SBO}, {128*1024}", f"s_cselect_b32 s{SBO}, {C0*1024 if T2 else HUGE}, s{SBO}"]
        return r
    def a_reads(k, l):
        return [f"ds_read_b64_tr_b16 {ar(AF(l)+aa*2,2)}, v{ARD+l} offset:{(k&7)*8192 + aa*4096}" for aa in range(2)]
    for x in d_ops(0) + d_ops(1) + d_ops(2) + b_ops(0) + d_ops(3) + b_ops(1): a(x)
    a(f"""
    s_mul_i32 s3, s{SBR}, 60
    s_add_u32 s{SL}, s{SL}, s3
    s_lshl_b32 s3, s{SL}, 16
    s_add_u32 s3, s3, {EXOFF}
    s_add_u32 s{SE}, s{SPTR+4}, s3
    s_addc_u32 s{SE+1}, s{SPTR+5}, 0
    s_mov_b32 s{SE+2}, 65536
    s_mov_b32 s{SE+3}, 0x20000
    s_lshl_b32 s{SEX+2}, s{SKH}, 15
    s_xor_b32 s{SEX}, s{SEX+2}, 32768
    s_add_u32 s{SEX+1}, s{SEX}, 4096
    s_add_u32 s{SEX+3}, s{SEX+2}, 4096
    s_lshl_b32 s3, s{SL}, 8
    s_add_u32 s3, s3, {FLAGOFF}
    s_add_u32 s{SF}, s{SPTR+4}, s3
    s_addc_u32 s{SF+1}, s{SPTR+5}, 0
    s_mov_b32 s{SF+2}, 256
    s_mov_b32 s{SF+3}, 0x20000
    s_lshl_b32 s3, s{SBR}, 10
    s_lshl_b32 s{STMP}, s{SNB}, 8
    s_add_u32 s3, s3, s{STMP}
    s_lshl_b32 s{STMP}, s{SKH}, 7
    s_add_u32 s3, s3, s{STMP}
    s_sub_u32 s{SD+2}, {128*2048}, s3
    s_lshl_b32 s{STMP}, s{SMT}, 18
    s_add_u32 s3, s3, s{STMP}
    s_add_u32 s{SD}, s{SPTR+2}, s3
    s_addc_u32 s{SD+1}, s{SPTR+3}, 0
    s_mov_b32 s{SD+3}, 0x20000
    s_mov_b32 s{S32K}, 32768
    s_lshl_b32 s{SBE}, s{SKH}, 7
    s_xor_b32 s{SWE}, s{SBE}, 128
    v_lshlrev_b32 v{t2}, 8, v0
    v_mov_b32 v{t3}, 1
    v_mov_b32 v{t4}, 0
    """)
    for i in range(64): a(f"v_mov_b32 v{i}, 0")
    for x in d_ops(4) + b_ops(2): a(x)
    stamp()
    a("s_waitcnt vmcnt(12)\ns_barrier")
    for l in range(8):
        for r in a_reads(0, l): a(r)
    a("s_waitcnt lgkmcnt(0)")
    stamp()
    def loop(label, nl, trips, vmw):
        a(f".p2align 6\n{label}:")
        for k in range(8):
            a(f"s_waitcnt vmcnt({vmw})" + ("\ns_barrier" if k & 1 else ""))
            m = [f"{MF} {vr(ACC(q,l),4)}, {ar(AF(l),4)}, {ar(BF(k,q),4)}, {vr(ACC(q,l),4)}" for l in range(nl) for q in range(2)]
            G = Sched(m)
            n = len(m)
            for l in range(nl):
                G.put(2*l + 1, f"s_waitcnt lgkmcnt({2*nl-5})")
                rd = a_reads(k+1, l)
                if l < nl - 1:
                    G.put(2*l + 2, rd[0]); G.put(2*l + 3, rd[1])
                else:
                    G.tail(n - 1, rd)
            for g in range(n): G.cap[g] += 8 if nl == 4 else 4
            vm = d_ops(k+5) + b_ops(k+3)
            if k == 7: vm += [f"s_add_u32 s{SCNT}, s{SCNT}, 1", f"s_cmp_lt_u32 s{SCNT}, {trips}"]
            pos = iter([1, 4, 8, 12] if nl == 8 else [1, 2, 4, 6])
            vm2 = [{"i": x, "at": next(pos)} if x.startswith("buffer") else x for x in vm]
            G.fill(vm2, 0, n, maxper=2)
            G.emit(a)
        a(f"s_cbranch_scc1 {label}")
    loop("K2_LOOP1", 8, T1, 8)
    stamp()
    for l in range(4, 8):
        for q in range(2):
            idx = (l-4)*2 + q
            a(f"buffer_store_dwordx4 {vr(ACC(q,l),4)}, v{EXV}, {sr(SE,4)}, s{SEX+idx//4} offen offset:{(idx%4)*1024} sc1")
    a(f"s_mov_b32 s{SCNT}, 0")
    if T2: loop("K2_LOOP2", 4, opt.get("k2_flag_after", 1), 8)
    else: a("s_waitcnt vmcnt(0) lgkmcnt(0)\ns_barrier")
    a(f"buffer_store_dword v{t3}, v{t2}, {sr(SF,4)}, s{SWE} offen sc1")
    if T2 > opt.get("k2_flag_after", 1):
        loop("K2_LOOP3", 4, T2, 8)
    stamp()
    a(f"""
    s_mov_b32 s{SCNT}, 0
    K2_POLL:
    buffer_load_dword v{t5}, v{t4}, {sr(SF,4)}, s{SBE} offen sc1
    s_add_u32 s{SCNT}, s{SCNT}, 1
    s_waitcnt vmcnt(0)
    v_readfirstlane_b32 s3, v{t5}
    s_cmp_gt_u32 s{SCNT}, 0x20000
    s_cbranch_scc1 K2_GO
    s_cmp_eq_u32 s3, 1
    s_cbranch_scc0 K2_POLL
    K2_GO:
    s_barrier
    """)
    for idx in range(8):
        a(f"buffer_load_dwordx4 {vr(32+4*idx,4)}, v{EXV}, {sr(SE,4)}, s{SEX+2+idx//4} offen offset:{(idx%4)*1024} sc1")
    for l in range(4):
        for q in range(2):
            idx = l*2 + q
            r = ACC(q, l)
            a(f"s_waitcnt vmcnt({7-idx+idx})" if False else f"s_waitcnt vmcnt(7)")
            a(f"v_pk_add_f32 {vr(r,2)}, {vr(r,2)}, {vr(32+r,2)}")
            a(f"v_pk_add_f32 {vr(r+2,2)}, {vr(r+2,2)}, {vr(34+r,2)}")
            a(f"v_cvt_pk_bf16_f32 v{r}, v{r}, v{r+1}")
            a(f"v_cvt_pk_bf16_f32 v{r+1}, v{r+2}, v{r+3}")
            a(f"buffer_store_dwordx2 {vr(r,2)}, v{OUTV}, {sr(SD,4)}, {'0' if q == 0 else 's%d' % S32K} offen offset:{l*32}")
    if stamps:
        a("s_waitcnt vmcnt(0)")
        stamp()
        a(f"""
        s_add_u32 s{SO}, s{SPTR+4}, 0x4100000
        s_addc_u32 s{SO+1}, s{SPTR+5}, 0
        s_mov_b32 s{SO+2}, 1048576
        s_lshl_b32 s3, s2, 9
        s_lshr_b32 s{STMP}, s{SW2K}, 4
        s_add_u32 s3, s3, s{STMP}
        v_mov_b32 v{T0}, s3
        """)
        for i in range(nstamp[0]):
            a(f"v_mov_b32 v{T0+2}, s{STS+2*i}\nv_mov_b32 v{T0+3}, s{STS+2*i+1}")
            a(f"buffer_store_dwordx2 v[{T0+2}:{T0+3}], v{T0}, {sr(SO,4)}, 0 offen offset:{8*i}")
            a("s_nop 1")
    a("K2_END:\ns_endpgm")
```

```python
import re, sys

REG = re.compile(r"\b([vas])(?:(\d+)|\[(\d+):(\d+)\])")
TRANS = ("v_exp_f32", "v_rcp_f32", "v_log_f32", "v_rsq_f32", "v_sqrt_f32")

def regs(tok):
    tok = tok.strip()
    out = set()
    if tok in ("vcc",): return {("s", 106), ("s", 107)}
    if tok == "vcc_lo": return {("s", 106)}
    if tok == "exec": return {("s", 126), ("s", 127)}
    if tok == "m0": return {("s", 124)}
    m = REG.fullmatch(tok.lstrip("-|").rstrip("|"))
    if not m: return out
    f = m.group(1)
    if m.group(2) is not None: lo = hi = int(m.group(2))
    else: lo, hi = int(m.group(3)), int(m.group(4))
    return {(f, i) for i in range(lo, hi + 1)}

class I:
    def __init__(self, line, ln):
        self.line = line; self.ln = ln
        t = line.split(None, 1)
        self.mn = t[0]
        rest = t[1] if len(t) > 1 else ""
        ops = [o.strip() for o in rest.split(",")] if rest else []
        self.mods = ""
        if ops:
            p = ops[-1].split(None, 1)
            if len(p) > 1 and not self.mn.startswith("s_waitcnt"):
                ops[-1] = p[0]; self.mods = p[1]
        self.ops = ops
        mn = self.mn
        self.w = set(); self.r = set()
        self.kind = "other"
        R = [regs(o) for o in ops]
        if mn.startswith("v_mfma"):
            self.kind = "mfma"; self.w = R[0]; self.A = R[1]; self.B = R[2]; self.C = R[3]
            self.r = R[1] | R[2] | R[3]
            self.passes = 8 if "32x32" in mn else 4
        elif mn.startswith("v_permlane"):
            self.kind = "valu"; self.w = R[0] | R[1]; self.r = R[0] | R[1]
        elif mn.startswith("v_cmp"):
            self.kind = "valu"; self.w = R[0]; self.r = set().union(*R[1:])
        elif mn.startswith("v_"):
            self.kind = "valu"; self.w = R[0]; self.r = set().union(*R[1:]) if len(R) > 1 else set()
            if mn.startswith("v_cndmask") and len(ops) == 3: self.r |= regs("vcc")
            if mn.startswith("v_fmac"): self.r |= R[0]
        elif mn.startswith("ds_read"):
            self.kind = "dsr"; self.w = R[0]; self.r = R[1]
        elif mn.startswith("ds_write"):
            self.kind = "dsw"; self.r = set().union(*R)
        elif mn.startswith("buffer_load") or mn.startswith("global_load"):
            if " lds" in (" " + self.mods) :
                self.kind = "dma"; self.r = set().union(*R) | regs("m0")
            else:
                self.kind = "vld"; self.w = R[0]; self.r = set().union(*R[1:])
        elif mn.startswith("buffer_store") or mn.startswith("global_store") or mn.startswith("buffer_atomic"):
            self.kind = "vst"; self.r = set().union(*R); self.data = R[0]
        elif mn.startswith("s_load") or mn.startswith("s_mem"):
            self.kind = "smem"; self.w = R[0]; self.r = set().union(*R[1:]) if len(R) > 1 else set()
        elif mn.startswith("s_waitcnt"): self.kind = "wait"
        elif mn.startswith("s_nop"): self.kind = "nop"
        elif mn.startswith("s_cmp") or mn.startswith("s_cbranch") or mn.startswith("s_branch") or mn in ("s_barrier", "s_endpgm", "s_setprio", "s_sleep"):
            self.kind = "salu"; self.r = set().union(*R) if R else set()
        elif mn.startswith("s_"):
            self.kind = "salu"; self.w = R[0]; self.r = set().union(*R[1:]) if len(R) > 1 else set()
            if "saveexec" in mn: self.w |= regs("exec")
        self.states = int(ops[0]) + 1 if self.kind == "nop" else 1

def check(seq, label="", fixes=None, stop=None):
    errs = []
    pend_l = []
    pend_v = []
    hist = []
    pos = 0
    def err(i, j, msg): errs.append(f"{label} line {i.ln}: {msg}\n    prod(line {j.ln}): {j.line}\n    cons: {i.line}")
    for i in seq:
        if i.kind == "wait":
            m = re.search(r"lgkmcnt\((\d+)\)", i.line)
            if m:
                n = int(m.group(1))
                if n and any(p.kind == "smem" for p in pend_l): errs.append(f"{label} line {i.ln}: counted lgkmcnt with smem outstanding")
                pend_l = pend_l[len(pend_l) - n:] if n < len(pend_l) and n > 0 else ([] if n == 0 else pend_l)
            m = re.search(r"vmcnt\((\d+)\)", i.line)
            if m:
                n = int(m.group(1))
                pend_v = pend_v[len(pend_v) - n:] if n < len(pend_v) and n > 0 else ([] if n == 0 else pend_v)
        touched = i.r | i.w
        for p in pend_l + pend_v:
            if p.w & touched and not (p.kind == "smem" and i.kind == "smem") and not (p.kind == "vld" and i.kind == "vld" and not (p.w & i.r)): err(i, p, "use of register with load outstanding")
        short = 0
        for j, pj in reversed(hist):
            d = pos - pj - 1 + (0)
            if d > 24: break
            need = 0; why = ""
            if j.kind == "valu":
                vw = {x for x in j.w if x[0] != "s"}; sw = {x for x in j.w if x[0] == "s"}
                if i.kind == "mfma" and vw & i.r: need, why = 2, "valu->mfma"
                if j.mn in TRANS and i.kind == "valu" and i.mn not in TRANS and vw & i.r: need, why = max(need, 1), "trans->valu"
                if j.mn in TRANS and i.kind in ("vst", "dsw") and vw & i.r: need, why = max(need, 1), "trans->mem"
                if i.mn.startswith("v_permlane") and vw & i.r: need, why = max(need, 2), "valu->permlane"
                if i.mn.startswith("v_readfirstlane") or i.mn.startswith("v_readlane"):
                    if vw & i.r: need, why = max(need, 1), "valu->readlane"
                if sw and i.kind in ("dma", "vld", "vst") and sw & i.r: need, why = max(need, 5), "valu sgpr->vmem"
                if sw and i.kind == "valu" and sw & i.r: need, why = max(need, 2), "valu sgpr->valu"
            if j.kind == "mfma":
                p4 = j.passes == 4
                if i.kind == "mfma":
                    if j.w & (i.A | i.B): need, why = (8 if p4 else 12), "mfma D->A/B"
                    elif j.w & i.C and not (j.w == i.C and j.passes == i.passes): need, why = (6 if p4 else 10), "mfma D->C partial"
                    elif j.w & i.w and not (j.w & i.C): need, why = (0), ""
                elif i.kind in ("valu", "dsr", "dsw", "vld", "vst", "dma"):
                    if j.w & touched: need, why = (8 if p4 else 12), "mfma D->other"
                    if i.kind == "valu" and j.C & i.w:
                        n2 = 3 if p4 else 7
                        if n2 > need: need, why = n2, "mfma C WAR"
            if j.kind == "salu" and ("s", 124) in j.w and i.kind == "dma": need, why = max(need, 1), "m0->dma"
            if j.kind == "vst" and len(j.data) >= 3 and (j.data & i.w) and i.kind != "mfma": need, why = max(need, 2), "store data WAR"
            if need > d:
                if fixes is None: err(i, j, f"{why}: need {need} wait states, have {d}")
                else: short = max(short, need - d)
        if short:
            fixes[i.ln] = short
            pos += short
        if i.kind in ("dsr", "dsw", "smem"): pend_l.append(i)
        if i.kind in ("dma", "vld", "vst"): pend_v.append(i)
        if i.mn in ("s_branch", "s_endpgm") and i is not stop: pend_l = []; pend_v = []; hist = []
        hist.append((i, pos + i.states - 1))
        if len(hist) > 40: hist.pop(0)
        pos += i.states
    return errs

def parse(text):
    items = []
    for ln, line in enumerate(text.split("\n"), 1):
        s = line.split(";")[0].strip()
        if not s: continue
        if s.startswith(".section"): break
        if s.startswith("."): continue
        if s.endswith(":"): items.append(("label", s[:-1], ln)); continue
        items.append(("ins", I(s, ln), ln))
    return items

def fix(text):
    items = parse(text)
    seq = [it[1] for it in items if it[0] == "ins"]
    fixes = {}
    check(seq, "", fixes)
    out = []
    for ln, line in enumerate(text.split("\n"), 1):
        if ln in fixes:
            n = fixes[ln]
            while n > 0:
                k = min(n, 8)
                out.append(f"    s_nop {k-1} ; hz")
                n -= k
        out.append(line)
    return "\n".join(out), fixes

def verify(text):
    items = parse(text)
    labels = {it[1]: k for k, it in enumerate(items) if it[0] == "label"}
    seq = [it[1] for it in items if it[0] == "ins"]
    errs = check(seq, "fallthrough")
    for k, it in enumerate(items):
        if it[0] == "ins" and (it[1].mn.startswith("s_cbranch") or it[1].mn == "s_branch"):
            tgt = labels[it[1].ops[0]]
            before = [x[1] for x in items[max(0, k - 400):k + 1] if x[0] == "ins"]
            after = [x[1] for x in items[tgt:tgt + 400] if x[0] == "ins"]
            e = check(before + after, f"branch@{it[2]}", stop=it[1])
            base = set(check(before, f"branch@{it[2]}")) | set(check(after, f"branch@{it[2]}"))
            errs += [x for x in e if x not in base]
    return errs

if __name__ == "__main__":
    e = verify(open(sys.argv[1]).read())
    for x in e[:40]: print(x)
    print(len(e), "problems")
```

```python
from asmlib import *
import struct

MF = "v_mfma_f32_16x16x32_bf16"
MF32 = "v_mfma_f32_32x32x16_bf16"
def QACC(qt, s, y): return 32*qt + (2*s+y)*4
def S(b, qt, kt=0): return 32*qt + 8*b + 4*kt
def P(b, qt): return 32*qt + 16 + 4*b
def NEGM(qt): return 32*qt + 24
def TMPQ(qt): return 32*qt + 28
def QF(qt, s): return 128 + (qt*4+s)*4
KRD, VRD, KDM, VDM, XDM, WDM, XRD, WRD, OST, QST, LN16 = 192, 196, 204, 208, 210, 214, 209, 217, 221, 222, 223
XRD2 = 216
Q2V = 224
T0 = 224
RCP = 210
def OA(qt, dt): return (qt*8+dt)*4
def LA(qt): return 128 + qt*4
KF, VF, XF = 144, 176, 208
WSET = [144, 176]
XSET = [208, 224]
ONES, ZERO = 240, 244
def Q2ACC(qt, s, y):
    return ar(OA(qt, 2*s+y), 4) if qt < 2 else vr(128 + (qt-2)*32 + (2*s+y)*4, 4)
SK, SV, SX, SW, SO, SQ = 4, 8, 12, 16, 20, 24
SPTR, SWS = 28, 38
SW4K, SR, SB_, SH, SBR = 40, 41, 42, 43, 44
SCNT, SKO, SVO, SM0K, SM0V, SDK, SDV, SA_, SBB, SN = 45, 46, 47, 48, 49, 50, 51, 52, 53, 54
SOO = 55
STMP, SWW, SBIAS = 59, 60, 61
SC = 62
SW1K = 100
SROT, SKL, SVL, ST2, SEV = 101, 28, 29, 30, 31
SXO, SWO0, SWO1, SW8K = 46, 47, 48, 49
STS = 64
VRING, WREG, KRING = 0, 65536, 98304
STASH = 65536
WHALF = 8224
def xslot(u): return (u & 1) * 32768
def wslot(st, hd): return (((3 - st) & 3) * 2 + hd) * WHALF
def kslot(t): return KRING + ((3 - t) & 3) * 16384
def vslot(t): return VRING + (t & 3) * 16384

CSCALE = struct.unpack("<I", struct.pack("<f", 1.4426950408889634 * 128 ** -0.5))[0]

def gen_k1(a, name, opt):
    stamps = opt.get("stamps", False)
    KVNT = " nt" if opt.get("kv_nt", True) else ""
    XWP = opt.get("xw_pol", " nt")
    nstamp = [0]
    fine = opt.get("fine", False)
    def fstamp():
        if fine:
            a(f"s_memtime {sr(STS + 2*nstamp[0], 2)}")
            nstamp[0] += 1
    def stamp():
        if fine:
            if nstamp[0] < 17: fstamp()
        elif stamps:
            a(f"s_memtime {sr(STS + 2*nstamp[0], 2)}")
            a(f"s_memrealtime {sr(STS + 2*nstamp[0] + 2, 2)}")
            nstamp[0] += 2
    a(f".globl {name}\n.p2align 8\n.type {name},@function\n{name}:")
    a(f"""
    s_cmp_ge_u32 s2, 256
    s_cbranch_scc1 K1_END
    s_bfe_u32 s{SBR}, s2, 0x10002
    s_mul_i32 s3, s{SBR}, 40
    s_load_dwordx8 {sr(SPTR,8)}, s[0:1], s3
    s_add_u32 s3, s3, 32
    s_load_dwordx2 {sr(SPTR+8,2)}, s[0:1], s3
    s_load_dwordx2 {sr(SWS,2)}, s[0:1], 96
    s_getpc_b64 {sr(SQ,2)}
    K1_PC:
    """)
    stamp()
    W, LN = T0, T0 + 1
    t2, t3, t4, t5, t6, t7, t8, t9 = range(T0 + 2, T0 + 10)
    ROTINIT = (f"s_lshr_b32 s{SROT}, s2, 3\ns_add_u32 s{SROT}, s{SROT}, s2\ns_and_b32 s{SROT}, s{SROT}, 15\ns_lshl_b32 s{SROT}, s{SROT}, 14"
               if opt.get("rot", False) else f"s_mov_b32 s{SROT}, 0")
    TD = T0 + 12
    a(f"""
    v_lshrrev_b32 v{W}, 6, v0
    v_and_b32 v{LN}, 63, v0
    v_readfirstlane_b32 s3, v{W}
    v_lshlrev_b32 v{LN16}, 4, v{LN}
    s_lshl_b32 s{SW4K}, s3, 12
    s_lshl_b32 s{SW1K}, s3, 10
    s_lshl_b32 s{SW8K}, s3, 13
    s_mul_i32 s{SWW}, s3, 2056
    s_cmp_eq_u32 s3, 3
    s_cselect_b32 s{SBIAS}, 0xf149f2ca, 0
    s_mov_b32 s{SR}, 0
    s_mov_b32 s{SC}, 0x{CSCALE:08x}
    s_mov_b32 s{SC+1}, 0x{CSCALE:08x}
    s_and_b32 s{STMP}, s2, 1
    s_lshl_b32 s{SB_}, s{STMP}, 2
    s_bfe_u32 s{STMP}, s2, 0x20003
    s_add_u32 s{SB_}, s{SB_}, s{STMP}
    s_bfe_u32 s{STMP}, s2, 0x10001
    s_lshl_b32 s{SH}, s{STMP}, 3
    s_lshr_b32 s{STMP}, s2, 5
    s_add_u32 s{SH}, s{SH}, s{STMP}
    s_lshl_b32 s{SH}, s{SH}, 1
    {ROTINIT}
    s_mov_b32 s{SOO}, 0
    s_mov_b32 s{SOO+1}, 131072
    s_mov_b32 s{SOO+2}, 262144
    s_mov_b32 s{SOO+3}, 393216
    """)
    if opt.get("code_pf", True):
        a(f"""
        s_mov_b32 s{SQ+2}, CODE_BYTES
        s_mov_b32 s{SQ+3}, 0x20000
        s_lshr_b32 s3, s2, 3
        s_lshl_b32 s3, s3, 10
        v_lshl_add_u32 v{t2}, v{W}, 15, v{LN16}
        """)
        a.emit_item((f"buffer_load_dwordx4 {vr(TD,4)}, v{t2}, {sr(SQ,4)}, s3 offen", "touch"))
    a(f"""
    v_lshrrev_b32 v{t2}, 3, v{LN}
    v_lshl_add_u32 v{t2}, v{W}, 6, v{t2}
    v_lshlrev_b32 v{t2}, 10, v{t2}
    v_lshrrev_b32 v{t3}, 4, v{LN}
    v_and_b32 v{t5}, 7, v{LN}
    v_xor_b32 v{t4}, v{t3}, v{t5}
    v_lshl_add_u32 v{XDM}, v{t4}, 4, v{t2}
    v_xor_b32 v{XDM+1}, 64, v{XDM}
    v_add_u32 v{XDM+1}, {7*1024}, v{XDM+1}
    v_add_u32 v{XDM+2}, {14*1024}, v{XDM}
    v_add_u32 v{XDM+3}, {14*1024}, v{XDM+1}
    """)
    a(f"""
    v_and_b32 v{t2}, 15, v{LN}
    v_lshlrev_b32 v{t4}, 2, v{t3}
    v_xor_b32 v{t4}, v{t4}, v{t2}
    v_lshlrev_b32 v{t4}, 4, v{t4}
    v_lshl_add_u32 v{t5}, v{W}, 3, v{t3}
    v_lshl_add_u32 v{WDM}, v{t5}, 13, v{t4}
    v_add_u32 v{WDM+1}, {4*8192-1024}, v{WDM}
    s_mov_b32 s{SXO}, 0
    s_mov_b32 s{SWO0}, 0
    s_mov_b32 s{SWO1}, 256
    s_waitcnt lgkmcnt(0)
    """)
    fstamp()
    a(f"""
    s_mul_i32 s3, s{SB_}, 245760
    s_add_u32 s{SX}, s{SPTR}, s3
    s_addc_u32 s{SX+1}, s{SPTR+1}, 0
    s_mov_b32 s{SX+2}, {opt.get('exp_rows', 240)*1024}
    s_mov_b32 s{SX+3}, 0x20000
    s_lshl_b32 s3, s{SH}, 8
    s_add_u32 s{SW}, s{SPTR+6}, s3
    s_addc_u32 s{SW+1}, s{SPTR+7}, 0
    s_sub_u32 s{SW+2}, 4194304, s3
    s_mov_b32 s{SW+3}, 0x20000
    """)
    def w_dma(st):
        r = []
        for hd, so in ((1, SWO1), (0, SWO0)):
            r += [f"s_add_u32 m0, s{SWW}, {WREG + wslot(st, hd)}"]
            r += [(f"buffer_load_dwordx4 v{WDM+i}, {sr(SW,4)}, s{so} offen offset:{1024*i}{XWP} lds", f"w{st}") for i in range(2)]
            r += [f"s_add_u32 s{so}, s{so}, 262144"]
        return r
    def x_dma(u):
        r = []
        for hf in range(2):
            r += [f"s_add_u32 m0, s{SW8K}, {xslot(u) + hf*4096}"]
            r += [(f"buffer_load_dwordx4 v{XDM+i}, {sr(SX,4)}, s{SXO} offen offset:{1024*i}{XWP} lds", f"x{u}") for i in range(4)]
            r += [f"s_add_u32 s{SXO}, s{SXO}, 32768" if hf == 0 else f"s_sub_u32 s{SXO}, s{SXO}, {32768-128}"]
        return r
    CONTIG = opt.get("contig", True)
    ROT = opt.get("rot", False)
    def rot_calc(dst, lin):
        if isinstance(lin, int):
            return [f"s_add_u32 s{dst}, s{SROT}, {lin}", f"s_and_b32 s{dst}, s{dst}, 0x3ffff"]
        return [f"s_add_u32 s{dst}, s{lin[0]}, s{SROT}", f"s_and_b32 s{dst}, s{dst}, 0x3ffff", f"s_and_b32 s{ST2}, s{lin[0]}, 0xfffc0000",
                f"s_or_b32 s{dst}, s{dst}, s{ST2}", f"s_add_u32 s{lin[0]}, s{lin[0]}, 16384"]
    def kv_dma(kind, tile):
        base = kslot(tile) if kind == "k" else vslot(tile)
        srd = SK if kind == "k" else SV
        if CONTIG:
            r = []
            for i in range(4):
                r += (rot_calc(3, tile*16384) if i == 0 else ["s_add_u32 s3, s3, 4096"])
                r += [f"s_add_u32 m0, s{SW1K}, {base + 4096*i}",
                      (f"buffer_load_dwordx4 v{KDM if kind == 'k' else VDM}, {sr(srd,4)}, s3 offen{KVNT} lds", f"{kind}{tile}")]
            return r
        r = [f"s_add_u32 m0, s{SW4K}, {base}", f"s_mov_b32 s3, {tile*16384}"]
        for i in range(4):
            vo = KDM + i if kind == "k" else VDM + (i & 1)
            r.append((f"buffer_load_dwordx4 v{vo}, {sr(srd,4)}, s3 offen offset:{1024*i}{KVNT} lds", f"{kind}{tile}"))
        return r
    for it in w_dma(0) + x_dma(0): a.emit_item(it)
    a(f"""
    s_lshl_b32 s3, s{SB_}, 5
    s_add_u32 s3, s3, s{SH}
    s_lshl_b32 s3, s3, 18
    s_add_u32 s{SK}, s{SPTR+2}, s3
    s_addc_u32 s{SK+1}, s{SPTR+3}, 0
    s_mov_b32 s{SK+2}, 524288
    s_mov_b32 s{SK+3}, 0x20000
    s_add_u32 s{SV}, s{SPTR+4}, s3
    s_addc_u32 s{SV+1}, s{SPTR+5}, 0
    s_mov_b32 s{SV+2}, 524288
    s_mov_b32 s{SV+3}, 0x20000
    s_mul_i32 s3, s{SBR}, 120
    s_mul_i32 s{STMP}, s{SB_}, 15
    s_add_u32 s3, s3, s{STMP}
    s_lshl_b32 s3, s3, 17
    s_lshl_b32 s{STMP}, s{SH}, 12
    s_add_u32 s3, s3, s{STMP}
    s_add_u32 s{SO}, s{SWS}, s3
    s_addc_u32 s{SO+1}, s{SWS+1}, 0
    s_sub_u32 s{SO+2}, {15*131072}, s{STMP}
    s_mov_b32 s{SO+3}, 0x20000
    s_and_b32 s3, s2, 3
    s_lshl_b32 s3, s3, 5
    s_lshr_b32 s{STMP}, s2, 3
    s_add_u32 s3, s3, s{STMP}
    s_lshl_b32 s3, s3, 15
    s_add_u32 s{SQ}, s{SPTR+8}, s3
    s_addc_u32 s{SQ+1}, s{SPTR+9}, 0
    s_mov_b32 s{SQ+2}, 32768
    s_mov_b32 s{SQ+3}, 0x20000
    """)
    if opt.get("tlb", True):
        a(f"v_lshlrev_b32 v{t6}, 17, v{W}")
        a.emit_item((f"buffer_load_dword v{TD+4}, v{t6}, {sr(SK,4)}, 0 offen nt", "touch"))
        a.emit_item((f"buffer_load_dword v{TD+5}, v{t6}, {sr(SV,4)}, 0 offen nt", "touch"))
        a(f"v_lshlrev_b32 v{t6}, 19, v{W}")
        a.emit_item((f"buffer_load_dword v{TD+6}, v{t6}, {sr(SO,4)}, 0 offen nt", "touch"))
        a(f"v_lshlrev_b32 v{t6}, 20, v{W}")
        a(f"v_add_u32 v{t6}, 0xfe000, v{t6}")
        a.emit_item((f"buffer_load_dword v{TD+7}, v{t6}, {sr(SW,4)}, 0 offen", "touch"))
    fstamp()
    if CONTIG:
        a(f"""
        v_lshl_add_u32 v{t6}, v{W}, 2, v{t3}
        v_lshlrev_b32 v{t5}, 8, v{t6}
        v_xor_b32 v{t7}, v{t6}, v{t2}
        v_lshl_add_u32 v{KDM}, v{t7}, 4, v{t5}
        v_and_b32 v{t6}, 7, v{t6}
        v_lshlrev_b32 v{t6}, 1, v{t6}
        v_xor_b32 v{t7}, v{t6}, v{t2}
        v_lshl_add_u32 v{VDM}, v{t7}, 4, v{t5}
        """)
    else:
        a(f"""
        v_lshlrev_b32 v{t5}, 8, v{t3}
        v_lshl_add_u32 v{t5}, v{W}, 12, v{t5}
        """)
        for i in range(4):
            a(f"v_add_u32 v{t6}, {4*i}, v{t3}")
            a(f"v_xor_b32 v{t7}, v{t6}, v{t2}")
            a(f"v_lshl_add_u32 v{KDM+i}, v{t7}, 4, v{t5}")
            if i < 2:
                a(f"v_lshlrev_b32 v{t6}, 1, v{t6}")
                a(f"v_xor_b32 v{t7}, v{t6}, v{t2}")
                a(f"v_lshl_add_u32 v{VDM+i}, v{t7}, 4, v{t5}")
    a(f"v_lshlrev_b32 v{t5}, 8, v{t2}\nv_add_u32 v{t5}, {kslot(0)}, v{t5}")
    for s in range(4):
        a(f"v_add_u32 v{t6}, {4*s}, v{t3}")
        a(f"v_xor_b32 v{t6}, v{t6}, v{t2}")
        a(f"v_lshl_add_u32 v{KRD+s}, v{t6}, 4, v{t5}")
    a(f"""
    v_lshrrev_b32 v{t4}, 1, v{t2}
    v_xor_b32 v{t5}, v{t4}, v{t3}
    v_lshlrev_b32 v{t5}, 4, v{t5}
    v_lshl_add_u32 v{t5}, v{t2}, 7, v{t5}
    v_lshl_add_u32 v{XRD}, v{W}, 13, v{t5}
    v_xor_b32 v{XRD2}, 64, v{XRD}
    v_lshrrev_b32 v{t4}, 2, v{t2}
    """)
    a(f"""
    v_and_b32 v{t5}, 3, v{LN}
    v_lshl_add_u32 v{t6}, v{t3}, 2, v{t4}
    v_and_b32 v{t7}, 7, v{t6}
    v_lshlrev_b32 v{t6}, 8, v{t6}
    v_lshl_add_u32 v{t6}, v{t5}, 3, v{t6}
    """)
    for dt in range(8):
        a(f"v_xor_b32 v{t8}, {dt}, v{t7}")
        a(f"v_lshl_add_u32 v{VRD+dt}, v{t8}, 5, v{t6}")
    a(f"""
    v_mul_u32_u24 v{t6}, 2056, v{t3}
    v_lshl_add_u32 v{t6}, v{t4}, 8, v{t6}
    v_lshl_add_u32 v{t6}, v{t5}, 4, v{t6}
    v_add_u32 v{t6}, {WREG}, v{t6}
    """)
    for s in range(4):
        a(f"v_xor_b32 v{t8}, {s}, v{t4}")
        a(f"v_lshl_add_u32 v{WRD+s}, v{t8}, 6, v{t6}")
    a(f"""
    v_lshl_add_u32 v{OST}, v{W}, 19, v{LN16}
    v_lshl_add_u32 v{LN16}, v{W}, 13, v{LN16}
    v_add_u32 v{QST}, {STASH}, v{LN16}
    v_cmp_eq_u32 vcc, 0, v{t5}
    v_mov_b32 v{t6}, 0x3f803f80
    s_nop 0
    v_cndmask_b32 v{t6}, 0, v{t6}, vcc
    """)
    for i in range(4):
        a(f"v_accvgpr_write_b32 a{ONES+i}, v{t6}")
        a(f"v_accvgpr_write_b32 a{ZERO+i}, 0")
    Z = ar(ZERO, 4)
    for i in range(12): a(f"{MF32} {vr(16*i,16)}, {Z}, {Z}, 0")
    for i in range(4): a(f"{MF32} {ar(16*i,16)}, {Z}, {Z}, 0")

    def w_reads(st, hd, wset):
        return [f"ds_read_b64_tr_b16 {ar(WSET[wset]+(2*s+y)*4+aa*2,2)}, v{WRD+s} offset:{wslot(st,hd) + aa*1024 + 8*y}"
                for s in range(4) for y in range(2) for aa in range(2)]
    def x_reads(st):
        return [f"ds_read_b128 {ar(XSET[st&1]+qt*4,4)}, v{XRD2 if st & 1 else XRD} offset:{xslot(st>>1) + qt*2048}" for qt in range(4)]
    def k_reads(half, dst=KF):
        return [f"ds_read_b128 {ar(dst+(kt*4+s)*4,4)}, v{KRD+s} offset:{(half*2+kt)*4096}" for s in range(4) for kt in range(2)]
    def v_reads(half, dst=VF):
        return [f"ds_read_b64_tr_b16 {ar(dst+dt*4+aa*2,2)}, v{VRD+dt} offset:{half*8192 + aa*4096}" for dt in range(8) for aa in range(2)]
    def qk_mfmas(sb, c0, src=KF, qmajor=False):
        idx = [(s, kt, qt) for s in range(4) for kt in range(2) for qt in range(4)]
        if qmajor: idx = [(s, kt, qt) for qt in range(4) for s in range(4) for kt in range(2)]
        m = []
        for s, kt, qt in idx:
            d = vr(S(sb, qt, kt), 4)
            c = d if s else ("0" if c0 else vr(NEGM(qt), 4))
            m.append(f"{MF} {d}, {ar(src+(kt*4+s)*4,4)}, {vr(QF(qt,s),4)}, {c}")
        return m
    def pv_mfmas(pb, src=VF, qmajor=False):
        def pv(dt, qt): d = ar(OA(qt, dt), 4); return f"{MF} {d}, {ar(src+dt*4,4)}, {vr(P(pb,qt),4)}, {d}"
        def ls(qt): d = ar(LA(qt), 4); return f"{MF} {d}, {ar(ONES,4)}, {vr(P(pb,qt),4)}, {d}"
        if qmajor: return [ls(qt) for qt in range(4)] + [pv(dt, qt) for qt in range(4) for dt in range(8)]
        return [pv(dt, qt) for dt in range(8) for qt in range(4)] + [ls(qt) for qt in range(4)]
    def sm_E(sb, e): r = S(sb, e // 8) + e % 8; return f"v_exp_f32 v{r}, v{r}"
    def sm_C(sb, p): r = S(sb, p // 4) + 2 * (p % 4); return f"v_cvt_pk_bf16_f32 v{P(sb, p//4) + p%4}, v{r}, v{r+1}"
    def sm_place(G1, G2, sb):
        n1 = len(G1.m)
        def put(g, it): (G1.put(g, it) if g < n1 else G2.put(g - n1, it))
        for i in range(32): put(2*i, sm_E(sb, i))
        for p in range(16): put(4*p+3, sm_C(sb, p))
    def sm_stream(sb):
        r = []
        for p in range(16):
            r += [sm_E(sb, 2*p), sm_E(sb, 2*p+1)]
            if p: r.append(sm_C(sb, p-1))
        r.append(sm_C(sb, 15))
        return r
    def dma_at(G, g, it):
        G.put(g, it); G.cap[g] = 0
    def spaced(dm, first, stride):
        out = []; nd = 0
        for it in dm:
            if isinstance(it, tuple): out.append({"i": it, "at": first + nd * stride}); nd += 1
            else: out.append(it)
        return out
    SKB, STM, SMK, SMV, SEF, SINC = SM0K, SM0V, SKL, SVL, ST2, SROT
    def piece(kind, skip=False):
        srd, so = (SK, SKO) if kind == "k" else (SV, SVO)
        if kind == "k": pre = [f"s_xor_b32 s{STM}, s{so}, 0xc000", f"s_and_b32 s{STM}, s{STM}, 0xf000", f"s_add_u32 m0, s{STM}, s{SKB}"]
        else: pre = [f"s_and_b32 s{STM}, s{so}, 0xf000", f"s_add_u32 m0, s{STM}, s{SW1K}"]
        if skip:
            pre += [f"s_bitcmp1_b32 s{SMK if kind == 'k' else SMV}, s{SCNT}", f"s_cselect_b32 s{SEF}, 0x40000000, s{so}", f"s_cselect_b32 s{SINC}, 0, 4096"]
        ins = f"buffer_load_dwordx4 v{KDM if kind == 'k' else VDM}, {sr(srd,4)}, s{SEF if skip else so} offen{KVNT} lds"
        post = [f"s_add_u32 s{so}, s{so}, " + (f"s{SINC}" if skip else "4096")]
        return pre, ins, post
    def piece_at(G, g, kind, skip=False):
        pre, ins, post = piece(kind, skip)
        for j, p in enumerate(pre):
            assert not G.S[g - len(pre) + j], (g, j)
            G.put(g - len(pre) + j, p)
        if not opt.get("no_dma"): dma_at(G, g, ins)
        G.put(g + 1, post[0])
    def piece_now(kind):
        pre, ins, post = piece(kind)
        return pre + ["s_nop 0", ins] + post
    def pkmul(r, s): return f"v_pk_mul_f32 {vr(r,2)}, {vr(r,2)}, {s}"

    for it in w_dma(1): a.emit_item(it)
    fstamp()
    a(f"s_waitcnt vmcnt({a.vm_need(['w0','x0'])})")
    a("s_barrier")
    for r in x_reads(0) + w_reads(0, 1, 0): a(r)
    a(f"s_mov_b32 s{SCNT}, 0")
    stamp()
    def half_step(k, st, hd, nxt, wait, dm, extra=None, order=None):
        a(wait)
        if k > 24: fstamp()
        idx = [(s, y, qt) for s in range(4) for y in range(2) for qt in range(4)]
        if order: idx = [(s, y, qt) for qt in order for s in range(4) for y in range(2)]
        m = []
        for s, y, qt in idx:
            d = vr(QACC(qt, s, y), 4) if hd == 0 else Q2ACC(qt, s, y)
            m.append(f"{MF} {d}, {ar(WSET[k&1]+(2*s+y)*4,4)}, {ar(XSET[st&1]+qt*4,4)}, {d}")
        G = Sched(m)
        if nxt is None: rd = k_reads(0)
        else: rd = (x_reads(nxt[0]) if nxt[1] == 1 else []) + w_reads(nxt[0], nxt[1], (k+1) & 1)
        G.fill(rd, 0, 26, maxper=1)
        nd = sum(isinstance(x, tuple) for x in dm)
        G.fill(spaced(dm, 1 if nd > 8 else 2, {16: 2, 8: 4}.get(nd, 7)), 0, 32, maxper=(2 if nd > 8 else 1))
        post = G.post; G.post = []
        left = None
        if extra:
            G.fill(extra[0], extra[1], 32)
            left = G.post; G.post = []
        G.post = post
        G.emit(a)
        return left
    NPF = opt.get("l2pf", 0)
    SPF = 50
    PFS = opt.get("l2pf_stride", 16384)
    def pf_dma():
        r = []
        for i in range(NPF):
            kind = "k" if (i & 1) == 0 or not opt.get("l2pf_v") else "v"
            r += [(f"buffer_load_dwordx4 {vr(Q2V + 4*(i%4),4)}, v{KDM if kind == 'k' else VDM}, {sr(SK if kind == 'k' else SV,4)}, s{SPF} offen{opt.get('l2pf_pol','')}", "pf")]
            if kind == "v" or not opt.get("l2pf_v"): r += [f"s_add_u32 s{SPF}, s{SPF}, {PFS}"]
        return r
    a(f"s_mov_b32 s{SPF}, {opt.get('l2pf_first', 4)*16384}")
    half_step(0, 0, 1, (0, 0), "s_waitcnt lgkmcnt(0)", w_dma(2) + x_dma(1) + w_dma(3))
    for it in pf_dma(): a.emit_item(it)
    a(f"s_waitcnt vmcnt({16+NPF}) lgkmcnt(0)")
    a("s_branch K1_QENTRY")
    a(".p2align 6\nK1_QLOOP:")
    for st in range(4):
        half_step(2*st, st, 1, (st, 0), "s_waitcnt lgkmcnt(0)", x_dma((st+3)//2) if st & 1 else pf_dma())
        dm = w_dma(st + 4)
        if st == 3: dm += [f"s_add_u32 s{SCNT}, s{SCNT}, 1", f"s_cmp_lt_u32 s{SCNT}, 3"]
        n = 16 + (NPF if st & 1 else 2*NPF)
        half_step(2*st+1, st, 0, (st+1, 1), f"s_waitcnt vmcnt({n}) lgkmcnt(0)\n" + ("K1_QENTRY:\n" if st == 0 else "") + "s_barrier", dm)
    a("s_cbranch_scc1 K1_QLOOP")
    stamp()
    a.vm = ["w13"]*4 + ["pf"]*NPF + ["w14"]*4 + ["x7"]*8 + ["w15"]*4
    finv = []
    for qt in (2, 3):
        for s in range(4):
            b = 128 + (qt-2)*32 + s*8
            finv += [f"v_mul_f32 v{b+i}, s{SC}, v{b+i}" for i in range(8)]
            finv += [f"v_cvt_pk_bf16_f32 v{Q2V+((qt-2)*4+s)*4+p}, v{b+2*p}, v{b+2*p+1}" for p in range(4)]
    def bar(tag): return f"s_waitcnt vmcnt({a.vm_need(tag)}) lgkmcnt(0)\ns_barrier"
    L0 = "s_waitcnt lgkmcnt(0)"
    half_step(24, 12, 1, (12, 0), L0, kv_dma("k", 0))
    half_step(25, 12, 0, (13, 1), bar("w13"), [])
    half_step(26, 13, 1, (13, 0), L0, kv_dma("k", 1))
    half_step(27, 13, 0, (14, 1), bar(["w14", "x7"]), [])
    half_step(28, 14, 1, (15, 1), bar("w15"), kv_dma("v", 0))
    left = half_step(29, 15, 1, (14, 0), L0, kv_dma("k", 2), extra=(finv, 20), order=(2, 3, 0, 1))
    left = half_step(30, 14, 0, (15, 0), L0, kv_dma("v", 1), extra=(left, 0))
    fina = []
    for qt in (0, 1):
        for s in range(4):
            tb = 128 + ((qt*4+s) % 4) * 16
            src = OA(qt, 2*s)
            fina += [f"v_accvgpr_read_b32 v{tb+i}, a{src+i}" for i in range(8)]
            fina += [f"v_mul_f32 v{tb+i}, s{SC}, v{tb+i}" for i in range(8)]
            fina += [f"v_cvt_pk_bf16_f32 v{tb+8+p}, v{tb+2*p}, v{tb+2*p+1}" for p in range(4)]
            fina.append(f"ds_write_b128 v{QST}, {vr(tb+8,4)} offset:{(qt*4+s)*1024}")
    left = half_step(31, 15, 0, None, bar("k0"), kv_dma("v", 2), extra=(left + fina, 0), order=(0, 1, 2, 3))
    stamp()
    i = 0
    while i < len(left):
        x = left[i]
        if x.startswith("v_mul_f32") and i + 1 < len(left) and left[i+1].startswith("v_mul_f32"):
            r = int(x.split()[1][1:-1])
            if r % 2 == 0:
                a(pkmul(r, sr(SC, 2))); i += 2; continue
        a(x); i += 1
    for qt in range(4):
        for s in range(4):
            b = QACC(qt, s, 0)
            for i in range(4): a(pkmul(b+2*i, sr(SC, 2)))
        if qt == 0: a("s_waitcnt lgkmcnt(0)")
        k3 = kv_dma("k", 3)
        cut = [j for j, x in enumerate(k3) if isinstance(x, tuple)]
        for it in k3[(cut[qt-1]+1 if qt else 0):cut[qt]+1]: a.emit_item(it)
        for s in range(4):
            b = QACC(qt, s, 0)
            for p in range(4): a(f"v_cvt_pk_bf16_f32 v{QF(qt,s)+p}, v{b+2*p}, v{b+2*p+1}")
    a(f"""
    s_mov_b32 s{SKO}, {4*16384}
    s_mov_b32 s{SVO}, {3*16384}
    s_mov_b32 s{SEV}, 15
    s_add_u32 s{SKB}, s{SW1K}, {KRING}
    s_mov_b32 s{SMK}, {opt.get('mk0', 0)}
    s_mov_b32 s{SMV}, {opt.get('mv0', 0)}
    """)
    if opt.get("trip_ts"):
        a("s_mov_b32 s34, 0\ns_mov_b32 s32, 0\nv_mbcnt_lo_u32_b32 v205, -1, 0\nv_mbcnt_hi_u32_b32 v205, -1, v205\nv_mov_b32 v207, 0")
    pro_vm = list(a.vm)
    a("K1_PRO:")
    stamp()
    a("s_waitcnt lgkmcnt(0)")
    zm = [f"{MF32} {ar(16*i,16)}, {Z}, {Z}, 0" for i in range(9)]
    G = Sched(qk_mfmas(0, True, KF, True) + zm + qk_mfmas(1, False, VF, True))
    G.fill(k_reads(1, VF), 0, 16, maxper=1)
    G.tail(40, "s_waitcnt lgkmcnt(0)")
    mx = []
    for qt in range(4):
        s0 = S(0, qt); m_ = TMPQ(qt); t_ = m_ + 1; ng = NEGM(qt)
        bias = f"s{SBIAS}" if qt == 3 else "0"
        ch = [f"v_max3_f32 v{m_}, v{s0}, v{s0+1}, v{s0+2}", f"v_max3_f32 v{t_}, v{s0+3}, v{s0+4}, v{s0+5}",
              f"v_max3_f32 v{m_}, v{m_}, v{s0+6}, v{s0+7}", f"v_max_f32 v{m_}, v{m_}, v{t_}", f"v_mov_b32 v{t_}, v{m_}",
              {"i": f"v_permlane16_swap_b32 v{m_}, v{t_}", "new": True}, f"v_max_f32 v{m_}, v{m_}, v{t_}", f"v_mov_b32 v{t_}, v{m_}",
              {"i": f"v_permlane32_swap_b32 v{m_}, v{t_}", "new": True}, f"v_max_f32 v{m_}, v{m_}, v{t_}",
              f"v_sub_f32 v{ng}, {bias}, v{m_}"] + [f"v_mov_b32 v{ng+i}, v{ng}" for i in range(1, 4)] + \
             [f"v_add_f32 v{s0+i}, v{s0+i}, v{ng}" for i in range(8)]
        ch[0] = {"i": ch[0], "at": 8*qt + 11}
        mx += ch
    g = G.fill(mx, 0, len(G.m))
    assert not G.post, len(G.post)
    for qt in range(4):
        gg = [i for i, v in enumerate(G.V) if f"v_mov_b32 v{NEGM(qt)+3}, v{NEGM(qt)}" in v][0]
        assert gg < 41 + 8*qt - 1, (qt, gg)
    G.fill(sm_stream(0), g, len(G.m))
    tailv = G.post; G.post = []
    G.emit(a)
    a.vm = list(pro_vm)
    for s in range(4): a(f"v_subrev_u32 v{KRD+s}, 16384, v{KRD+s}")
    a(f"s_waitcnt vmcnt({min(a.vm_need(['k1','v0']), 16)}) lgkmcnt(0)")
    a("s_barrier")
    kr = k_reads(0)
    for i in range(2):
        pre, ins, post = piece("k")
        for p in pre: a(p)
        for r in kr[4*i:4*i+4]: a(r)
        a(ins)
        for p in post: a(p)
    a(f"""
    s_mov_b32 s{SA_}, {kslot(1) - KRING}
    s_mov_b32 s{SBB}, 0
    s_mov_b32 s{SCNT}, 0
    """)
    for it in tailv: a(it)
    a("s_waitcnt lgkmcnt(0)")
    stamp()
    a(".p2align 6")
    a("K1_LOOP:")
    G1 = Sched(qk_mfmas(0, False)); G2 = Sched(pv_mfmas(0)); G3 = Sched(qk_mfmas(1, False)); G4 = Sched(pv_mfmas(1))
    sm_place(G1, G2, 1); sm_place(G3, G4, 0)
    piece_at(G4, 9, "k"); piece_at(G4, 25, "k"); piece_at(G1, 9, "k", True); piece_at(G1, 25, "k")
    piece_at(G2, 9, "v"); piece_at(G2, 25, "v"); piece_at(G3, 9, "v", True); piece_at(G3, 25, "v")
    G1.fill(v_reads(0), 0, 30); G1.put(31, "s_waitcnt lgkmcnt(0)")
    G2.fill(k_reads(1), 0, 30, maxper=1)
    G2.put(35, "s_waitcnt lgkmcnt(0)")
    G3.fill(v_reads(1), 0, 30)
    sal = [f"s_sub_u32 s{SN}, s{SA_}, 16384", f"s_and_b32 s{SN}, s{SN}, 0xffff", f"s_sub_u32 s{SDK}, s{SN}, s{SA_}", f"s_mov_b32 s{SA_}, s{SN}",
           f"s_add_u32 s{SN}, s{SBB}, 16384", f"s_and_b32 s{SN}, s{SN}, 0xffff", f"s_sub_u32 s{SDV}, s{SN}, s{SBB}", f"s_mov_b32 s{SBB}, s{SN}",
           f"s_add_u32 s{SCNT}, s{SCNT}, 1"]
    G2.fill(sal, 12, 22, maxper=1)
    G2.fill([f"v_add_u32 v{KRD+s}, s{SDK}, v{KRD+s}" for s in range(4)], 32, 36)
    G3.put(31, f"s_waitcnt vmcnt({opt.get('xwait', 16)}) lgkmcnt(0)" if not opt.get("no_dma") else "s_waitcnt lgkmcnt(0)")
    G3.tail(31, "s_barrier")
    G4.fill(k_reads(0), 0, 30, maxper=1)
    G4.fill([f"v_add_u32 v{VRD+dt}, s{SDV}, v{VRD+dt}" for dt in range(8)], 21, 36)
    G4.put(34, f"s_cmp_lt_u32 s{SCNT}, s{SEV}")
    G4.put(35, "s_waitcnt lgkmcnt(0)")
    G4.tail(35, "s_cbranch_scc1 K1_LOOP")
    if opt.get("trip_ts"):
        G4.put(1, "s_memrealtime s[32:33]")
        G1.tail(8, ["s_add_u32 s34, s34, 1", "v_cmp_eq_u32 vcc, s34, v205", "v_mov_b32 v206, s32", "s_nop 0", "v_cndmask_b32 v207, v207, v206, vcc"])
    for G in (G1, G2, G3, G4):
        assert not G.post
        G.emit(a)
    a(f"s_cmp_lt_u32 s{SCNT}, 15\ns_cbranch_scc1 K1_FLUSH")
    stamp()
    for r in v_reads(0): a(r)
    sm = sm_stream(1)
    for x in sm[:9]: a(x)
    a("s_waitcnt lgkmcnt(0)")
    G = Sched(pv_mfmas(0))
    G.fill(v_reads(1, XF), 0, 36, maxper=2)
    nk = 2 + bin(opt.get('mk0', 0)).count('1'); nv = 4 + bin(opt.get('mv0', 0)).count('1')
    order = ["k", "k"]
    while len(order) < nk + nv:
        if order.count("v") < nv: order.append("v")
        if order.count("k") < nk: order.append("k")
    for j in range(3): piece_at(G, 10 + 10*j, order[j])
    G.fill(sm[9:], 0, 36)
    G.emit(a)
    a("s_waitcnt lgkmcnt(0)")
    OSTNT = opt.get("o_store", " sc1"); OSTNT2 = opt.get("o_store2", OSTNT)
    def oepi(qt, final):
        r = []
        for s in range(4):
            tb = [0, 8, 32, 40][s]
            pb = [64, 68, 72, 76][s]
            if not final and qt >= 2: pb = Q2V + ((qt-2)*4+s)*4
            src = OA(qt, 2*s)
            r += [f"v_accvgpr_read_b32 v{tb+i}, a{src+i}" for i in range(8)]
            r += [f"v_pk_mul_f32 {vr(tb+2*i,2)}, {vr(tb+2*i,2)}, {vr(RCP+2*qt,2)}" for i in range(4)]
            r += [f"v_cvt_pk_bf16_f32 v{pb+p}, v{tb+2*p}, v{tb+2*p+1}" for p in range(4)]
            if final: r.append(f"buffer_store_dwordx4 {vr(pb,4)}, v{OST}, {sr(SO,4)}, s{SOO+qt} offen offset:{s*1024}{OSTNT2}")
            elif qt < 2: r.append(f"ds_write_b128 v{QST}, {vr(pb,4)} offset:{(qt*4+s)*1024}")
        return r
    G = Sched(pv_mfmas(1, XF, True))
    for j in range(3): piece_at(G, 3 + 5*j, order[3+j])
    lread = [f"v_accvgpr_read_b32 v{RCP+2*qt}, a{LA(qt)}" for qt in range(4)]
    st1 = [f"v_subrev_u32 v{VRD+dt}, {3*16384}, v{VRD+dt}" for dt in range(8)]
    st1 += [{"i": lread[0], "at": 9}] + lread[1:]
    masks = ["s[32:33]", "s[34:35]", "s[36:37]", "vcc"]
    st1 += [f"v_cmp_nge_f32 {masks[qt]}, s{STMP}, v{RCP+2*qt}" for qt in range(4)]
    G.put(3, f"s_mov_b32 s{STMP}, 0x{opt.get('thresh', 0x53800000):08x}")
    g = G.fill(st1, 0, 16)
    assert not G.post
    G.put(16, "s_or_b64 s[32:33], s[32:33], s[34:35]")
    G.put(17, "s_or_b64 s[36:37], s[36:37], vcc")
    G.put(18, "s_or_b64 s[32:33], s[32:33], s[36:37]")
    G.tail(18, "s_cbranch_scc1 K1_SLOW")
    rest_m = [f"ds_read_b128 {vr(QF(j//4, j%4),4)}, v{QST} offset:{j*1024}" for j in range(8)]
    rcps = [f"v_rcp_f32 v{RCP+2*qt}, v{RCP+2*qt}" for qt in range(4)] + [f"v_mov_b32 v{RCP+2*qt+1}, v{RCP+2*qt}" for qt in range(4)]
    rest_v = [f"v_mov_b32 v{QF(2,0)+i}, v{Q2V+i}" for i in range(32)]
    G.fill(rcps, g + 1, 36)
    G.fill(rest_m, 19, 36)
    G.fill(rest_v, 19, 36)
    G.emit(a)
    a("K1_SLOW_RET:")
    stamp()
    a("s_waitcnt lgkmcnt(0)")
    F0 = opt.get('flush_at', 12)
    def dump_stamps():
        if not stamps: return
        a("s_waitcnt lgkmcnt(0)")
        a(f"""
        s_add_u32 s{SX}, s{SWS}, 0x4000000
        s_addc_u32 s{SX+1}, s{SWS+1}, 0
        s_mov_b32 s{SX+2}, 0x100000
        s_lshl_b32 s3, s2, 1
        s_add_u32 s3, s3, s{SR}
        s_lshl_b32 s3, s3, 10
        s_lshr_b32 s{STMP}, s{SW4K}, 4
        s_add_u32 s3, s3, s{STMP}
        v_mov_b32 v{96}, s3
        """)
        for i in range(0, nstamp[0], 2):
            for j in range(4): a(f"v_mov_b32 v{100+j}, s{STS+2*i+j}")
            a(f"buffer_store_dwordx4 v[100:103], v96, {sr(SX,4)}, 0 offen offset:{8*i}")
            a("s_nop 1")
        if opt.get("trip_ts"):
            a(f"s_lshl_b32 s3, s2, 8\ns_add_u32 s3, s3, 0x80000\nv_lshlrev_b32 v96, 2, v205\nbuffer_store_dword v207, v96, {sr(SX,4)}, s3 offen")
    a(f"s_cmp_eq_u32 s{SR}, 1\ns_cbranch_scc1 K1_FINAL")
    rem = order[6:]
    ep = [x for qt in range(4) for x in oepi(qt, False)]
    step = len(ep) // max(len(rem), 1)
    for j, x in enumerate(ep):
        if j % step == 0 and j // step < len(rem):
            for y in piece_now(rem[j // step]): a(y)
        a(x)
    n0 = nstamp[0]
    stamp()
    dump_stamps()
    a(f"""
    s_mov_b32 s{SR}, 1
    s_mov_b32 s{SEV}, {F0}
    s_mov_b32 s{SMK}, {opt.get('mk1', 0)}
    s_mov_b32 s{SMV}, {opt.get('mv1', 0)}
    s_branch K1_PRO
    K1_FLUSH:
    s_add_u32 s{SEV}, s{SEV}, 1
    s_cmp_eq_u32 s{SCNT}, {F0+1}
    s_cbranch_scc1 K1_FLUSH2
    s_cmp_eq_u32 s{SCNT}, {F0+2}
    s_cbranch_scc1 K1_FLUSH3
    """)
    for j in range(8): a(f"ds_read_b128 {ar(XF+4*j,4)}, v{QST} offset:{j*1024}")
    for j in range(8): a(f"buffer_store_dwordx4 {vr(Q2V+4*j,4)}, v{OST}, {sr(SO,4)}, s{SOO+2+j//4} offen offset:{(j%4)*1024}{OSTNT}")
    a("s_branch K1_LOOP\nK1_FLUSH2:")
    for j in range(8): a(f"buffer_store_dwordx4 {ar(XF+4*j,4)}, v{OST}, {sr(SO,4)}, s{SOO+j//4} offen offset:{(j%4)*1024}{OSTNT}")
    a(f"v_add_u32 v{OST}, 4096, v{OST}\ns_branch K1_LOOP\nK1_FLUSH3:\ns_mov_b32 s{STMP}, 4096\ns_mov_b32 s{SEV}, 15")
    a(f"""
    s_lshl_b32 s3, s2, 7
    s_add_u32 s3, s3, 0x3A00000
    s_add_u32 s{SX}, s{SWS}, s3
    s_addc_u32 s{SX+1}, s{SWS+1}, 0
    s_mov_b32 s{SX+2}, 128
    buffer_store_dwordx4 {ar(ZERO,4)}, v{LN16}, {sr(SX,4)}, 0 offen sc1
    """)
    if opt.get("wo_pf", True):
        for j in range(8): a(f"buffer_load_dwordx4 a[248:251], v{LN16}, {sr(SQ,4)}, {'0' if j < 4 else 's%d' % STMP} offen offset:{(j%4)*1024}")
    a(f"""
    s_branch K1_LOOP
    K1_FINAL:
    """)
    for qt in range(4):
        for x in oepi(qt, True): a(x)
    nstamp[0] = n0
    stamp()
    dump_stamps()
    a("s_endpgm")
    KA, VA, LNv = RCP, RCP + 1, RCP + 2
    SU, SU2, SE_ = 32, 33, 34
    def VFR(dt): return S(1, dt >> 1) + 4 * (dt & 1)
    def kload():
        for kt in range(2):
            for s_ in range(4):
                a(f"buffer_load_dwordx4 {ar(VF+(kt*4+s_)*4,4)}, v{KA}, {sr(SK,4)}, s{SU2 if kt else SU} offen offset:{s_*64}")
    a(f"""
    K1_SLOW:
    s_nop 7
    s_nop 7
    v_mbcnt_lo_u32_b32 v{LNv}, -1, 0
    v_mbcnt_hi_u32_b32 v{LNv}, -1, v{LNv}
    v_and_b32 v{VA}, 15, v{LNv}
    v_lshrrev_b32 v{LNv}, 4, v{LNv}
    v_lshlrev_b32 v{KA}, 8, v{VA}
    v_lshl_add_u32 v{KA}, v{LNv}, 4, v{KA}
    v_lshlrev_b32 v{VA}, 1, v{VA}
    v_lshl_add_u32 v{VA}, v{LNv}, 10, v{VA}
    s_lshl_b32 s{SU}, s{SR}, 18
    s_add_u32 s{SE_}, s{SU}, 262144
    """)
    for qt in range(4): a(f"v_mov_b32 v{TMPQ(qt)}, 0xff800000")
    a(f"K1_SL1:\ns_add_u32 s{SU2}, s{SU}, 4096")
    kload()
    a("s_waitcnt vmcnt(0)")
    for m in qk_mfmas(0, True, VF): a(m)
    a("s_nop 7")
    for qt in range(4):
        for i in range(0, 8, 2): a(f"v_max3_f32 v{TMPQ(qt)}, v{TMPQ(qt)}, v{S(0,qt)+i}, v{S(0,qt)+i+1}")
    a(f"s_add_u32 s{SU}, s{SU}, 8192\ns_cmp_lt_u32 s{SU}, s{SE_}\ns_cbranch_scc1 K1_SL1")
    for qt in range(4):
        m_ = TMPQ(qt); t_ = m_ + 1; ng = NEGM(qt)
        bias = f"s{SBIAS}" if qt == 3 else "0"
        for x in [f"v_mov_b32 v{t_}, v{m_}", f"v_permlane16_swap_b32 v{m_}, v{t_}", f"v_max_f32 v{m_}, v{m_}, v{t_}", f"v_mov_b32 v{t_}, v{m_}",
                  f"v_permlane32_swap_b32 v{m_}, v{t_}", f"v_max_f32 v{m_}, v{m_}, v{t_}", f"v_sub_f32 v{ng}, {bias}, v{m_}"] + \
                 [f"v_mov_b32 v{ng+i}, v{ng}" for i in range(1, 4)]: a(x)
    for x in zm: a(x)
    a(f"s_lshl_b32 s{SU}, s{SR}, 18\nK1_SL2:\ns_add_u32 s{SU2}, s{SU}, 4096")
    kload()
    for aa in range(2):
        def HT(dt, jp): n = dt*2 + jp; return P(1, n >> 2) + (n & 3)
        for dt in range(8):
            for j in range(4):
                d = HT(dt, j >> 1) if j & 1 else VFR(dt) + aa*2 + (j >> 1)
                a(f"buffer_load_ushort v{d}, v{VA}, {sr(SV,4)}, s{SU2 if aa else SU} offen offset:{j*256+dt*32}")
        a("s_waitcnt vmcnt(0)")
        for dt in range(8):
            for jp in range(2):
                d = VFR(dt) + aa*2 + jp
                a(f"v_lshl_or_b32 v{d}, v{HT(dt,jp)}, 16, v{d}")
    for m in qk_mfmas(0, False, VF): a(m)
    a("s_nop 7")
    for x in sm_stream(0): a(x)
    a("s_nop 1")
    for dt in range(8):
        for qt in range(4):
            d = ar(OA(qt, dt), 4)
            a(f"{MF} {d}, {vr(VFR(dt),4)}, {vr(P(0,qt),4)}, {d}")
    for qt in range(4):
        d = ar(LA(qt), 4)
        a(f"{MF} {d}, {ar(ONES,4)}, {vr(P(0,qt),4)}, {d}")
    a(f"s_add_u32 s{SU}, s{SU}, 8192\ns_cmp_lt_u32 s{SU}, s{SE_}\ns_cbranch_scc1 K1_SL2")
    a("s_nop 7")
    for x in lread + rcps + rest_m + rest_v: a(x)
    a(f"""
    s_branch K1_SLOW_RET
    K1_END:
    s_endpgm
    """)

def desc(name, vgpr=512, acc=256, sgpr=102):
    return f""".amdhsa_kernel {name}
  .amdhsa_next_free_vgpr {vgpr}
  .amdhsa_next_free_sgpr {sgpr}
  .amdhsa_accum_offset {acc}
  .amdhsa_group_segment_fixed_size 0
  .amdhsa_kernarg_size 104
  .amdhsa_user_sgpr_count 2
  .amdhsa_user_sgpr_kernarg_segment_ptr 1
  .amdhsa_system_sgpr_workgroup_id_x 1
.end_amdhsa_kernel
"""
```

```python
from asmlib import *
MF = "v_mfma_f32_16x16x32_bf16"
def ACC(q, l): return (l*4+q)*4
BLD, WDM, ARD, OUTV, EXV = 128, 132, 134, 142, 143
T0 = 144
NARCH = 152
def AF(l): return l*4
def BF(k, q): return 32 + ((k & 3)*4+q)*4
SO, SW, SD, SE = 4, 8, 12, 16
SPTR = 20
SBR, SKQ, SB_, SNB, SW2K, SBO, SWO, SCNT, STMP, SL = 26, 27, 28, 29, 30, 31, 32, 33, 34, 35
SEX = 36
SOQ = 42
STS = 64
EXOFF, FLAGOFF = 0x2000000, 0x3A00000

def gen_k2(a, name, opt):
    OP = opt.get("k2_o_pol", ""); WP = opt.get("k2_w_pol", "")
    stamps = opt.get("stamps", False)
    nstamp = [0]
    def stamp():
        if stamps:
            a(f"s_memtime {sr(STS + 2*nstamp[0], 2)}")
            a(f"s_memrealtime {sr(STS + 2*nstamp[0] + 2, 2)}")
            a("s_waitcnt lgkmcnt(0)")
            nstamp[0] += 2
    a(f".globl {name}\n.p2align 8\n.type {name},@function\n{name}:")
    W, LN, t2, t3, t4, t5, t6, t7 = range(T0, T0 + 8)
    a(f"""
    s_cmp_ge_u32 s2, 256
    s_cbranch_scc1 K2_END
    s_bfe_u32 s{SBR}, s2, 0x10002
    s_mul_i32 s3, s{SBR}, 40
    s_add_u32 s3, s3, 32
    s_load_dwordx2 {sr(SPTR,2)}, s[0:1], s3
    s_load_dwordx2 {sr(SPTR+2,2)}, s[0:1], 80
    s_load_dwordx2 {sr(SPTR+4,2)}, s[0:1], 96
    """)
    if stamps: a(f"s_memtime {sr(STS,2)}\ns_memrealtime {sr(STS+2,2)}"); nstamp[0] = 2
    a(f"""
    s_and_b32 s{SKQ}, s2, 3
    s_lshr_b32 s{SB_}, s2, 5
    s_bfe_u32 s{SNB}, s2, 0x20003
    v_lshrrev_b32 v{W}, 6, v0
    v_and_b32 v{LN}, 63, v0
    v_readfirstlane_b32 s3, v{W}
    v_lshlrev_b32 v{t2}, 4, v{LN}
    s_lshl_b32 s{SW2K}, s3, 11
    v_lshl_add_u32 v{BLD}, v{W}, 19, v{t2}
    v_lshl_add_u32 v{EXV}, v{W}, 13, v{t2}
    v_add_u32 v{BLD+1}, 131072, v{BLD}
    v_add_u32 v{BLD+2}, 262144, v{BLD}
    v_add_u32 v{BLD+3}, 393216, v{BLD}
    v_lshrrev_b32 v{t3}, 4, v{LN}
    v_and_b32 v{t2}, 15, v{LN}
    v_lshl_add_u32 v{t4}, v{W}, 3, v{t3}
    v_lshlrev_b32 v{t4}, 10, v{t4}
    v_lshlrev_b32 v{t5}, 1, v{t3}
    v_xor_b32 v{t5}, v{t5}, v{t2}
    v_lshl_add_u32 v{WDM}, v{t5}, 4, v{t4}
    v_xor_b32 v{WDM+1}, 128, v{WDM}
    v_add_u32 v{WDM+1}, 3072, v{WDM+1}
    v_lshl_add_u32 v{t4}, v{W}, 6, v{t2}
    v_lshlrev_b32 v{t4}, 11, v{t4}
    v_lshl_add_u32 v{OUTV}, v{t3}, 3, v{t4}
    v_lshrrev_b32 v{t4}, 2, v{LN}
    v_and_b32 v{t5}, 7, v{t4}
    s_lshl_b32 s3, s{SKQ}, 1
    v_xor_b32 v{t5}, s3, v{t5}
    v_and_b32 v{t6}, 3, v{LN}
    v_lshlrev_b32 v{t6}, 3, v{t6}
    v_lshl_add_u32 v{t6}, v{t4}, 8, v{t6}
    """)
    for l in range(8):
        a(f"v_xor_b32 v{t7}, {l}, v{t5}")
        a(f"v_lshl_add_u32 v{ARD+l}, v{t7}, 5, v{t6}")
    a(f"""
    s_mov_b32 s{SBO}, 0
    s_mov_b32 s{SWO}, 0
    s_mov_b32 s{SCNT}, 0
    s_waitcnt lgkmcnt(0)
    s_lshl_b32 s3, s{SKQ}, 20
    s_lshl_b32 s{STMP}, s{SNB}, 8
    s_add_u32 s3, s3, s{STMP}
    s_add_u32 s{SW}, s{SPTR}, s3
    s_addc_u32 s{SW+1}, s{SPTR+1}, 0
    s_sub_u32 s{SW+2}, 1048576, s{STMP}
    s_mov_b32 s{SW+3}, 0x20000
    ; O SRD
    s_mul_i32 s3, s{SBR}, 120
    s_mul_i32 s{STMP}, s{SB_}, 15
    s_add_u32 s3, s3, s{STMP}
    s_lshl_b32 s3, s3, 17
    s_lshl_b32 s{STMP}, s{SKQ}, 15
    s_add_u32 s3, s3, s{STMP}
    s_add_u32 s{SO}, s{SPTR+4}, s3
    s_addc_u32 s{SO+1}, s{SPTR+5}, 0
    s_sub_u32 s{SO+2}, {15*131072}, s{STMP}
    s_mov_b32 s{SO+3}, 0x20000
    """)
    def d_ops(k):
        return [f"s_add_u32 m0, s{SW2K}, {(k & 7)*8192}",
                {"i": f"buffer_load_dwordx4 v{WDM}, {sr(SW,4)}, s{SWO} offen{WP} lds", "new": True},
                f"buffer_load_dwordx4 v{WDM+1}, {sr(SW,4)}, s{SWO} offen offset:1024{WP} lds",
                f"s_add_u32 s{SWO}, s{SWO}, 32768"]
    def b_ops(k):
        r = [f"buffer_load_dwordx4 {ar(BF(k,q),4)}, v{BLD+q}, {sr(SO,4)}, s{SBO} offen offset:{(k&3)*1024}{OP}" for q in range(4)]
        if k & 3 == 3: r += [f"s_add_u32 s{SBO}, s{SBO}, 4096", f"s_cmp_ge_u32 s{SBO}, 32768", f"s_cselect_b32 s{SBO}, 0x40000000, s{SBO}"]
        return r
    def a_reads(k, l):
        return [f"ds_read_b64_tr_b16 {ar(AF(l)+aa*2,2)}, v{ARD+l} offset:{(k&7)*8192 + aa*4096}" for aa in range(2)]
    def plain(x): return x["i"] if isinstance(x, dict) else x
    for x in d_ops(0) + d_ops(1) + d_ops(2) + b_ops(0): a(plain(x))
    a(f"""
    s_lshl_b32 s3, s{SBR}, 3
    s_add_u32 s3, s3, s{SB_}
    s_lshl_b32 s3, s3, 2
    s_add_u32 s3, s3, s{SNB}
    s_lshl_b32 s{SL}, s3, 2
    s_mul_i32 s3, s3, {12*32768}
    s_add_u32 s3, s3, {EXOFF}
    s_add_u32 s{SE}, s{SPTR+4}, s3
    s_addc_u32 s{SE+1}, s{SPTR+5}, 0
    s_mov_b32 s{SE+2}, {12*32768}
    s_mov_b32 s{SE+3}, 0x20000
    s_lshl_b32 s3, s{SBR}, 10
    s_lshl_b32 s{STMP}, s{SNB}, 8
    s_add_u32 s3, s3, s{STMP}
    s_lshl_b32 s{STMP}, s{SKQ}, 6
    s_add_u32 s3, s3, s{STMP}
    s_sub_u32 s{SD+2}, {240*2048}, s3
    s_mul_i32 s{STMP}, s{SB_}, {240*2048}
    s_add_u32 s3, s3, s{STMP}
    s_add_u32 s{SD}, s{SPTR+2}, s3
    s_addc_u32 s{SD+1}, s{SPTR+3}, 0
    s_mov_b32 s{SD+3}, 0x20000
    """)
    for j in range(1, 4):
        a(f"s_xor_b32 s3, s{SKQ}, {j}\ns_mul_i32 s3, s3, {3*32768}\ns_add_u32 s{SEX+2*(j-1)}, s3, {(j-1)*32768}\ns_add_u32 s{SEX+2*(j-1)+1}, s{SEX+2*(j-1)}, 4096")
    for q in range(4): a(f"s_mov_b32 s{SOQ+q}, {q*32768}")
    if opt.get("k2_tlb", True):
        a(f"""
        s_lshl_b32 s3, s{SL}, 7
        s_add_u32 s3, s3, {FLAGOFF}
        s_add_u32 s48, s{SPTR+4}, s3
        s_addc_u32 s49, s{SPTR+5}, 0
        s_mov_b32 s50, 512
        s_mov_b32 s51, 0x20000
        v_mul_u32_u24 v{t2}, {3*32768 + 4096}, v{W}
        v_add_u32 v{t2}, 4096, v{t2}
        v_lshlrev_b32 v{t3}, 17, v{W}
        v_mov_b32 v{t4}, 64
        buffer_load_dword v{t5}, v{t2}, {sr(SE,4)}, 0 offen sc1
        buffer_load_dword v{t6}, v{t3}, {sr(SD,4)}, 0 offen sc1
        buffer_load_dword v{t7}, v{t4}, s[48:51], 0 offen sc1
        """)
    for i in range(128): a(f"v_mov_b32 v{i}, 0")
    for x in d_ops(3) + b_ops(1) + d_ops(4) + b_ops(2): a(plain(x))
    stamp()
    a("s_waitcnt vmcnt(18)\ns_barrier")
    for l in range(8):
        for r in a_reads(0, l): a(r)
    a("s_waitcnt lgkmcnt(0)")
    stamp()
    a(".p2align 6\nK2_LOOP:")
    for k in range(8):
        a("s_waitcnt vmcnt(12)" + ("\ns_barrier" if k & 1 else ""))
        m = [f"{MF} {vr(ACC(q,l),4)}, {ar(AF(l),4)}, {ar(BF(k,q),4)}, {vr(ACC(q,l),4)}" for l in range(8) for q in range(4)]
        G = Sched(m)
        for l in range(8):
            G.put(4*l + 3, "s_waitcnt lgkmcnt(8)")
            rd = a_reads(k+1, l)
            if l < 7:
                G.put(4*l + 4, rd[0]); G.put(4*l + 5, rd[1])
            else:
                G.tail(31, rd)
        vm = d_ops(k+5) + b_ops(k+3)
        pos = iter([2, 6, 10, 14, 18, 22])
        vm2 = []
        for x in vm:
            if plain(x).startswith("buffer"): vm2.append({"i": plain(x), "at": next(pos)})
            else: vm2.append(x)
        G.fill(vm2, 0, 31, maxper=1)
        assert not G.post
        if k == 7: G.fill([f"s_add_u32 s{SCNT}, s{SCNT}, 1", f"s_cmp_lt_u32 s{SCNT}, 4"], 28, 31, maxper=1)
        G.emit(a)
    a("s_cbranch_scc1 K2_LOOP")
    stamp()
    BF16X = opt.get("k2_bf16x", True); XP = opt.get("k2_x_pol", " sc1")
    def ex(l, q):
        j = l >> 1; idx = q*2 + (l & 1)
        return j, idx
    if BF16X:
        for j in range(1, 4):
            for c in range(4):
                r = 32*j + 8*c
                for p in range(4): a(f"v_cvt_pk_bf16_f32 v{r+p}, v{r+2*p}, v{r+2*p+1}")
                a(f"buffer_store_dwordx4 {vr(r,4)}, v{EXV}, {sr(SE,4)}, s{SEX+2*(j-1)} offen offset:{c*1024}{XP}")
    else:
        for l in range(2, 8):
            for q in range(4):
                j, idx = ex(l, q)
                a(f"buffer_store_dwordx4 {vr(ACC(q,l),4)}, v{EXV}, {sr(SE,4)}, s{SEX+2*(j-1)+idx//4} offen offset:{(idx%4)*1024}{XP}")
    a(f"s_mul_i32 s3, s{SKQ}, {3*32768}")
    for j in range(1, 4):
        a(f"s_add_u32 s{SEX+2*(j-1)}, s3, {(j-1)*32768}\ns_add_u32 s{SEX+2*(j-1)+1}, s{SEX+2*(j-1)}, 4096")
    a(f"""
    s_lshl_b32 s3, s{SL}, 7
    s_add_u32 s3, s3, {FLAGOFF}
    s_add_u32 s{SW}, s{SPTR+4}, s3
    s_addc_u32 s{SW+1}, s{SPTR+5}, 0
    s_mov_b32 s{SW+2}, 512
    v_xor_b32 v{t2}, s{SKQ}, v{LN}
    v_lshlrev_b32 v{t2}, 7, v{t2}
    v_lshl_add_u32 v{t2}, v{LN}, 2, v{t2}
    v_lshl_add_u32 v{t2}, v{W}, 13, v{t2}
    v_mov_b32 v{t3}, 1
    s_lshl_b32 s{STMP}, s{SKQ}, 7
    v_mov_b32 v{BLD}, 0
    s_waitcnt vmcnt(0) lgkmcnt(0)
    s_barrier
    buffer_store_dword v{t3}, v{t2}, {sr(SW,4)}, 0 offen sc1
    s_mov_b32 s{SCNT}, 0
    K2_POLL:
    buffer_load_dwordx4 {vr(t4,4)}, v{BLD}, {sr(SW,4)}, s{STMP} offen sc1
    s_add_u32 s{SCNT}, s{SCNT}, 1
    s_waitcnt vmcnt(0)
    v_and_b32 v{t4}, v{t5}, v{t6}
    v_and_b32 v{t4}, v{t4}, v{t7}
    s_nop 0
    v_readfirstlane_b32 s3, v{t4}
    s_cmp_gt_u32 s{SCNT}, 0x20000
    s_cbranch_scc1 K2_GO
    s_cmp_eq_u32 s3, 1
    s_cbranch_scc0 K2_POLL
    K2_GO:
    s_barrier
    """)
    stamp()
    if BF16X:
        for c in range(4):
            for j in range(1, 4):
                a(f"buffer_load_dwordx4 {vr(32*j+8*c,4)}, v{EXV}, {sr(SE,4)}, s{SEX+2*(j-1)} offen offset:{c*1024}{XP}")
        a(f"s_mov_b32 s3, 0xffff0000")
        for c in range(4):
            a(f"s_waitcnt vmcnt({3*(3-c)})")
            for j in range(1, 4):
                r = 32*j + 8*c
                for p in (3, 2, 1, 0):
                    a(f"v_and_b32 v{r+2*p+1}, s3, v{r+p}")
                    a(f"v_lshlrev_b32 v{r+2*p}, 16, v{r+p}")
                for p in range(4): a(f"v_pk_add_f32 {vr(8*c+2*p,2)}, {vr(8*c+2*p,2)}, {vr(r+2*p,2)}")
    else:
        for l in range(2, 8):
            for q in range(4):
                j, idx = ex(l, q)
                a(f"buffer_load_dwordx4 {vr(ACC(q,l),4)}, v{EXV}, {sr(SE,4)}, s{SEX+2*(j-1)+idx//4} offen offset:{(idx%4)*1024}{XP}")
        for j in range(1, 4):
            a(f"s_waitcnt vmcnt({8*(3-j)})")
            for i in range(16): a(f"v_pk_add_f32 {vr(2*i,2)}, {vr(2*i,2)}, {vr(32*j+2*i,2)}")
    for l in range(2):
        for q in range(4):
            r = ACC(q, l); d = 32 + (l*4+q)*2
            a(f"v_cvt_pk_bf16_f32 v{d}, v{r}, v{r+1}")
            a(f"v_cvt_pk_bf16_f32 v{d+1}, v{r+2}, v{r+3}")
            a(f"buffer_store_dwordx2 {vr(d,2)}, v{OUTV}, {sr(SD,4)}, s{SOQ+q} offen offset:{l*32}")
    if stamps:
        a("s_waitcnt vmcnt(0)")
        stamp()
        a(f"""
        s_add_u32 s{SO}, s{SPTR+4}, 0x4100000
        s_addc_u32 s{SO+1}, s{SPTR+5}, 0
        s_mov_b32 s{SO+2}, 1048576
        s_lshl_b32 s3, s2, 9
        s_lshr_b32 s{STMP}, s{SW2K}, 4
        s_add_u32 s3, s3, s{STMP}
        v_mov_b32 v{T0}, s3
        """)
        for i in range(nstamp[0]):
            a(f"v_mov_b32 v{T0+2}, s{STS+2*i}\nv_mov_b32 v{T0+3}, s{STS+2*i+1}")
            a(f"buffer_store_dwordx2 v[{T0+2}:{T0+3}], v{T0}, {sr(SO,4)}, 0 offen offset:{8*i}")
            a("s_nop 1")
    a("K2_END:\ns_endpgm")
```

```python
from asmlib import *
import struct

MF = "v_mfma_f32_16x16x32_bf16"
MF32 = "v_mfma_f32_32x32x16_bf16"
def QACC(qt, s, y): return 32*qt + (2*s+y)*4
def S(b, qt, kt=0): return 32*qt + 8*b + 4*kt
def P(b, qt): return 32*qt + 16 + 4*b
def NEGM(qt): return 32*qt + 24
def TMPQ(qt): return 32*qt + 28
def QF(qt, s): return 128 + (qt*4+s)*4
KRD, VRD, KDM, VDM, XDM, WDM, XRD, WRD, OST, QST, LN16 = 192, 196, 204, 208, 210, 214, 209, 217, 221, 222, 223
XRD2 = 216
Q2V = 224
T0 = 224
RCP = 210
def OA(qt, dt): return (qt*8+dt)*4
def LA(qt): return 128 + qt*4
KF, VF, XF = 144, 176, 208
WSET = [144, 176]
XSET = [208, 224]
ONES, ZERO = 240, 244
def Q2ACC(qt, s, y):
    return ar(OA(qt, 2*s+y), 4) if qt < 2 else vr(128 + (qt-2)*32 + (2*s+y)*4, 4)
SK, SV, SX, SW, SO, SQ = 4, 8, 12, 16, 20, 24
SPTR, SWS = 28, 38
SW4K, SR, SB_, SH, SBR = 40, 41, 42, 43, 44
SCNT, SKO, SVO, SM0K, SM0V, SDK, SDV, SA_, SBB, SN = 45, 46, 47, 48, 49, 50, 51, 52, 53, 54
SOO = 55
STMP, SWW, SBIAS = 59, 60, 61
SC = 62
SW1K = 100
SFO = 60
SROT, SKL, SVL, ST2, SEV = 101, 28, 29, 30, 31
SXO, SWO0, SWO1, SW8K = 46, 47, 48, 49
STS = 64
VRING, WREG, KRING = 0, 65536, 98304
STASH = 65536
WHALF = 8224
def xslot(u): return (u & 1) * 32768
def wslot(st, hd): return (((3 - st) & 3) * 2 + hd) * WHALF
def kslot(t): return KRING + ((3 - t) & 3) * 16384
def vslot(t): return VRING + (t & 3) * 16384

EXOFF, FLAGOFF = 0x2000000, 0x3A00000
WD2, OUTV, VLZ, VTAG = 205, 207, 218, 219
FLG = 124
SDMP = 96
CSCALE = struct.unpack("<I", struct.pack("<f", 1.4426950408889634 * 128 ** -0.5))[0]

def gen_k1(a, name, opt):
    stamps = opt.get("stamps", False)
    KVNT = " nt" if opt.get("kv_nt", True) else ""
    XWP = opt.get("xw_pol", " nt")
    nstamp = [0]
    fine = opt.get("fine", False)
    def fstamp():
        if fine:
            a(f"s_memtime {sr(STS + 2*nstamp[0], 2)}")
            nstamp[0] += 1
    def stamp():
        if fine:
            if nstamp[0] < 17: fstamp()
        elif stamps:
            a(f"s_memtime {sr(STS + 2*nstamp[0], 2)}")
            a(f"s_memrealtime {sr(STS + 2*nstamp[0] + 2, 2)}")
            nstamp[0] += 2
    a(f".globl {name}\n.p2align 8\n.type {name},@function\n{name}:")
    a(f"""
    s_cmp_ge_u32 s2, 256
    s_cbranch_scc1 K1_END
    s_bfe_u32 s{SBR}, s2, 0x10002
    s_mul_i32 s3, s{SBR}, 40
    s_load_dwordx8 {sr(SPTR,8)}, s[0:1], s3
    s_add_u32 s3, s3, 32
    s_load_dwordx2 {sr(SPTR+8,2)}, s[0:1], s3
    s_load_dwordx2 {sr(SWS,2)}, s[0:1], 96
    s_getpc_b64 {sr(SQ,2)}
    K1_PC:
    """)
    stamp()
    W, LN = T0, T0 + 1
    t2, t3, t4, t5, t6, t7, t8, t9 = range(T0 + 2, T0 + 10)
    ROTINIT = (f"s_lshr_b32 s{SROT}, s2, 3\ns_add_u32 s{SROT}, s{SROT}, s2\ns_and_b32 s{SROT}, s{SROT}, 15\ns_lshl_b32 s{SROT}, s{SROT}, 14"
               if opt.get("rot", False) else f"s_mov_b32 s{SROT}, 0")
    TD = T0 + 12
    a(f"""
    v_lshrrev_b32 v{W}, 6, v0
    v_and_b32 v{LN}, 63, v0
    v_readfirstlane_b32 s3, v{W}
    v_lshlrev_b32 v{LN16}, 4, v{LN}
    s_lshl_b32 s{SW4K}, s3, 12
    s_lshl_b32 s{SW1K}, s3, 10
    s_lshl_b32 s{SW8K}, s3, 13
    s_mul_i32 s{SWW}, s3, 2056
    s_cmp_eq_u32 s3, 3
    s_cselect_b32 s{SBIAS}, 0xf149f2ca, 0
    s_mov_b32 s{SR}, 0
    s_mov_b32 s{SC}, 0x{CSCALE:08x}
    s_mov_b32 s{SC+1}, 0x{CSCALE:08x}
    s_lshr_b32 s{SB_}, s2, 5
    s_and_b32 s{STMP}, s2, 3
    s_lshl_b32 s{SH}, s{STMP}, 2
    s_bfe_u32 s{STMP}, s2, 0x20003
    s_add_u32 s{SH}, s{SH}, s{STMP}
    s_lshl_b32 s{SH}, s{SH}, 1
    {ROTINIT}
    s_mov_b32 s{SOO}, 0
    s_mov_b32 s{SOO+1}, 131072
    s_mov_b32 s{SOO+2}, 262144
    s_mov_b32 s{SOO+3}, 393216
    """)
    if opt.get("code_pf", True):
        a(f"""
        s_mov_b32 s{SQ+2}, CODE_BYTES
        s_mov_b32 s{SQ+3}, 0x20000
        s_lshr_b32 s3, s2, 3
        s_lshl_b32 s3, s3, 10
        v_lshl_add_u32 v{t2}, v{W}, 15, v{LN16}
        """)
        a.emit_item((f"buffer_load_dwordx4 {vr(TD,4)}, v{t2}, {sr(SQ,4)}, s3 offen", "touch"))
    a(f"""
    v_lshrrev_b32 v{t2}, 3, v{LN}
    v_lshl_add_u32 v{t2}, v{W}, 6, v{t2}
    v_lshlrev_b32 v{t2}, 10, v{t2}
    v_lshrrev_b32 v{t3}, 4, v{LN}
    v_and_b32 v{t5}, 7, v{LN}
    v_xor_b32 v{t4}, v{t3}, v{t5}
    v_lshl_add_u32 v{XDM}, v{t4}, 4, v{t2}
    v_xor_b32 v{XDM+1}, 64, v{XDM}
    v_add_u32 v{XDM+1}, {7*1024}, v{XDM+1}
    v_add_u32 v{XDM+2}, {14*1024}, v{XDM}
    v_add_u32 v{XDM+3}, {14*1024}, v{XDM+1}
    """)
    a(f"""
    v_and_b32 v{t2}, 15, v{LN}
    v_lshlrev_b32 v{t4}, 2, v{t3}
    v_xor_b32 v{t4}, v{t4}, v{t2}
    v_lshlrev_b32 v{t4}, 4, v{t4}
    v_lshl_add_u32 v{t5}, v{W}, 3, v{t3}
    v_lshl_add_u32 v{WDM}, v{t5}, 13, v{t4}
    v_add_u32 v{WDM+1}, {4*8192-1024}, v{WDM}
    s_mov_b32 s{SXO}, 0
    s_mov_b32 s{SWO0}, 0
    s_mov_b32 s{SWO1}, 256
    s_waitcnt lgkmcnt(0)
    """)
    fstamp()
    a(f"""
    s_mul_i32 s3, s{SB_}, 245760
    s_add_u32 s{SX}, s{SPTR}, s3
    s_addc_u32 s{SX+1}, s{SPTR+1}, 0
    s_mov_b32 s{SX+2}, {opt.get('exp_rows', 240)*1024}
    s_mov_b32 s{SX+3}, 0x20000
    s_lshl_b32 s3, s{SH}, 8
    s_add_u32 s{SW}, s{SPTR+6}, s3
    s_addc_u32 s{SW+1}, s{SPTR+7}, 0
    s_sub_u32 s{SW+2}, 4194304, s3
    s_mov_b32 s{SW+3}, 0x20000
    """)
    def w_dma(st):
        r = []
        for hd, so in ((1, SWO1), (0, SWO0)):
            r += [f"s_add_u32 m0, s{SWW}, {WREG + wslot(st, hd)}"]
            r += [(f"buffer_load_dwordx4 v{WDM+i}, {sr(SW,4)}, s{so} offen offset:{1024*i}{XWP} lds", f"w{st}") for i in range(2)]
            r += [f"s_add_u32 s{so}, s{so}, 262144"]
        return r
    def x_dma(u):
        r = []
        for hf in range(2):
            r += [f"s_add_u32 m0, s{SW8K}, {xslot(u) + hf*4096}"]
            r += [(f"buffer_load_dwordx4 v{XDM+i}, {sr(SX,4)}, s{SXO} offen offset:{1024*i}{XWP} lds", f"x{u}") for i in range(4)]
            r += [f"s_add_u32 s{SXO}, s{SXO}, 32768" if hf == 0 else f"s_sub_u32 s{SXO}, s{SXO}, {32768-128}"]
        return r
    CONTIG = opt.get("contig", True)
    ROT = opt.get("rot", False)
    def rot_calc(dst, lin):
        if isinstance(lin, int):
            return [f"s_add_u32 s{dst}, s{SROT}, {lin}", f"s_and_b32 s{dst}, s{dst}, 0x3ffff"]
        return [f"s_add_u32 s{dst}, s{lin[0]}, s{SROT}", f"s_and_b32 s{dst}, s{dst}, 0x3ffff", f"s_and_b32 s{ST2}, s{lin[0]}, 0xfffc0000",
                f"s_or_b32 s{dst}, s{dst}, s{ST2}", f"s_add_u32 s{lin[0]}, s{lin[0]}, 16384"]
    def kv_dma(kind, tile):
        base = kslot(tile) if kind == "k" else vslot(tile)
        srd = SK if kind == "k" else SV
        if CONTIG:
            r = []
            for i in range(4):
                r += (rot_calc(3, tile*16384) if i == 0 else ["s_add_u32 s3, s3, 4096"])
                r += [f"s_add_u32 m0, s{SW1K}, {base + 4096*i}",
                      (f"buffer_load_dwordx4 v{KDM if kind == 'k' else VDM}, {sr(srd,4)}, s3 offen{KVNT} lds", f"{kind}{tile}")]
            return r
        r = [f"s_add_u32 m0, s{SW4K}, {base}", f"s_mov_b32 s3, {tile*16384}"]
        for i in range(4):
            vo = KDM + i if kind == "k" else VDM + (i & 1)
            r.append((f"buffer_load_dwordx4 v{vo}, {sr(srd,4)}, s3 offen offset:{1024*i}{KVNT} lds", f"{kind}{tile}"))
        return r
    for it in w_dma(0) + x_dma(0): a.emit_item(it)
    a(f"""
    s_lshl_b32 s3, s{SB_}, 5
    s_add_u32 s3, s3, s{SH}
    s_lshl_b32 s3, s3, 18
    s_add_u32 s{SK}, s{SPTR+2}, s3
    s_addc_u32 s{SK+1}, s{SPTR+3}, 0
    s_mov_b32 s{SK+2}, 524288
    s_mov_b32 s{SK+3}, 0x20000
    s_add_u32 s{SV}, s{SPTR+4}, s3
    s_addc_u32 s{SV+1}, s{SPTR+5}, 0
    s_mov_b32 s{SV+2}, 524288
    s_mov_b32 s{SV+3}, 0x20000
    s_mul_i32 s3, s{SBR}, 120
    s_mul_i32 s{STMP}, s{SB_}, 15
    s_add_u32 s3, s3, s{STMP}
    s_lshl_b32 s3, s3, 17
    s_lshl_b32 s{STMP}, s{SH}, 12
    s_add_u32 s3, s3, s{STMP}
    s_add_u32 s{SO}, s{SWS}, s3
    s_addc_u32 s{SO+1}, s{SWS+1}, 0
    s_sub_u32 s{SO+2}, {15*131072}, s{STMP}
    s_mov_b32 s{SO+3}, 0x20000
    s_and_b32 s3, s2, 3
    s_lshl_b32 s3, s3, 5
    s_lshr_b32 s{STMP}, s2, 3
    s_add_u32 s3, s3, s{STMP}
    s_lshl_b32 s3, s3, 15
    s_add_u32 s{SQ}, s{SPTR+8}, s3
    s_addc_u32 s{SQ+1}, s{SPTR+9}, 0
    s_mov_b32 s{SQ+2}, 32768
    s_mov_b32 s{SQ+3}, 0x20000
    """)
    if opt.get("tlb", True):
        a(f"v_lshlrev_b32 v{t6}, 17, v{W}")
        a.emit_item((f"buffer_load_dword v{TD+4}, v{t6}, {sr(SK,4)}, 0 offen nt", "touch"))
        a.emit_item((f"buffer_load_dword v{TD+5}, v{t6}, {sr(SV,4)}, 0 offen nt", "touch"))
        a(f"v_lshlrev_b32 v{t6}, 20, v{W}")
        a(f"v_add_u32 v{t6}, 0xfe000, v{t6}")
        a.emit_item((f"buffer_load_dword v{TD+7}, v{t6}, {sr(SW,4)}, 0 offen", "touch"))
    fstamp()
    if CONTIG:
        a(f"""
        v_lshl_add_u32 v{t6}, v{W}, 2, v{t3}
        v_lshlrev_b32 v{t5}, 8, v{t6}
        v_xor_b32 v{t7}, v{t6}, v{t2}
        v_lshl_add_u32 v{KDM}, v{t7}, 4, v{t5}
        v_and_b32 v{t6}, 7, v{t6}
        v_lshlrev_b32 v{t6}, 1, v{t6}
        v_xor_b32 v{t7}, v{t6}, v{t2}
        v_lshl_add_u32 v{VDM}, v{t7}, 4, v{t5}
        """)
    else:
        a(f"""
        v_lshlrev_b32 v{t5}, 8, v{t3}
        v_lshl_add_u32 v{t5}, v{W}, 12, v{t5}
        """)
        for i in range(4):
            a(f"v_add_u32 v{t6}, {4*i}, v{t3}")
            a(f"v_xor_b32 v{t7}, v{t6}, v{t2}")
            a(f"v_lshl_add_u32 v{KDM+i}, v{t7}, 4, v{t5}")
            if i < 2:
                a(f"v_lshlrev_b32 v{t6}, 1, v{t6}")
                a(f"v_xor_b32 v{t7}, v{t6}, v{t2}")
                a(f"v_lshl_add_u32 v{VDM+i}, v{t7}, 4, v{t5}")
    a(f"v_lshlrev_b32 v{t5}, 8, v{t2}\nv_add_u32 v{t5}, {kslot(0)}, v{t5}")
    for s in range(4):
        a(f"v_add_u32 v{t6}, {4*s}, v{t3}")
        a(f"v_xor_b32 v{t6}, v{t6}, v{t2}")
        a(f"v_lshl_add_u32 v{KRD+s}, v{t6}, 4, v{t5}")
    a(f"""
    v_lshrrev_b32 v{t4}, 1, v{t2}
    v_xor_b32 v{t5}, v{t4}, v{t3}
    v_lshlrev_b32 v{t5}, 4, v{t5}
    v_lshl_add_u32 v{t5}, v{t2}, 7, v{t5}
    v_lshl_add_u32 v{XRD}, v{W}, 13, v{t5}
    v_xor_b32 v{XRD2}, 64, v{XRD}
    v_lshrrev_b32 v{t4}, 2, v{t2}
    """)
    a(f"""
    v_and_b32 v{t5}, 3, v{LN}
    v_lshl_add_u32 v{t6}, v{t3}, 2, v{t4}
    v_and_b32 v{t7}, 7, v{t6}
    v_lshlrev_b32 v{t6}, 8, v{t6}
    v_lshl_add_u32 v{t6}, v{t5}, 3, v{t6}
    """)
    for dt in range(8):
        a(f"v_xor_b32 v{t8}, {dt}, v{t7}")
        a(f"v_lshl_add_u32 v{VRD+dt}, v{t8}, 5, v{t6}")
    a(f"""
    v_mul_u32_u24 v{t6}, 2056, v{t3}
    v_lshl_add_u32 v{t6}, v{t4}, 8, v{t6}
    v_lshl_add_u32 v{t6}, v{t5}, 4, v{t6}
    v_add_u32 v{t6}, {WREG}, v{t6}
    """)
    for s in range(4):
        a(f"v_xor_b32 v{t8}, {s}, v{t4}")
        a(f"v_lshl_add_u32 v{WRD+s}, v{t8}, 6, v{t6}")
    a(f"""
    v_lshl_add_u32 v{OST}, v{W}, 19, v{LN16}
    v_lshl_add_u32 v{LN16}, v{W}, 13, v{LN16}
    v_add_u32 v{QST}, {STASH}, v{LN16}
    v_cmp_eq_u32 vcc, 0, v{t5}
    v_mov_b32 v{t6}, 0x3f803f80
    s_nop 0
    v_cndmask_b32 v{t6}, 0, v{t6}, vcc
    """)
    for i in range(4):
        a(f"v_accvgpr_write_b32 a{ONES+i}, v{t6}")
        a(f"v_accvgpr_write_b32 a{ZERO+i}, 0")
    Z = ar(ZERO, 4)
    for i in range(12): a(f"{MF32} {vr(16*i,16)}, {Z}, {Z}, 0")
    for i in range(4): a(f"{MF32} {ar(16*i,16)}, {Z}, {Z}, 0")

    def w_reads(st, hd, wset):
        return [f"ds_read_b64_tr_b16 {ar(WSET[wset]+(2*s+y)*4+aa*2,2)}, v{WRD+s} offset:{wslot(st,hd) + aa*1024 + 8*y}"
                for s in range(4) for y in range(2) for aa in range(2)]
    def x_reads(st):
        return [f"ds_read_b128 {ar(XSET[st&1]+qt*4,4)}, v{XRD2 if st & 1 else XRD} offset:{xslot(st>>1) + qt*2048}" for qt in range(4)]
    def k_reads(half, dst=KF):
        return [f"ds_read_b128 {ar(dst+(kt*4+s)*4,4)}, v{KRD+s} offset:{(half*2+kt)*4096}" for s in range(4) for kt in range(2)]
    def v_reads(half, dst=VF):
        return [f"ds_read_b64_tr_b16 {ar(dst+dt*4+aa*2,2)}, v{VRD+dt} offset:{half*8192 + aa*4096}" for dt in range(8) for aa in range(2)]
    def qk_mfmas(sb, c0, src=KF, qmajor=False):
        idx = [(s, kt, qt) for s in range(4) for kt in range(2) for qt in range(4)]
        if qmajor: idx = [(s, kt, qt) for qt in range(4) for s in range(4) for kt in range(2)]
        m = []
        for s, kt, qt in idx:
            d = vr(S(sb, qt, kt), 4)
            c = d if s else ("0" if c0 else vr(NEGM(qt), 4))
            m.append(f"{MF} {d}, {ar(src+(kt*4+s)*4,4)}, {vr(QF(qt,s),4)}, {c}")
        return m
    def pv_mfmas(pb, src=VF, qmajor=False):
        def pv(dt, qt): d = ar(OA(qt, dt), 4); return f"{MF} {d}, {ar(src+dt*4,4)}, {vr(P(pb,qt),4)}, {d}"
        def ls(qt): d = ar(LA(qt), 4); return f"{MF} {d}, {ar(ONES,4)}, {vr(P(pb,qt),4)}, {d}"
        if qmajor: return [ls(qt) for qt in range(4)] + [pv(dt, qt) for qt in range(4) for dt in range(8)]
        return [pv(dt, qt) for dt in range(8) for qt in range(4)] + [ls(qt) for qt in range(4)]
    def sm_E(sb, e): r = S(sb, e // 8) + e % 8; return f"v_exp_f32 v{r}, v{r}"
    def sm_C(sb, p): r = S(sb, p // 4) + 2 * (p % 4); return f"v_cvt_pk_bf16_f32 v{P(sb, p//4) + p%4}, v{r}, v{r+1}"
    def sm_place(G1, G2, sb):
        n1 = len(G1.m)
        def put(g, it): (G1.put(g, it) if g < n1 else G2.put(g - n1, it))
        for i in range(32): put(2*i, sm_E(sb, i))
        for p in range(16): put(4*p+3, sm_C(sb, p))
    def sm_stream(sb):
        r = []
        for p in range(16):
            r += [sm_E(sb, 2*p), sm_E(sb, 2*p+1)]
            if p: r.append(sm_C(sb, p-1))
        r.append(sm_C(sb, 15))
        return r
    def dma_at(G, g, it):
        G.put(g, it); G.cap[g] = 0
    def spaced(dm, first, stride):
        out = []; nd = 0
        for it in dm:
            if isinstance(it, tuple): out.append({"i": it, "at": first + nd * stride}); nd += 1
            else: out.append(it)
        return out
    SKB, STM, SMK, SMV, SEF, SINC = SM0K, SM0V, SKL, SVL, ST2, SROT
    def piece(kind, skip=False):
        srd, so = (SK, SKO) if kind == "k" else (SV, SVO)
        if kind == "k": pre = [f"s_xor_b32 s{STM}, s{so}, 0xc000", f"s_and_b32 s{STM}, s{STM}, 0xf000", f"s_add_u32 m0, s{STM}, s{SKB}"]
        else: pre = [f"s_and_b32 s{STM}, s{so}, 0xf000", f"s_add_u32 m0, s{STM}, s{SW1K}"]
        if skip:
            pre += [f"s_bitcmp1_b32 s{SMK if kind == 'k' else SMV}, s{SCNT}", f"s_cselect_b32 s{SEF}, 0x40000000, s{so}", f"s_cselect_b32 s{SINC}, 0, 4096"]
        ins = f"buffer_load_dwordx4 v{KDM if kind == 'k' else VDM}, {sr(srd,4)}, s{SEF if skip else so} offen{KVNT} lds"
        post = [f"s_add_u32 s{so}, s{so}, " + (f"s{SINC}" if skip else "4096")]
        return pre, ins, post
    def piece_at(G, g, kind, skip=False):
        pre, ins, post = piece(kind, skip)
        for j, p in enumerate(pre):
            assert not G.S[g - len(pre) + j], (g, j)
            G.put(g - len(pre) + j, p)
        if not opt.get("no_dma"): dma_at(G, g, ins)
        G.put(g + 1, post[0])
    def piece_now(kind):
        pre, ins, post = piece(kind)
        return pre + ["s_nop 0", ins] + post
    def pkmul(r, s): return f"v_pk_mul_f32 {vr(r,2)}, {vr(r,2)}, {s}"

    for it in w_dma(1): a.emit_item(it)
    fstamp()
    a(f"s_waitcnt vmcnt({a.vm_need(['w0','x0'])})")
    a("s_barrier")
    for r in x_reads(0) + w_reads(0, 1, 0): a(r)
    a(f"s_mov_b32 s{SCNT}, 0")
    stamp()
    def half_step(k, st, hd, nxt, wait, dm, extra=None, order=None):
        a(wait)
        if k > 24: fstamp()
        idx = [(s, y, qt) for s in range(4) for y in range(2) for qt in range(4)]
        if order: idx = [(s, y, qt) for qt in order for s in range(4) for y in range(2)]
        m = []
        for s, y, qt in idx:
            d = vr(QACC(qt, s, y), 4) if hd == 0 else Q2ACC(qt, s, y)
            m.append(f"{MF} {d}, {ar(WSET[k&1]+(2*s+y)*4,4)}, {ar(XSET[st&1]+qt*4,4)}, {d}")
        G = Sched(m)
        if nxt is None: rd = k_reads(0)
        else: rd = (x_reads(nxt[0]) if nxt[1] == 1 else []) + w_reads(nxt[0], nxt[1], (k+1) & 1)
        G.fill(rd, 0, 26, maxper=1)
        nd = sum(isinstance(x, tuple) for x in dm)
        G.fill(spaced(dm, 1 if nd > 8 else 2, {16: 2, 8: 4}.get(nd, 7)), 0, 32, maxper=(2 if nd > 8 else 1))
        post = G.post; G.post = []
        left = None
        if extra:
            G.fill(extra[0], extra[1], 32)
            left = G.post; G.post = []
        G.post = post
        G.emit(a)
        return left
    NPF = opt.get("l2pf", 0)
    SPF = 50
    PFS = opt.get("l2pf_stride", 16384)
    def pf_dma():
        r = []
        for i in range(NPF):
            kind = "k" if (i & 1) == 0 or not opt.get("l2pf_v") else "v"
            r += [(f"buffer_load_dwordx4 {vr(Q2V + 4*(i%4),4)}, v{KDM if kind == 'k' else VDM}, {sr(SK if kind == 'k' else SV,4)}, s{SPF} offen{opt.get('l2pf_pol','')}", "pf")]
            if kind == "v" or not opt.get("l2pf_v"): r += [f"s_add_u32 s{SPF}, s{SPF}, {PFS}"]
        return r
    a(f"s_mov_b32 s{SPF}, {opt.get('l2pf_first', 4)*16384}")
    half_step(0, 0, 1, (0, 0), "s_waitcnt lgkmcnt(0)", w_dma(2) + x_dma(1) + w_dma(3))
    for it in pf_dma(): a.emit_item(it)
    a(f"s_waitcnt vmcnt({16+NPF}) lgkmcnt(0)")
    a("s_branch K1_QENTRY")
    a(".p2align 6\nK1_QLOOP:")
    for st in range(4):
        half_step(2*st, st, 1, (st, 0), "s_waitcnt lgkmcnt(0)", x_dma((st+3)//2) if st & 1 else pf_dma())
        dm = w_dma(st + 4)
        if st == 3: dm += [f"s_add_u32 s{SCNT}, s{SCNT}, 1", f"s_cmp_lt_u32 s{SCNT}, 3"]
        n = 16 + (NPF if st & 1 else 2*NPF)
        half_step(2*st+1, st, 0, (st+1, 1), f"s_waitcnt vmcnt({n}) lgkmcnt(0)\n" + ("K1_QENTRY:\n" if st == 0 else "") + "s_barrier", dm)
    a("s_cbranch_scc1 K1_QLOOP")
    stamp()
    a.vm = ["w13"]*4 + ["pf"]*NPF + ["w14"]*4 + ["x7"]*8 + ["w15"]*4
    finv = []
    for qt in (2, 3):
        for s in range(4):
            b = 128 + (qt-2)*32 + s*8
            finv += [f"v_mul_f32 v{b+i}, s{SC}, v{b+i}" for i in range(8)]
            finv += [f"v_cvt_pk_bf16_f32 v{Q2V+((qt-2)*4+s)*4+p}, v{b+2*p}, v{b+2*p+1}" for p in range(4)]
    def bar(tag): return f"s_waitcnt vmcnt({a.vm_need(tag)}) lgkmcnt(0)\ns_barrier"
    L0 = "s_waitcnt lgkmcnt(0)"
    half_step(24, 12, 1, (12, 0), L0, kv_dma("k", 0))
    half_step(25, 12, 0, (13, 1), bar("w13"), [])
    half_step(26, 13, 1, (13, 0), L0, kv_dma("k", 1))
    half_step(27, 13, 0, (14, 1), bar(["w14", "x7"]), [])
    half_step(28, 14, 1, (15, 1), bar("w15"), kv_dma("v", 0))
    left = half_step(29, 15, 1, (14, 0), L0, kv_dma("k", 2), extra=(finv, 20), order=(2, 3, 0, 1))
    left = half_step(30, 14, 0, (15, 0), L0, kv_dma("v", 1), extra=(left, 0))
    fina = []
    for qt in (0, 1):
        for s in range(4):
            tb = 128 + ((qt*4+s) % 4) * 16
            src = OA(qt, 2*s)
            fina += [f"v_accvgpr_read_b32 v{tb+i}, a{src+i}" for i in range(8)]
            fina += [f"v_mul_f32 v{tb+i}, s{SC}, v{tb+i}" for i in range(8)]
            fina += [f"v_cvt_pk_bf16_f32 v{tb+8+p}, v{tb+2*p}, v{tb+2*p+1}" for p in range(4)]
            fina.append(f"ds_write_b128 v{QST}, {vr(tb+8,4)} offset:{(qt*4+s)*1024}")
    left = half_step(31, 15, 0, None, bar("k0"), kv_dma("v", 2), extra=(left + fina, 0), order=(0, 1, 2, 3))
    stamp()
    i = 0
    while i < len(left):
        x = left[i]
        if x.startswith("v_mul_f32") and i + 1 < len(left) and left[i+1].startswith("v_mul_f32"):
            r = int(x.split()[1][1:-1])
            if r % 2 == 0:
                a(pkmul(r, sr(SC, 2))); i += 2; continue
        a(x); i += 1
    for qt in range(4):
        for s in range(4):
            b = QACC(qt, s, 0)
            for i in range(4): a(pkmul(b+2*i, sr(SC, 2)))
        if qt == 0: a("s_waitcnt lgkmcnt(0)")
        k3 = kv_dma("k", 3)
        cut = [j for j, x in enumerate(k3) if isinstance(x, tuple)]
        for it in k3[(cut[qt-1]+1 if qt else 0):cut[qt]+1]: a.emit_item(it)
        for s in range(4):
            b = QACC(qt, s, 0)
            for p in range(4): a(f"v_cvt_pk_bf16_f32 v{QF(qt,s)+p}, v{b+2*p}, v{b+2*p+1}")
    a(f"""
    s_mov_b32 s{SKO}, {4*16384}
    s_mov_b32 s{SVO}, {3*16384}
    s_mov_b32 s{SEV}, 15
    s_mov_b32 s{SFO}, 0
    s_add_u32 s{SKB}, s{SW1K}, {KRING}
    s_mov_b32 s{SMK}, {opt.get('mk0', 0)}
    s_mov_b32 s{SMV}, {opt.get('mv0', 0)}
    """)
    if opt.get("trip_ts"):
        a("s_mov_b32 s34, 0\ns_mov_b32 s32, 0\nv_mbcnt_lo_u32_b32 v205, -1, 0\nv_mbcnt_hi_u32_b32 v205, -1, v205\nv_mov_b32 v207, 0")
    u0, u1, u2, u3 = 210, 211, 212, 213
    a(f"""
    s_load_dwordx2 s[32:33], s[0:1], 88
    s_memrealtime s[34:35]
    s_and_b32 s3, s2, 3
    s_lshl_b32 s3, s3, 20
    s_bfe_u32 s{STMP}, s2, 0x20003
    s_lshl_b32 s{STMP}, s{STMP}, 8
    s_add_u32 s3, s3, s{STMP}
    s_add_u32 s{SW}, s{SPTR+8}, s3
    s_addc_u32 s{SW+1}, s{SPTR+9}, 0
    s_sub_u32 s{SW+2}, 1048576, s{STMP}
    v_mbcnt_lo_u32_b32 v{u0}, -1, 0
    v_mbcnt_hi_u32_b32 v{u0}, -1, v{u0}
    v_lshlrev_b32 v{VLZ}, 20, v{u0}
    v_lshrrev_b32 v{u1}, 4, v{u0}
    v_and_b32 v{u0}, 15, v{u0}
    v_lshlrev_b32 v{u2}, 1, v{u1}
    v_xor_b32 v{u2}, v{u2}, v{u0}
    s_and_b32 s3, s2, 3
    s_lshl_b32 s3, s3, 2
    v_xor_b32 v{u2}, s3, v{u2}
    v_lshlrev_b32 v{u2}, 4, v{u2}
    v_lshl_add_u32 v{u2}, v{u1}, 10, v{u2}
    s_lshl_b32 s3, s{SW1K}, 3
    v_add_u32 v{WD2}, s3, v{u2}
    v_xor_b32 v{WD2+1}, 128, v{WD2}
    v_add_u32 v{WD2+1}, 3072, v{WD2+1}
    v_lshlrev_b32 v{u2}, 11, v{u0}
    v_lshl_add_u32 v{u2}, v{u1}, 3, v{u2}
    s_lshl_b32 s3, s{SW1K}, 7
    v_add_u32 v{OUTV}, s3, v{u2}
    s_waitcnt lgkmcnt(0)
    s_mov_b32 s{SX}, s32
    s_mov_b32 s{SX+1}, s33
    s_mov_b32 s{SX+2}, 4
    s_or_b32 s3, s34, 1
    v_mov_b32 v{u2}, s3
    v_mov_b32 v{u3}, 0
    """)
    a.emit_item((f"buffer_atomic_cmpswap {vr(u2,2)}, v{VLZ}, {sr(SX,4)}, s{SW1K} offen sc1", "nonce"))
    pro_vm = list(a.vm)
    a("K1_PRO:")
    stamp()
    a("s_waitcnt lgkmcnt(0)")
    zm = [f"{MF32} {ar(16*i,16)}, {Z}, {Z}, 0" for i in range(9)]
    G = Sched(qk_mfmas(0, True, KF, True) + zm + qk_mfmas(1, False, VF, True))
    G.fill(k_reads(1, VF), 0, 16, maxper=1)
    G.tail(40, "s_waitcnt lgkmcnt(0)")
    mx = []
    for qt in range(4):
        s0 = S(0, qt); m_ = TMPQ(qt); t_ = m_ + 1; ng = NEGM(qt)
        bias = f"s{SBIAS}" if qt == 3 else "0"
        ch = [f"v_max3_f32 v{m_}, v{s0}, v{s0+1}, v{s0+2}", f"v_max3_f32 v{t_}, v{s0+3}, v{s0+4}, v{s0+5}",
              f"v_max3_f32 v{m_}, v{m_}, v{s0+6}, v{s0+7}", f"v_max_f32 v{m_}, v{m_}, v{t_}", f"v_mov_b32 v{t_}, v{m_}",
              {"i": f"v_permlane16_swap_b32 v{m_}, v{t_}", "new": True}, f"v_max_f32 v{m_}, v{m_}, v{t_}", f"v_mov_b32 v{t_}, v{m_}",
              {"i": f"v_permlane32_swap_b32 v{m_}, v{t_}", "new": True}, f"v_max_f32 v{m_}, v{m_}, v{t_}",
              f"v_sub_f32 v{ng}, {bias}, v{m_}"] + [f"v_mov_b32 v{ng+i}, v{ng}" for i in range(1, 4)] + \
             [f"v_add_f32 v{s0+i}, v{s0+i}, v{ng}" for i in range(8)]
        ch[0] = {"i": ch[0], "at": 8*qt + 11}
        mx += ch
    g = G.fill(mx, 0, len(G.m))
    assert not G.post, len(G.post)
    for qt in range(4):
        gg = [i for i, v in enumerate(G.V) if f"v_mov_b32 v{NEGM(qt)+3}, v{NEGM(qt)}" in v][0]
        assert gg < 41 + 8*qt - 1, (qt, gg)
    G.fill(sm_stream(0), g, len(G.m))
    tailv = G.post; G.post = []
    G.emit(a)
    a.vm = list(pro_vm)
    for s in range(4): a(f"v_subrev_u32 v{KRD+s}, 16384, v{KRD+s}")
    a(f"s_waitcnt vmcnt({min(a.vm_need(['k1','v0']), 16)}) lgkmcnt(0)")
    a("s_barrier")
    kr = k_reads(0)
    for i in range(2):
        pre, ins, post = piece("k")
        for p in pre: a(p)
        for r in kr[4*i:4*i+4]: a(r)
        a(ins)
        for p in post: a(p)
    a(f"""
    s_mov_b32 s{SA_}, {kslot(1) - KRING}
    s_mov_b32 s{SBB}, 0
    s_mov_b32 s{SCNT}, 0
    """)
    for it in tailv: a(it)
    a("s_waitcnt lgkmcnt(0)")
    stamp()
    a(".p2align 6")
    a("K1_LOOP:")
    G1 = Sched(qk_mfmas(0, False)); G2 = Sched(pv_mfmas(0)); G3 = Sched(qk_mfmas(1, False)); G4 = Sched(pv_mfmas(1))
    sm_place(G1, G2, 1); sm_place(G3, G4, 0)
    piece_at(G4, 9, "k"); piece_at(G4, 25, "k"); piece_at(G1, 9, "k", True); piece_at(G1, 25, "k")
    piece_at(G2, 9, "v"); piece_at(G2, 25, "v"); piece_at(G3, 9, "v", True); piece_at(G3, 25, "v")
    G1.fill(v_reads(0), 0, 30); G1.put(31, "s_waitcnt lgkmcnt(0)")
    G2.fill(k_reads(1), 0, 30, maxper=1)
    G2.put(35, "s_waitcnt lgkmcnt(0)")
    G3.fill(v_reads(1), 0, 30)
    sal = [f"s_sub_u32 s{SN}, s{SA_}, 16384", f"s_and_b32 s{SN}, s{SN}, 0xffff", f"s_sub_u32 s{SDK}, s{SN}, s{SA_}", f"s_mov_b32 s{SA_}, s{SN}",
           f"s_add_u32 s{SN}, s{SBB}, 16384", f"s_and_b32 s{SN}, s{SN}, 0xffff", f"s_sub_u32 s{SDV}, s{SN}, s{SBB}", f"s_mov_b32 s{SBB}, s{SN}",
           f"s_add_u32 s{SCNT}, s{SCNT}, 1"]
    G2.fill(sal, 12, 22, maxper=1)
    G2.fill([f"v_add_u32 v{KRD+s}, s{SDK}, v{KRD+s}" for s in range(4)], 32, 36)
    G3.put(31, f"s_waitcnt vmcnt({opt.get('xwait', 16)}) lgkmcnt(0)" if not opt.get("no_dma") else "s_waitcnt lgkmcnt(0)")
    G3.tail(31, "s_barrier")
    G4.fill(k_reads(0), 0, 30, maxper=1)
    G4.fill([f"v_add_u32 v{VRD+dt}, s{SDV}, v{VRD+dt}" for dt in range(8)], 21, 36)
    G4.put(34, f"s_cmp_lt_u32 s{SCNT}, s{SEV}")
    G4.put(35, "s_waitcnt lgkmcnt(0)")
    G4.tail(35, "s_cbranch_scc1 K1_LOOP")
    if opt.get("trip_ts"):
        G4.put(1, "s_memrealtime s[32:33]")
        G1.tail(8, ["s_add_u32 s34, s34, 1", "v_cmp_eq_u32 vcc, s34, v205", "v_mov_b32 v206, s32", "s_nop 0", "v_cndmask_b32 v207, v207, v206, vcc"])
    for G in (G1, G2, G3, G4):
        assert not G.post
        G.emit(a)
    a(f"s_cmp_lt_u32 s{SCNT}, 15\ns_cbranch_scc1 K1_FLUSH")
    stamp()
    a(f"buffer_load_dwordx4 {vr(FLG,4)}, v{VLZ}, {sr(SX,4)}, s{SFO} offen sc1")
    for r in v_reads(0): a(r)
    sm = sm_stream(1)
    for x in sm[:9]: a(x)
    a("s_waitcnt lgkmcnt(0)")
    G = Sched(pv_mfmas(0))
    G.fill(v_reads(1, XF), 0, 36, maxper=2)
    nk = 2 + bin(opt.get('mk0', 0)).count('1'); nv = 4 + bin(opt.get('mv0', 0)).count('1')
    order = ["k", "k"]
    while len(order) < nk + nv:
        if order.count("v") < nv: order.append("v")
        if order.count("k") < nk: order.append("k")
    for j in range(3): piece_at(G, 10 + 10*j, order[j])
    G.fill(sm[9:], 0, 36)
    G.emit(a)
    a("s_waitcnt lgkmcnt(0)")
    OSTNT = opt.get("o_store", " sc1"); OSTNT2 = opt.get("o_store2", OSTNT)
    def oepi(qt, final):
        r = []
        for s in range(4):
            tb = [0, 8, 32, 40][s]
            pb = [64, 68, 72, 76][s]
            if not final and qt >= 2: pb = Q2V + ((qt-2)*4+s)*4
            if final: tb = 224 + 8*(s & 1); pb = 240 + 4*s
            src = OA(qt, 2*s)
            r += [f"v_accvgpr_read_b32 v{tb+i}, a{src+i}" for i in range(8)]
            r += [f"v_pk_mul_f32 {vr(tb+2*i,2)}, {vr(tb+2*i,2)}, {vr(RCP+2*qt,2)}" for i in range(4)]
            r += [f"v_cvt_pk_bf16_f32 v{pb+p}, v{tb+2*p}, v{tb+2*p+1}" for p in range(4)]
            if final: r.append(f"buffer_store_dwordx4 {vr(pb,4)}, v{OST}, {sr(SO,4)}, s{SOO+qt} offen offset:{s*1024}{OSTNT2}")
            elif qt < 2: r.append(f"ds_write_b128 v{QST}, {vr(pb,4)} offset:{(qt*4+s)*1024}")
        return r
    G = Sched(pv_mfmas(1, XF, True))
    for j in range(3): piece_at(G, 3 + 5*j, order[3+j])
    lread = [f"v_accvgpr_read_b32 v{RCP+2*qt}, a{LA(qt)}" for qt in range(4)]
    st1 = [f"v_subrev_u32 v{VRD+dt}, {3*16384}, v{VRD+dt}" for dt in range(8)]
    st1 += [{"i": lread[0], "at": 9}] + lread[1:]
    masks = ["s[32:33]", "s[34:35]", "s[36:37]", "vcc"]
    st1 += [f"v_cmp_nge_f32 {masks[qt]}, s{STMP}, v{RCP+2*qt}" for qt in range(4)]
    G.put(3, f"s_mov_b32 s{STMP}, 0x{opt.get('thresh', 0x53800000):08x}")
    g = G.fill(st1, 0, 16)
    assert not G.post
    G.put(16, "s_or_b64 s[32:33], s[32:33], s[34:35]")
    G.put(17, "s_or_b64 s[36:37], s[36:37], vcc")
    G.put(18, "s_or_b64 s[32:33], s[32:33], s[36:37]")
    G.tail(18, "s_cbranch_scc1 K1_SLOW")
    rest_m = [f"ds_read_b128 {vr(QF(j//4, j%4),4)}, v{QST} offset:{j*1024}" for j in range(8)]
    rcps = [f"v_rcp_f32 v{RCP+2*qt}, v{RCP+2*qt}" for qt in range(4)] + [f"v_mov_b32 v{RCP+2*qt+1}, v{RCP+2*qt}" for qt in range(4)]
    rest_v = [f"v_mov_b32 v{QF(2,0)+i}, v{Q2V+i}" for i in range(32)]
    G.fill(rcps, g + 1, 36)
    G.fill(rest_m, 19, 36)
    G.fill(rest_v, 19, 36)
    G.emit(a)
    a("K1_SLOW_RET:")
    stamp()
    a("s_waitcnt lgkmcnt(0)")
    F0 = opt.get('flush_at', 12)
    def dump_stamps(rnd, vt):
        if not stamps: return
        a("s_waitcnt lgkmcnt(0)")
        a(f"""
        s_add_u32 s{SDMP}, s{SWS}, 0x4000000
        s_addc_u32 s{SDMP+1}, s{SWS+1}, 0
        s_mov_b32 s{SDMP+2}, 0x100000
        s_mov_b32 s{SDMP+3}, 0x20000
        s_mul_i32 s3, s2, 3
        s_add_u32 s3, s3, {rnd}
        s_lshl_b32 s3, s3, 10
        s_lshr_b32 s{STMP}, s{SW4K}, 4
        s_add_u32 s3, s3, s{STMP}
        v_mov_b32 v{vt}, s3
        """)
        for i in range(0, nstamp[0], 2):
            for j in range(4): a(f"v_mov_b32 v{vt+4+j}, s{STS+2*i+j}")
            a(f"buffer_store_dwordx4 {vr(vt+4,4)}, v{vt}, {sr(SDMP,4)}, 0 offen offset:{8*i}")
            a("s_nop 1")
    a(f"s_cmp_eq_u32 s{SR}, 1\ns_cbranch_scc1 K1_FINAL")
    rem = order[6:]
    ep = [x for qt in range(4) for x in oepi(qt, False)]
    step = len(ep) // max(len(rem), 1)
    for j, x in enumerate(ep):
        if j % step == 0 and j // step < len(rem):
            for y in piece_now(rem[j // step]): a(y)
        a(x)
    n0 = nstamp[0]
    dump_stamps(0, 96)
    a(f"""
    buffer_load_dword v{VTAG}, v{VLZ}, {sr(SX,4)}, 0 offen sc1
    s_add_u32 s{SX}, s{SWS}, {FLAGOFF}
    s_addc_u32 s{SX+1}, s{SWS+1}, 0
    s_mov_b32 s{SX+2}, 0x40000
    s_lshl_b32 s3, s{SBR}, 3
    s_add_u32 s3, s3, s{SB_}
    s_lshl_b32 s3, s3, 2
    s_and_b32 s{STMP}, s2, 3
    s_add_u32 s3, s3, s{STMP}
    s_lshl_b32 s3, s3, 9
    s_lshr_b32 s{STMP}, s{SW1K}, 3
    s_add_u32 s{SFO}, s3, s{STMP}
    s_mov_b32 s{SR}, 1
    s_mov_b32 s{SEV}, {F0}
    s_mov_b32 s{SMK}, {opt.get('mk1', 0)}
    s_mov_b32 s{SMV}, {opt.get('mv1', 0)}
    s_waitcnt vmcnt(7)
    s_branch K1_PRO
    K1_FLUSH:
    s_add_u32 s{SEV}, s{SEV}, 1
    s_cmp_eq_u32 s{SCNT}, {F0+1}
    s_cbranch_scc1 K1_FLUSH2
    s_cmp_eq_u32 s{SCNT}, {F0+2}
    s_cbranch_scc1 K1_FLUSH3
    """)
    for j in range(8): a(f"ds_read_b128 {ar(XF+4*j,4)}, v{QST} offset:{j*1024}")
    for j in range(8): a(f"buffer_store_dwordx4 {vr(Q2V+4*j,4)}, v{OST}, {sr(SO,4)}, s{SOO+2+j//4} offen offset:{(j%4)*1024}{OSTNT}")
    a("s_branch K1_LOOP\nK1_FLUSH2:")
    for j in range(8): a(f"buffer_store_dwordx4 {ar(XF+4*j,4)}, v{OST}, {sr(SO,4)}, s{SOO+j//4} offen offset:{(j%4)*1024}{OSTNT}")
    a(f"v_add_u32 v{OST}, 4096, v{OST}\ns_branch K1_LOOP\nK1_FLUSH3:\ns_mov_b32 s{STMP}, 4096\ns_mov_b32 s{SEV}, 15")
    a(f"""
    s_bfe_u32 s3, s2, 0x20003
    s_lshl_b32 s3, s3, 2
    s_add_u32 s3, s3, s{SFO}
    s_waitcnt vmcnt(8)
    buffer_store_dword v{VTAG}, v{VLZ}, {sr(SX,4)}, s3 offen sc1
    """)
    if opt.get("wo_pf", True):
        for j in range(8): a(f"buffer_load_dwordx4 a[248:251], v{LN16}, {sr(SQ,4)}, {'0' if j < 4 else 's%d' % STMP} offen offset:{(j%4)*1024}")
    a(f"""
    s_branch K1_LOOP
    K1_FINAL:
    """)
    import optail
    optail.gen(a, opt, globals(), locals())
    KA, VA, LNv = RCP, RCP + 1, RCP + 2
    SU, SU2, SE_ = 32, 33, 34
    def VFR(dt): return S(1, dt >> 1) + 4 * (dt & 1)
    def kload():
        for kt in range(2):
            for s_ in range(4):
                a(f"buffer_load_dwordx4 {ar(VF+(kt*4+s_)*4,4)}, v{KA}, {sr(SK,4)}, s{SU2 if kt else SU} offen offset:{s_*64}")
    a(f"""
    K1_SLOW:
    s_waitcnt vmcnt(0)
    s_nop 7
    s_nop 7
    v_mbcnt_lo_u32_b32 v{LNv}, -1, 0
    v_mbcnt_hi_u32_b32 v{LNv}, -1, v{LNv}
    v_and_b32 v{VA}, 15, v{LNv}
    v_lshrrev_b32 v{LNv}, 4, v{LNv}
    v_lshlrev_b32 v{KA}, 8, v{VA}
    v_lshl_add_u32 v{KA}, v{LNv}, 4, v{KA}
    v_lshlrev_b32 v{VA}, 1, v{VA}
    v_lshl_add_u32 v{VA}, v{LNv}, 10, v{VA}
    s_lshl_b32 s{SU}, s{SR}, 18
    s_add_u32 s{SE_}, s{SU}, 262144
    """)
    for qt in range(4): a(f"v_mov_b32 v{TMPQ(qt)}, 0xff800000")
    a(f"K1_SL1:\ns_add_u32 s{SU2}, s{SU}, 4096")
    kload()
    a("s_waitcnt vmcnt(0)")
    for m in qk_mfmas(0, True, VF): a(m)
    a("s_nop 7")
    for qt in range(4):
        for i in range(0, 8, 2): a(f"v_max3_f32 v{TMPQ(qt)}, v{TMPQ(qt)}, v{S(0,qt)+i}, v{S(0,qt)+i+1}")
    a(f"s_add_u32 s{SU}, s{SU}, 8192\ns_cmp_lt_u32 s{SU}, s{SE_}\ns_cbranch_scc1 K1_SL1")
    for qt in range(4):
        m_ = TMPQ(qt); t_ = m_ + 1; ng = NEGM(qt)
        bias = f"s{SBIAS}" if qt == 3 else "0"
        for x in [f"v_mov_b32 v{t_}, v{m_}", f"v_permlane16_swap_b32 v{m_}, v{t_}", f"v_max_f32 v{m_}, v{m_}, v{t_}", f"v_mov_b32 v{t_}, v{m_}",
                  f"v_permlane32_swap_b32 v{m_}, v{t_}", f"v_max_f32 v{m_}, v{m_}, v{t_}", f"v_sub_f32 v{ng}, {bias}, v{m_}"] + \
                 [f"v_mov_b32 v{ng+i}, v{ng}" for i in range(1, 4)]: a(x)
    for x in zm: a(x)
    a(f"s_lshl_b32 s{SU}, s{SR}, 18\nK1_SL2:\ns_add_u32 s{SU2}, s{SU}, 4096")
    kload()
    for aa in range(2):
        def HT(dt, jp): n = dt*2 + jp; return P(1, n >> 2) + (n & 3)
        for dt in range(8):
            for j in range(4):
                d = HT(dt, j >> 1) if j & 1 else VFR(dt) + aa*2 + (j >> 1)
                a(f"buffer_load_ushort v{d}, v{VA}, {sr(SV,4)}, s{SU2 if aa else SU} offen offset:{j*256+dt*32}")
        a("s_waitcnt vmcnt(0)")
        for dt in range(8):
            for jp in range(2):
                d = VFR(dt) + aa*2 + jp
                a(f"v_lshl_or_b32 v{d}, v{HT(dt,jp)}, 16, v{d}")
    for m in qk_mfmas(0, False, VF): a(m)
    a("s_nop 7")
    for x in sm_stream(0): a(x)
    a("s_nop 1")
    for dt in range(8):
        for qt in range(4):
            d = ar(OA(qt, dt), 4)
            a(f"{MF} {d}, {vr(VFR(dt),4)}, {vr(P(0,qt),4)}, {d}")
    for qt in range(4):
        d = ar(LA(qt), 4)
        a(f"{MF} {d}, {ar(ONES,4)}, {vr(P(0,qt),4)}, {d}")
    a(f"s_add_u32 s{SU}, s{SU}, 8192\ns_cmp_lt_u32 s{SU}, s{SE_}\ns_cbranch_scc1 K1_SL2")
    a("s_nop 7")
    for x in lread + rcps + rest_m + rest_v: a(x)
    a(f"""
    s_branch K1_SLOW_RET
    K1_END:
    s_endpgm
    """)

def desc(name, vgpr=512, acc=256, sgpr=102):
    return f""".amdhsa_kernel {name}
  .amdhsa_next_free_vgpr {vgpr}
  .amdhsa_next_free_sgpr {sgpr}
  .amdhsa_accum_offset {acc}
  .amdhsa_group_segment_fixed_size 0
  .amdhsa_kernarg_size 104
  .amdhsa_user_sgpr_count 2
  .amdhsa_user_sgpr_kernarg_segment_ptr 1
  .amdhsa_system_sgpr_workgroup_id_x 1
.end_amdhsa_kernel
"""
```

```python
from asmlib import *
def gen(a, opt, G_, L_):
    g = dict(G_); g.update(L_)
    for k in ("MF MF32 SK SV SX SW SO SQ SWS SBR SB_ STMP SW1K SW4K SFO SCNT SOO VRD OST LN16 WD2 OUTV VLZ VTAG FLG KF ZERO EXOFF "
              "stamp dump_stamps nstamp oepi Z n0 SKO SVO SA_ SBB SN SDK SDV SEV").split():
        globals()[k] = g[k]
    def ACC(q, l): return (l*4+q)*4
    def AF(l): return KF + l*4
    def BF(k, q): return 128 + ((k & 3)*4+q)*4
    SRO, SE, SD = SK, SV, SQ
    SBO = SOO
    SB4 = [46, 47, 50, 51]
    SWO, SW2K, SMSK, SF2, SXF = 52, 53, 54, 28, 29
    SEX = [32, 33, 34]
    FL2 = 192
    BLD = 220
    T = 210
    HUGE = "0x40000000"
    a(f"""
    s_load_dwordx2 s[36:37], s[0:1], 80
    s_bfe_u32 s3, s2, 0x20003
    s_lshl_b32 s{STMP}, s3, 13
    s_sub_u32 s{SRO}, s{SO}, s{STMP}
    s_subb_u32 s{SRO+1}, s{SO+1}, 0
    s_add_u32 s{SRO+2}, s{SO+2}, s{STMP}
    s_lshl_b32 s3, s3, 2
    s_add_u32 s{SF2}, s3, s{SFO}
    s_lshl_b32 s{SW2K}, s{SW1K}, 1
    s_mov_b32 s{SWO}, 0
    s_mov_b32 s{SMSK}, 0
    s_mov_b32 s{SCNT}, 0
    v_subrev_u32 v{BLD}, 4096, v{OST}
    s_waitcnt vmcnt(0)
    """)
    for q in range(4): a(f"s_mov_b32 s{SB4[q]}, {q*131072}")
    def check(f, tmp):
        return [f"v_xor_b32 v{f}, v{f}, v{VTAG}", f"v_xor_b32 v{f+1}, v{f+1}, v{VTAG}", f"v_xor_b32 v{f+2}, v{f+2}, v{VTAG}",
                f"v_xor_b32 v{f+3}, v{f+3}, v{VTAG}", f"v_or3_b32 v{f}, v{f}, v{f+1}, v{f+2}", f"v_or_b32 v{f}, v{f}, v{f+3}",
                f"v_readfirstlane_b32 s{tmp}, v{f}"]
    a(f"s_mov_b32 s{SEV}, 0\nK1_CHK1:")
    for x in check(FLG, 3): a(x)
    a(f"s_cmp_eq_u32 s3, 0\ns_cbranch_scc0 K1_SPIN1\nK1_CHK1_OK:\ns_barrier")
    def d_ops(k):
        r = [f"s_add_u32 m0, s{SW2K}, {(k & 7)*8192}",
             f"buffer_load_dwordx4 v{WD2}, {sr(SW,4)}, s{SWO} offen lds",
             f"buffer_load_dwordx4 v{WD2+1}, {sr(SW,4)}, s{SWO} offen offset:1024 lds",
             f"s_add_u32 s{SWO}, s{SWO}, {32768 if k & 3 != 3 else 32768*5}"]
        if k & 7 == 7: r += [f"s_cmp_eq_u32 s{SWO}, {32*32768}", f"s_cselect_b32 s{SWO}, {4*32768}, s{SWO}"]
        return r
    def b_ops(k):
        r = [f"buffer_load_dwordx4 {vr(BF(k,q),4)}, v{BLD}, {sr(SRO,4)}, s{SB4[q]} offen offset:{(k&3)*1024} sc1" for q in range(4)]
        if k & 3 == 3:
            r += [f"s_add_u32 s{SB4[0]}, s{SB4[0]}, 8192"]
            if k & 7 == 7: r += [f"s_cmp_eq_u32 s{SB4[0]}, 32768", f"s_cselect_b32 s{SB4[0]}, 4096, s{SB4[0]}",
                                 f"s_cmp_ge_u32 s{SB4[0]}, 32768", f"s_cselect_b32 s{SB4[0]}, {HUGE}, s{SB4[0]}"]
            r += [f"s_add_u32 s{SB4[q]}, s{SB4[0]}, {q*131072}" for q in range(1, 4)]
        return r
    def a_reads(k, l):
        return [f"ds_read_b64_tr_b16 {ar(AF(l)+aa*2,2)}, v{VRD+l} offset:{(k&7)*8192 + aa*4096}" for aa in range(2)]
    for x in d_ops(0) + d_ops(1) + d_ops(2) + b_ops(0): a(x)
    more = d_ops(3) + b_ops(1) + d_ops(4) + b_ops(2)
    zm = [f"{MF32} {vr(16*i,16)}, {Z}, {Z}, 0" for i in range(8)]
    e0 = oepi(0, True)
    st0 = [x for x in e0 if x.startswith("buffer")]
    e0 = [x for x in e0 if not x.startswith("buffer")]
    for j, x in enumerate(e0):
        a(x)
        if j % 4 == 3 and more: a(more.pop(0))
    for x in more: a(x)
    for x in st0: a(x)
    rest = [x for qt in range(1, 4) for x in oepi(qt, True)]
    for x in rest:
        if x.startswith("v_accvgpr") and x.split()[1] in ("v224,", "v232,") and zm: a(zm.pop(0))
        a(x)
    for x in zm: a(x)
    a(f"""
    s_waitcnt lgkmcnt(0)
    s_lshl_b32 s3, s{SBR}, 3
    s_add_u32 s3, s3, s{SB_}
    s_lshl_b32 s3, s3, 2
    s_bfe_u32 s{STMP}, s2, 0x20003
    s_add_u32 s3, s3, s{STMP}
    s_lshl_b32 s{SXF}, s3, 11
    s_add_u32 s{SXF}, s{SXF}, 32768
    s_lshr_b32 s35, s{SW1K}, 3
    s_add_u32 s{SXF}, s{SXF}, s35
    s_mul_i32 s3, s3, {12*32768}
    s_add_u32 s3, s3, {EXOFF}
    s_add_u32 s{SE}, s{SWS}, s3
    s_addc_u32 s{SE+1}, s{SWS+1}, 0
    s_mov_b32 s{SE+2}, {12*32768}
    s_lshl_b32 s3, s{SBR}, 10
    s_lshl_b32 s{STMP}, s{STMP}, 8
    s_add_u32 s3, s3, s{STMP}
    s_and_b32 s35, s2, 3
    s_lshl_b32 s{STMP}, s35, 6
    s_add_u32 s3, s3, s{STMP}
    s_sub_u32 s{SD+2}, {240*2048}, s3
    s_mul_i32 s{STMP}, s{SB_}, {240*2048}
    s_add_u32 s3, s3, s{STMP}
    s_add_u32 s{SD}, s36, s3
    s_addc_u32 s{SD+1}, s37, 0
    """)
    for j in range(1, 4):
        a(f"s_xor_b32 s3, s35, {j}\ns_mul_i32 s3, s3, {3*32768}\ns_add_u32 s{SEX[j-1]}, s3, {(j-1)*32768}")
    nstamp[0] = n0
    dump_stamps(1, 224)
    nstamp[0] = 0
    stamp()
    nst = 16 + (len(range(0, n0, 2)) if g["stamps"] else 0)
    a(f"s_waitcnt vmcnt({18 + nst})\ns_barrier")
    for l in range(8):
        for r in a_reads(0, l): a(r)
    stamp()
    a("s_waitcnt lgkmcnt(0)")
    a(".p2align 6\nK1_OLOOP:")
    for k in range(8):
        a("s_waitcnt vmcnt(12)" + ("\ns_barrier" if k & 1 else ""))
        m = [f"{MF} {vr(ACC(q,l),4)}, {ar(AF(l),4)}, {vr(BF(k,q),4)}, {vr(ACC(q,l),4)}" for l in range(8) for q in range(4)]
        G = Sched(m)
        for l in range(8):
            G.put(4*l + 3, "s_waitcnt lgkmcnt(8)")
            rd = a_reads(k+1, l)
            if l < 7:
                G.put(4*l + 4, rd[0]); G.put(4*l + 5, rd[1])
            else:
                G.tail(31, rd)
        vm = d_ops(k+5) + b_ops(k+3)
        pos = iter([2, 6, 10, 14, 18, 21])
        vm2 = [{"i": x, "at": next(pos)} if x.startswith("buffer") else x for x in vm]
        G.fill(vm2, 0, 32, maxper=1)
        if k == 0: G.put(1, f"buffer_load_dwordx4 {vr(FL2,4)}, v{VLZ}, {sr(SX,4)}, s{SFO} offen offset:16 sc1")
        if k == 3:
            G.put(1, f"buffer_store_dword v{VTAG}, v{VLZ}, {sr(SX,4)}, s{SF2} offen offset:16 sc1")
            G.fill(check(FL2, 3), 22, 31, maxper=1)
            G.tail(31, [f"s_and_b32 s3, s3, s{SMSK}", "s_cbranch_scc1 K1_SPIN2", "K1_CHK2_OK:"])
        if k == 7: G.post += [f"s_mov_b32 s{SMSK}, -1", f"s_add_u32 s{SCNT}, s{SCNT}, 1", f"s_cmp_lt_u32 s{SCNT}, 4"]
        G.emit(a)
    a("s_cbranch_scc1 K1_OLOOP")
    stamp()
    for j in range(1, 4):
        for c in range(4):
            r = 32*j + 8*c
            for p in range(4): a(f"v_cvt_pk_bf16_f32 v{r+p}, v{r+2*p}, v{r+2*p+1}")
            a(f"buffer_store_dwordx4 {vr(r,4)}, v{LN16}, {sr(SE,4)}, s{SEX[j-1]} offen offset:{c*1024} sc1")
    a(f"s_mul_i32 s3, s35, {3*32768}")
    for j in range(1, 4): a(f"s_add_u32 s{SEX[j-1]}, s3, {(j-1)*32768}")
    for j in range(4): a(f"s_xor_b32 s3, s35, {j}\ns_lshl_b32 s3, s3, 9\ns_add_u32 s{SB4[j]}, s3, s{SXF}")
    for q in range(4): a(f"s_mov_b32 s{SOO+q}, {q*32768}")
    a(f"s_mov_b32 s{SEV}, 0\ns_waitcnt vmcnt(0) lgkmcnt(0)")
    for j in range(1, 4): a(f"buffer_store_dword v{VTAG}, v{VLZ}, {sr(SX,4)}, s{SB4[j]} offen offset:{4*j} sc1")
    a(f"""
    K1_POLL3:
    buffer_load_dwordx4 {vr(FL2,4)}, v{VLZ}, {sr(SX,4)}, s{SB4[0]} offen sc1
    s_add_u32 s{SEV}, s{SEV}, 1
    s_waitcnt vmcnt(0)
    v_mov_b32 v{FL2}, v{VTAG}
    """)
    for x in check(FL2, 3): a(x)
    a(f"""
    s_cmp_gt_u32 s{SEV}, 0x20000
    s_cbranch_scc1 K1_GO3
    s_cmp_eq_u32 s3, 0
    s_cbranch_scc0 K1_POLL3
    K1_GO3:
    """)
    stamp()
    for c in range(4):
        for j in range(1, 4):
            a(f"buffer_load_dwordx4 {vr(32*j+8*c,4)}, v{LN16}, {sr(SE,4)}, s{SEX[j-1]} offen offset:{c*1024} sc1")
    a(f"s_mov_b32 s3, 0xffff0000")
    for c in range(4):
        a(f"s_waitcnt vmcnt({3*(3-c) + 2*c})")
        for j in range(1, 4):
            r = 32*j + 8*c
            for p in (3, 2, 1, 0):
                a(f"v_and_b32 v{r+2*p+1}, s3, v{r+p}")
                a(f"v_lshlrev_b32 v{r+2*p}, 16, v{r+p}")
            for p in range(4): a(f"v_pk_add_f32 {vr(8*c+2*p,2)}, {vr(8*c+2*p,2)}, {vr(r+2*p,2)}")
        for h in range(2):
            r = 8*c + 4*h; idx = r // 4; l, q = idx // 4, idx % 4
            a(f"v_cvt_pk_bf16_f32 v{r}, v{r}, v{r+1}")
            a(f"v_cvt_pk_bf16_f32 v{r+1}, v{r+2}, v{r+3}")
            a(f"buffer_store_dwordx2 {vr(r,2)}, v{OUTV}, {sr(SD,4)}, s{SOO+q} offen offset:{l*32}")
    if g["stamps"]:
        a("s_waitcnt vmcnt(0)")
        stamp()
        dump_stamps(2, 224)
    a("s_endpgm")
    a(f"""
    K1_SPIN1:
    s_add_u32 s{SEV}, s{SEV}, 1
    s_cmp_gt_u32 s{SEV}, 0x20000
    s_cbranch_scc1 K1_CHK1_OK
    buffer_load_dwordx4 {vr(FLG,4)}, v{VLZ}, {sr(SX,4)}, s{SFO} offen sc1
    s_waitcnt vmcnt(0)
    s_branch K1_CHK1
    K1_SPIN2:
    s_add_u32 s{SEV}, s{SEV}, 1
    s_cmp_gt_u32 s{SEV}, 0x20000
    s_cbranch_scc1 K1_CHK2_OK
    buffer_load_dwordx4 {vr(FL2,4)}, v{VLZ}, {sr(SX,4)}, s{SFO} offen offset:16 sc1
    s_waitcnt vmcnt(0)
    """)
    for x in check(FL2, 3): a(x)
    a("s_cmp_eq_u32 s3, 0\ns_cbranch_scc0 K1_SPIN2\ns_branch K1_CHK2_OK")
```

```python
from asmlib import *
import struct

MF = "v_mfma_f32_16x16x32_bf16"
MF32 = "v_mfma_f32_32x32x16_bf16"
def QACC(qt, s, y): return 32*qt + (2*s+y)*4
def S(b, qt, kt=0): return 32*qt + 8*b + 4*kt
def P(b, qt): return 32*qt + 16 + 4*b
def NEGM(qt): return 32*qt + 24
def TMPQ(qt): return 32*qt + 28
def QF(qt, s): return 128 + (qt*4+s)*4
KRD, VRD, KDM, VDM, XDM, WDM, XRD, WRD, OST, QST, LN16 = 192, 196, 204, 208, 210, 214, 209, 217, 221, 222, 223
XRD2 = 216
Q2V = 224
T0 = 224
RCP = 210
def OA(qt, dt): return (qt*8+dt)*4
def LA(qt): return 128 + qt*4
KF, VF, XF = 144, 176, 208
WSET = [144, 176]
XSET = [208, 224]
ONES, ZERO = 240, 244
def Q2ACC(qt, s, y):
    return ar(OA(qt, 2*s+y), 4) if qt < 2 else vr(128 + (qt-2)*32 + (2*s+y)*4, 4)
SK, SV, SX, SW, SO, SQ = 4, 8, 12, 16, 20, 24
SPTR, SWS = 28, 38
SW4K, SR, SB_, SH, SBR = 40, 41, 42, 43, 44
SCNT, SKO, SVO, SM0K, SM0V, SDK, SDV, SA_, SBB, SN = 45, 46, 47, 48, 49, 50, 51, 52, 53, 54
SOO = 55
STMP, SWW, SBIAS = 59, 60, 61
SC = 62
SW1K = 100
SVB = 43
SFO = 60
SROT, SKL, SVL, ST2, SEV = 101, 28, 29, 30, 31
SXO, SWO0, SWO1, SW8K = 46, 47, 48, 49
STS = 64
VRING, WREG, KRING = 0, 65536, 98304
STASH = 65536
WHALF = 8224
def xslot(u): return (u & 1) * 32768
def wslot(st, hd): return (((3 - st) & 3) * 2 + hd) * WHALF
def kslot(t): return KRING + ((3 - t) & 3) * 16384
def vslot(t): return VRING + (t & 3) * 16384

EXOFF, FLAGOFF = 0x2000000, 0x3A00000
WD2, OUTV, VLZ, VTAG = 205, 207, 218, 219
FLG = 124
SDMP = 96
CSCALE = struct.unpack("<I", struct.pack("<f", 1.4426950408889634 * 128 ** -0.5))[0]

def gen_k1(a, name, opt):
    stamps = opt.get("stamps", False)
    KVNT = " nt" if opt.get("kv_nt", True) else ""
    XWP = opt.get("xw_pol", " nt")
    nstamp = [0]
    fine = opt.get("fine", False)
    def fstamp():
        if fine:
            a(f"s_memtime {sr(STS + 2*nstamp[0], 2)}")
            nstamp[0] += 1
    def stamp():
        if fine:
            if nstamp[0] < 17: fstamp()
        elif stamps:
            a(f"s_memtime {sr(STS + 2*nstamp[0], 2)}")
            a(f"s_memrealtime {sr(STS + 2*nstamp[0] + 2, 2)}")
            nstamp[0] += 2
    a(f".globl {name}\n.p2align 8\n.type {name},@function\n{name}:")
    a(f"""
    s_cmp_ge_u32 s2, 256
    s_cbranch_scc1 K1_END
    s_bfe_u32 s{SBR}, s2, 0x10002
    s_mul_i32 s3, s{SBR}, 40
    s_load_dwordx8 {sr(SPTR,8)}, s[0:1], s3
    s_add_u32 s3, s3, 32
    s_load_dwordx2 {sr(SPTR+8,2)}, s[0:1], s3
    s_load_dwordx2 {sr(SWS,2)}, s[0:1], 96
    s_getpc_b64 {sr(SQ,2)}
    K1_PC:
    """)
    stamp()
    W, LN = T0, T0 + 1
    t2, t3, t4, t5, t6, t7, t8, t9 = range(T0 + 2, T0 + 10)
    ROTINIT = (f"s_lshr_b32 s{SROT}, s2, 3\ns_add_u32 s{SROT}, s{SROT}, s2\ns_and_b32 s{SROT}, s{SROT}, 15\ns_lshl_b32 s{SROT}, s{SROT}, 14"
               if opt.get("rot", False) else f"s_mov_b32 s{SROT}, 0")
    TD = T0 + 12
    a(f"""
    v_lshrrev_b32 v{W}, 6, v0
    v_and_b32 v{LN}, 63, v0
    v_readfirstlane_b32 s3, v{W}
    v_lshlrev_b32 v{LN16}, 4, v{LN}
    s_lshl_b32 s{SW4K}, s3, 12
    s_lshl_b32 s{SW1K}, s3, 10
    s_lshl_b32 s{SW8K}, s3, 13
    s_mul_i32 s{SWW}, s3, 2056
    s_cmp_eq_u32 s3, 3
    s_cselect_b32 s{SBIAS}, 0xf149f2ca, 0
    s_mov_b32 s{SR}, 0
    s_mov_b32 s{SC}, 0x{CSCALE:08x}
    s_mov_b32 s{SC+1}, 0x{CSCALE:08x}
    s_lshr_b32 s{SB_}, s2, 5
    s_and_b32 s{STMP}, s2, 3
    s_lshl_b32 s{SH}, s{STMP}, 2
    s_bfe_u32 s{STMP}, s2, 0x20003
    s_add_u32 s{SH}, s{SH}, s{STMP}
    s_lshl_b32 s{SH}, s{SH}, 1
    {ROTINIT}
    s_mov_b32 s{SOO}, 0
    s_mov_b32 s{SOO+1}, 131072
    s_mov_b32 s{SOO+2}, 262144
    s_mov_b32 s{SOO+3}, 393216
    """)
    if opt.get("code_pf", True):
        a(f"""
        s_mov_b32 s{SQ+2}, CODE_BYTES
        s_mov_b32 s{SQ+3}, 0x20000
        s_lshr_b32 s3, s2, 3
        s_lshl_b32 s3, s3, 10
        v_lshl_add_u32 v{t2}, v{W}, 15, v{LN16}
        """)
        a.emit_item((f"buffer_load_dwordx4 {vr(TD,4)}, v{t2}, {sr(SQ,4)}, s3 offen", "touch"))
    a(f"""
    v_lshrrev_b32 v{t2}, 3, v{LN}
    v_lshl_add_u32 v{t2}, v{W}, 6, v{t2}
    v_lshlrev_b32 v{t2}, 10, v{t2}
    v_lshrrev_b32 v{t3}, 4, v{LN}
    v_and_b32 v{t5}, 7, v{LN}
    v_xor_b32 v{t4}, v{t3}, v{t5}
    v_lshl_add_u32 v{XDM}, v{t4}, 4, v{t2}
    v_xor_b32 v{XDM+1}, 64, v{XDM}
    v_add_u32 v{XDM+1}, {7*1024}, v{XDM+1}
    v_add_u32 v{XDM+2}, {14*1024}, v{XDM}
    v_add_u32 v{XDM+3}, {14*1024}, v{XDM+1}
    """)
    a(f"""
    v_and_b32 v{t2}, 15, v{LN}
    v_lshlrev_b32 v{t4}, 2, v{t3}
    v_xor_b32 v{t4}, v{t4}, v{t2}
    v_lshlrev_b32 v{t4}, 4, v{t4}
    v_lshl_add_u32 v{t5}, v{W}, 3, v{t3}
    v_lshl_add_u32 v{WDM}, v{t5}, 13, v{t4}
    v_add_u32 v{WDM+1}, {4*8192-1024}, v{WDM}
    s_mov_b32 s{SXO}, 0
    s_mov_b32 s{SWO0}, 0
    s_mov_b32 s{SWO1}, 256
    s_waitcnt lgkmcnt(0)
    """)
    fstamp()
    a(f"""
    s_mul_i32 s3, s{SB_}, 245760
    s_add_u32 s{SX}, s{SPTR}, s3
    s_addc_u32 s{SX+1}, s{SPTR+1}, 0
    s_mov_b32 s{SX+2}, {opt.get('exp_rows', 240)*1024}
    s_mov_b32 s{SX+3}, 0x20000
    s_lshl_b32 s3, s{SH}, 8
    s_add_u32 s{SW}, s{SPTR+6}, s3
    s_addc_u32 s{SW+1}, s{SPTR+7}, 0
    s_sub_u32 s{SW+2}, 4194304, s3
    s_mov_b32 s{SW+3}, 0x20000
    """)
    def w_dma(st):
        r = []
        for hd, so in ((1, SWO1), (0, SWO0)):
            r += [f"s_add_u32 m0, s{SWW}, {WREG + wslot(st, hd)}"]
            r += [(f"buffer_load_dwordx4 v{WDM+i}, {sr(SW,4)}, s{so} offen offset:{1024*i}{XWP} lds", f"w{st}") for i in range(2)]
            r += [f"s_add_u32 s{so}, s{so}, 262144"]
        return r
    def x_dma(u):
        r = []
        for hf in range(2):
            r += [f"s_add_u32 m0, s{SW8K}, {xslot(u) + hf*4096}"]
            r += [(f"buffer_load_dwordx4 v{XDM+i}, {sr(SX,4)}, s{SXO} offen offset:{1024*i}{XWP} lds", f"x{u}") for i in range(4)]
            r += [f"s_add_u32 s{SXO}, s{SXO}, 32768" if hf == 0 else f"s_sub_u32 s{SXO}, s{SXO}, {32768-128}"]
        return r
    CONTIG = opt.get("contig", True)
    ROT = opt.get("rot", False)
    def rot_calc(dst, lin):
        if isinstance(lin, int):
            return [f"s_add_u32 s{dst}, s{SROT}, {lin}", f"s_and_b32 s{dst}, s{dst}, 0x3ffff"]
        return [f"s_add_u32 s{dst}, s{lin[0]}, s{SROT}", f"s_and_b32 s{dst}, s{dst}, 0x3ffff", f"s_and_b32 s{ST2}, s{lin[0]}, 0xfffc0000",
                f"s_or_b32 s{dst}, s{dst}, s{ST2}", f"s_add_u32 s{lin[0]}, s{lin[0]}, 16384"]
    def kv_dma(kind, tile):
        base = kslot(tile) if kind == "k" else vslot(tile)
        srd = SK if kind == "k" else SV
        if CONTIG:
            r = []
            for i in range(4):
                r += (rot_calc(3, tile*16384) if i == 0 else ["s_add_u32 s3, s3, 4096"])
                r += [f"s_add_u32 m0, s{SW1K}, {base + 4096*i}",
                      (f"buffer_load_dwordx4 v{KDM if kind == 'k' else VDM}, {sr(srd,4)}, s3 offen{KVNT} lds", f"{kind}{tile}")]
            return r
        r = [f"s_add_u32 m0, s{SW4K}, {base}", f"s_mov_b32 s3, {tile*16384}"]
        for i in range(4):
            vo = KDM + i if kind == "k" else VDM + (i & 1)
            r.append((f"buffer_load_dwordx4 v{vo}, {sr(srd,4)}, s3 offen offset:{1024*i}{KVNT} lds", f"{kind}{tile}"))
        return r
    for it in w_dma(0) + x_dma(0): a.emit_item(it)
    a(f"""
    s_lshl_b32 s3, s{SB_}, 5
    s_add_u32 s3, s3, s{SH}
    s_lshl_b32 s3, s3, 18
    s_add_u32 s{SK}, s{SPTR+2}, s3
    s_addc_u32 s{SK+1}, s{SPTR+3}, 0
    s_mov_b32 s{SK+2}, 524288
    s_mov_b32 s{SK+3}, 0x20000
    s_add_u32 s{SV}, s{SPTR+4}, s3
    s_addc_u32 s{SV+1}, s{SPTR+5}, 0
    s_mov_b32 s{SV+2}, 524288
    s_mov_b32 s{SV+3}, 0x20000
    s_mul_i32 s3, s{SBR}, 120
    s_mul_i32 s{STMP}, s{SB_}, 15
    s_add_u32 s3, s3, s{STMP}
    s_lshl_b32 s3, s3, 17
    s_lshl_b32 s{STMP}, s{SH}, 12
    s_add_u32 s3, s3, s{STMP}
    s_add_u32 s{SO}, s{SWS}, s3
    s_addc_u32 s{SO+1}, s{SWS+1}, 0
    s_sub_u32 s{SO+2}, {15*131072}, s{STMP}
    s_mov_b32 s{SO+3}, 0x20000
    s_and_b32 s3, s2, 3
    s_lshl_b32 s3, s3, 5
    s_lshr_b32 s{STMP}, s2, 3
    s_add_u32 s3, s3, s{STMP}
    s_lshl_b32 s3, s3, 15
    s_add_u32 s{SQ}, s{SPTR+8}, s3
    s_addc_u32 s{SQ+1}, s{SPTR+9}, 0
    s_mov_b32 s{SQ+2}, 32768
    s_mov_b32 s{SQ+3}, 0x20000
    """)
    if opt.get("tlb", True):
        a(f"v_lshlrev_b32 v{t6}, 17, v{W}")
        a.emit_item((f"buffer_load_dword v{TD+4}, v{t6}, {sr(SK,4)}, 0 offen nt", "touch"))
        a.emit_item((f"buffer_load_dword v{TD+5}, v{t6}, {sr(SV,4)}, 0 offen nt", "touch"))
        a(f"v_lshlrev_b32 v{t6}, 20, v{W}")
        a(f"v_add_u32 v{t6}, 0xfe000, v{t6}")
        a.emit_item((f"buffer_load_dword v{TD+7}, v{t6}, {sr(SW,4)}, 0 offen", "touch"))
    fstamp()
    if CONTIG:
        a(f"""
        v_lshl_add_u32 v{t6}, v{W}, 2, v{t3}
        v_lshlrev_b32 v{t5}, 8, v{t6}
        v_xor_b32 v{t7}, v{t6}, v{t2}
        v_lshl_add_u32 v{KDM}, v{t7}, 4, v{t5}
        v_and_b32 v{t6}, 7, v{t6}
        v_lshlrev_b32 v{t6}, 1, v{t6}
        v_xor_b32 v{t7}, v{t6}, v{t2}
        v_lshl_add_u32 v{VDM}, v{t7}, 4, v{t5}
        """)
    else:
        a(f"""
        v_lshlrev_b32 v{t5}, 8, v{t3}
        v_lshl_add_u32 v{t5}, v{W}, 12, v{t5}
        """)
        for i in range(4):
            a(f"v_add_u32 v{t6}, {4*i}, v{t3}")
            a(f"v_xor_b32 v{t7}, v{t6}, v{t2}")
            a(f"v_lshl_add_u32 v{KDM+i}, v{t7}, 4, v{t5}")
            if i < 2:
                a(f"v_lshlrev_b32 v{t6}, 1, v{t6}")
                a(f"v_xor_b32 v{t7}, v{t6}, v{t2}")
                a(f"v_lshl_add_u32 v{VDM+i}, v{t7}, 4, v{t5}")
    a(f"v_lshlrev_b32 v{t5}, 8, v{t2}\nv_add_u32 v{t5}, {kslot(0)}, v{t5}")
    for s in range(4):
        a(f"v_add_u32 v{t6}, {4*s}, v{t3}")
        a(f"v_xor_b32 v{t6}, v{t6}, v{t2}")
        a(f"v_lshl_add_u32 v{KRD+s}, v{t6}, 4, v{t5}")
    a(f"""
    v_lshrrev_b32 v{t4}, 1, v{t2}
    v_xor_b32 v{t5}, v{t4}, v{t3}
    v_lshlrev_b32 v{t5}, 4, v{t5}
    v_lshl_add_u32 v{t5}, v{t2}, 7, v{t5}
    v_lshl_add_u32 v{XRD}, v{W}, 13, v{t5}
    v_xor_b32 v{XRD2}, 64, v{XRD}
    v_lshrrev_b32 v{t4}, 2, v{t2}
    """)
    a(f"""
    v_and_b32 v{t5}, 3, v{LN}
    v_lshl_add_u32 v{t6}, v{t3}, 2, v{t4}
    v_and_b32 v{t7}, 7, v{t6}
    v_lshlrev_b32 v{t6}, 8, v{t6}
    v_lshl_add_u32 v{t6}, v{t5}, 3, v{t6}
    """)
    for dt in range(8):
        a(f"v_xor_b32 v{t8}, {dt}, v{t7}")
        a(f"v_lshl_add_u32 v{VRD+dt}, v{t8}, 5, v{t6}")
    a(f"""
    v_mul_u32_u24 v{t6}, 2056, v{t3}
    v_lshl_add_u32 v{t6}, v{t4}, 8, v{t6}
    v_lshl_add_u32 v{t6}, v{t5}, 4, v{t6}
    v_add_u32 v{t6}, {WREG}, v{t6}
    """)
    for s in range(4):
        a(f"v_xor_b32 v{t8}, {s}, v{t4}")
        a(f"v_lshl_add_u32 v{WRD+s}, v{t8}, 6, v{t6}")
    a(f"""
    v_lshl_add_u32 v{OST}, v{W}, 19, v{LN16}
    v_lshl_add_u32 v{LN16}, v{W}, 13, v{LN16}
    v_add_u32 v{QST}, {STASH}, v{LN16}
    v_cmp_eq_u32 vcc, 0, v{t5}
    v_mov_b32 v{t6}, 0x3f803f80
    s_nop 0
    v_cndmask_b32 v{t6}, 0, v{t6}, vcc
    """)
    for i in range(4):
        a(f"v_accvgpr_write_b32 a{ONES+i}, v{t6}")
        a(f"v_accvgpr_write_b32 a{ZERO+i}, 0")
    Z = ar(ZERO, 4)
    for i in range(12): a(f"{MF32} {vr(16*i,16)}, {Z}, {Z}, 0")
    for i in range(4): a(f"{MF32} {ar(16*i,16)}, {Z}, {Z}, 0")

    def w_reads(st, hd, wset):
        return [f"ds_read_b64_tr_b16 {ar(WSET[wset]+(2*s+y)*4+aa*2,2)}, v{WRD+s} offset:{wslot(st,hd) + aa*1024 + 8*y}"
                for s in range(4) for y in range(2) for aa in range(2)]
    def x_reads(st):
        return [f"ds_read_b128 {ar(XSET[st&1]+qt*4,4)}, v{XRD2 if st & 1 else XRD} offset:{xslot(st>>1) + qt*2048}" for qt in range(4)]
    def k_reads(half, dst=KF):
        return [f"ds_read_b128 {ar(dst+(kt*4+s)*4,4)}, v{KRD+s} offset:{(half*2+kt)*4096}" for s in range(4) for kt in range(2)]
    def v_reads(half, dst=VF):
        return [f"ds_read_b64_tr_b16 {ar(dst+dt*4+aa*2,2)}, v{VRD+dt} offset:{half*8192 + aa*4096}" for dt in range(8) for aa in range(2)]
    def qk_mfmas(sb, c0, src=KF, qmajor=False):
        idx = [(s, kt, qt) for s in range(4) for kt in range(2) for qt in range(4)]
        if qmajor: idx = [(s, kt, qt) for qt in range(4) for s in range(4) for kt in range(2)]
        m = []
        for s, kt, qt in idx:
            d = vr(S(sb, qt, kt), 4)
            c = d if s else ("0" if c0 else vr(NEGM(qt), 4))
            m.append(f"{MF} {d}, {ar(src+(kt*4+s)*4,4)}, {vr(QF(qt,s),4)}, {c}")
        return m
    def pv_mfmas(pb, src=VF, qmajor=False):
        def pv(dt, qt): d = ar(OA(qt, dt), 4); return f"{MF} {d}, {ar(src+dt*4,4)}, {vr(P(pb,qt),4)}, {d}"
        def ls(qt): d = ar(LA(qt), 4); return f"{MF} {d}, {ar(ONES,4)}, {vr(P(pb,qt),4)}, {d}"
        if qmajor: return [ls(qt) for qt in range(4)] + [pv(dt, qt) for qt in range(4) for dt in range(8)]
        return [pv(dt, qt) for dt in range(8) for qt in range(4)] + [ls(qt) for qt in range(4)]
    def sm_E(sb, e): r = S(sb, e // 8) + e % 8; return f"v_exp_f32 v{r}, v{r}"
    def sm_C(sb, p): r = S(sb, p // 4) + 2 * (p % 4); return f"v_cvt_pk_bf16_f32 v{P(sb, p//4) + p%4}, v{r}, v{r+1}"
    def sm_place(G1, G2, sb):
        n1 = len(G1.m)
        def put(g, it): (G1.put(g, it) if g < n1 else G2.put(g - n1, it))
        for i in range(32): put(2*i, sm_E(sb, i))
        for p in range(16): put(4*p+3, sm_C(sb, p))
    def sm_stream(sb):
        r = []
        for p in range(16):
            r += [sm_E(sb, 2*p), sm_E(sb, 2*p+1)]
            if p: r.append(sm_C(sb, p-1))
        r.append(sm_C(sb, 15))
        return r
    def dma_at(G, g, it):
        G.put(g, it); G.cap[g] = 0
    def spaced(dm, first, stride):
        out = []; nd = 0
        for it in dm:
            if isinstance(it, tuple): out.append({"i": it, "at": first + nd * stride}); nd += 1
            else: out.append(it)
        return out
    SKB, STM, SMK, SMV, SEF, SINC = SM0K, SM0V, SKL, SVL, ST2, SROT
    def piece(kind, skip=False):
        srd, so = (SK, SKO) if kind == "k" else (SV, SVO)
        if kind == "k": pre = [f"s_xor_b32 s{STM}, s{so}, 0xc000", f"s_and_b32 s{STM}, s{STM}, 0xf000", f"s_add_u32 m0, s{STM}, s{SKB}"]
        else: pre = [f"s_and_b32 s{STM}, s{so}, 0xf000", f"s_add_u32 m0, s{STM}, s{SVB}"]
        if skip:
            pre += [f"s_bitcmp1_b32 s{SMK if kind == 'k' else SMV}, s{SCNT}", f"s_cselect_b32 s{SEF}, 0x40000000, s{so}", f"s_cselect_b32 s{SINC}, 0, 4096"]
        ins = f"buffer_load_dwordx4 v{KDM if kind == 'k' else VDM}, {sr(srd,4)}, s{SEF if skip else so} offen{KVNT} lds"
        post = [f"s_add_u32 s{so}, s{so}, " + (f"s{SINC}" if skip else "4096")]
        return pre, ins, post
    def piece_at(G, g, kind, skip=False):
        pre, ins, post = piece(kind, skip)
        for j, p in enumerate(pre):
            assert not G.S[g - len(pre) + j], (g, j)
            G.put(g - len(pre) + j, p)
        if not opt.get("no_dma"): dma_at(G, g, ins)
        G.put(g + 1, post[0])
    def piece_now(kind):
        pre, ins, post = piece(kind)
        return pre + ["s_nop 0", ins] + post
    def pkmul(r, s): return f"v_pk_mul_f32 {vr(r,2)}, {vr(r,2)}, {s}"

    for it in w_dma(1): a.emit_item(it)
    fstamp()
    a(f"s_waitcnt vmcnt({a.vm_need(['w0','x0'])})")
    a("s_barrier")
    for r in x_reads(0) + w_reads(0, 1, 0): a(r)
    a(f"s_mov_b32 s{SCNT}, 0")
    stamp()
    def half_step(k, st, hd, nxt, wait, dm, extra=None, order=None):
        a(wait)
        if k > 24: fstamp()
        idx = [(s, y, qt) for s in range(4) for y in range(2) for qt in range(4)]
        if order: idx = [(s, y, qt) for qt in order for s in range(4) for y in range(2)]
        m = []
        for s, y, qt in idx:
            d = vr(QACC(qt, s, y), 4) if hd == 0 else Q2ACC(qt, s, y)
            m.append(f"{MF} {d}, {ar(WSET[k&1]+(2*s+y)*4,4)}, {ar(XSET[st&1]+qt*4,4)}, {d}")
        G = Sched(m)
        if nxt is None: rd = k_reads(0)
        else: rd = (x_reads(nxt[0]) if nxt[1] == 1 else []) + w_reads(nxt[0], nxt[1], (k+1) & 1)
        G.fill(rd, 0, 26, maxper=1)
        nd = sum(isinstance(x, tuple) for x in dm)
        G.fill(spaced(dm, 1 if nd > 8 else 2, {16: 2, 8: 4}.get(nd, 7)), 0, 32, maxper=(2 if nd > 8 else 1))
        post = G.post; G.post = []
        left = None
        if extra:
            G.fill(extra[0], extra[1], 32)
            left = G.post; G.post = []
        G.post = post
        G.emit(a)
        return left
    NPF = opt.get("l2pf", 0)
    SPF = 50
    PFS = opt.get("l2pf_stride", 16384)
    def pf_dma():
        r = []
        for i in range(NPF):
            kind = "k" if (i & 1) == 0 or not opt.get("l2pf_v") else "v"
            r += [(f"buffer_load_dwordx4 {vr(Q2V + 4*(i%4),4)}, v{KDM if kind == 'k' else VDM}, {sr(SK if kind == 'k' else SV,4)}, s{SPF} offen{opt.get('l2pf_pol','')}", "pf")]
            if kind == "v" or not opt.get("l2pf_v"): r += [f"s_add_u32 s{SPF}, s{SPF}, {PFS}"]
        return r
    a(f"s_mov_b32 s{SPF}, {opt.get('l2pf_first', 4)*16384}")
    half_step(0, 0, 1, (0, 0), "s_waitcnt lgkmcnt(0)", w_dma(2) + x_dma(1) + w_dma(3))
    for it in pf_dma(): a.emit_item(it)
    a(f"s_waitcnt vmcnt({16+NPF}) lgkmcnt(0)")
    a("s_branch K1_QENTRY")
    a(".p2align 6\nK1_QLOOP:")
    for st in range(4):
        half_step(2*st, st, 1, (st, 0), "s_waitcnt lgkmcnt(0)", x_dma((st+3)//2) if st & 1 else pf_dma())
        dm = w_dma(st + 4)
        if st == 3: dm += [f"s_add_u32 s{SCNT}, s{SCNT}, 1", f"s_cmp_lt_u32 s{SCNT}, 3"]
        n = 16 + (NPF if st & 1 else 2*NPF)
        half_step(2*st+1, st, 0, (st+1, 1), f"s_waitcnt vmcnt({n}) lgkmcnt(0)\n" + ("K1_QENTRY:\n" if st == 0 else "") + "s_barrier", dm)
    a("s_cbranch_scc1 K1_QLOOP")
    stamp()
    a.vm = ["w13"]*4 + ["pf"]*NPF + ["w14"]*4 + ["x7"]*8 + ["w15"]*4
    finv = []
    for qt in (2, 3):
        for s in range(4):
            b = 128 + (qt-2)*32 + s*8
            finv += [f"v_mul_f32 v{b+i}, s{SC}, v{b+i}" for i in range(8)]
            finv += [f"v_cvt_pk_bf16_f32 v{Q2V+((qt-2)*4+s)*4+p}, v{b+2*p}, v{b+2*p+1}" for p in range(4)]
    def bar(tag): return f"s_waitcnt vmcnt({a.vm_need(tag)}) lgkmcnt(0)\ns_barrier"
    L0 = "s_waitcnt lgkmcnt(0)"
    wopf = [f"s_mov_b32 s{STMP}, 4096"] + [(f"buffer_load_dwordx4 a[248:251], v{LN16}, {sr(SQ,4)}, {'0' if j < 4 else 's%d' % STMP} offen offset:{(j%4)*1024}", "wo") for j in range(8)]
    WPA = opt.get("wopf_at", 0)
    half_step(24, 12, 1, (12, 0), L0, kv_dma("k", 0) if WPA != 24 else wopf)
    half_step(25, 12, 0, (13, 1), bar("w13"), wopf if WPA == 25 else (kv_dma("k", 0) if WPA == 24 else []))
    half_step(26, 13, 1, (13, 0), L0, kv_dma("k", 1))
    half_step(27, 13, 0, (14, 1), bar(["w14", "x7"]), [])
    half_step(28, 14, 1, (15, 1), bar("w15"), kv_dma("v", 0))
    left = half_step(29, 15, 1, (14, 0), L0, kv_dma("k", 2), extra=(finv, 20), order=(2, 3, 0, 1))
    left = half_step(30, 14, 0, (15, 0), L0, kv_dma("v", 1), extra=(left, 0))
    fina = []
    for qt in (0, 1):
        for s in range(4):
            tb = 128 + ((qt*4+s) % 4) * 16
            src = OA(qt, 2*s)
            fina += [f"v_accvgpr_read_b32 v{tb+i}, a{src+i}" for i in range(8)]
            fina += [f"v_mul_f32 v{tb+i}, s{SC}, v{tb+i}" for i in range(8)]
            fina += [f"v_cvt_pk_bf16_f32 v{tb+8+p}, v{tb+2*p}, v{tb+2*p+1}" for p in range(4)]
            fina.append(f"ds_write_b128 v{QST}, {vr(tb+8,4)} offset:{(qt*4+s)*1024}")
    left = half_step(31, 15, 0, None, bar("k0"), kv_dma("v", 2), extra=(left + fina, 0), order=(0, 1, 2, 3))
    stamp()
    i = 0
    while i < len(left):
        x = left[i]
        if x.startswith("v_mul_f32") and i + 1 < len(left) and left[i+1].startswith("v_mul_f32"):
            r = int(x.split()[1][1:-1])
            if r % 2 == 0:
                a(pkmul(r, sr(SC, 2))); i += 2; continue
        a(x); i += 1
    for qt in range(4):
        for s in range(4):
            b = QACC(qt, s, 0)
            for i in range(4): a(pkmul(b+2*i, sr(SC, 2)))
        if qt == 0: a("s_waitcnt lgkmcnt(0)")
        for s in range(4):
            b = QACC(qt, s, 0)
            for p in range(4): a(f"v_cvt_pk_bf16_f32 v{QF(qt,s)+p}, v{b+2*p}, v{b+2*p+1}")
    a(f"""
    s_mov_b32 s{SKO}, {3*16384}
    s_mov_b32 s{SVO}, {3*16384}
    s_mov_b32 s{SEV}, 15
    s_mov_b32 s{SVB}, s{SW1K}
    s_add_u32 s{SKB}, s{SW1K}, {KRING}
    s_mov_b32 s{SMK}, {opt.get('mk0', 0x5555)}
    s_mov_b32 s{SMV}, {opt.get('mv0', 0x4444)}
    """)
    if opt.get("trip_ts"):
        a("s_mov_b32 s34, 0\ns_mov_b32 s32, 0\nv_mbcnt_lo_u32_b32 v205, -1, 0\nv_mbcnt_hi_u32_b32 v205, -1, v205\nv_mov_b32 v207, 0")
    u0, u1, u2, u3 = 210, 211, 212, 213
    a(f"""
    s_load_dwordx2 s[32:33], s[0:1], 88
    s_memrealtime s[34:35]
    s_and_b32 s3, s2, 3
    s_lshl_b32 s3, s3, 20
    s_bfe_u32 s{STMP}, s2, 0x20003
    s_lshl_b32 s{STMP}, s{STMP}, 8
    s_add_u32 s3, s3, s{STMP}
    s_add_u32 s{SW}, s{SPTR+8}, s3
    s_addc_u32 s{SW+1}, s{SPTR+9}, 0
    s_sub_u32 s{SW+2}, 1048576, s{STMP}
    v_mbcnt_lo_u32_b32 v{u0}, -1, 0
    v_mbcnt_hi_u32_b32 v{u0}, -1, v{u0}
    v_lshlrev_b32 v{VLZ}, 20, v{u0}
    v_lshrrev_b32 v{u1}, 4, v{u0}
    v_and_b32 v{u0}, 15, v{u0}
    v_lshlrev_b32 v{u2}, 1, v{u1}
    v_xor_b32 v{u2}, v{u2}, v{u0}
    s_and_b32 s3, s2, 3
    s_lshl_b32 s3, s3, 2
    v_xor_b32 v{u2}, s3, v{u2}
    v_lshlrev_b32 v{u2}, 4, v{u2}
    v_lshl_add_u32 v{u2}, v{u1}, 10, v{u2}
    s_lshl_b32 s3, s{SW1K}, 3
    v_add_u32 v{WD2}, s3, v{u2}
    v_xor_b32 v{WD2+1}, 128, v{WD2}
    v_add_u32 v{WD2+1}, 3072, v{WD2+1}
    v_lshlrev_b32 v{u2}, 11, v{u0}
    v_lshl_add_u32 v{u2}, v{u1}, 3, v{u2}
    s_lshl_b32 s3, s{SW1K}, 7
    v_add_u32 v{OUTV}, s3, v{u2}
    s_waitcnt lgkmcnt(0)
    s_mov_b32 s{SX}, s32
    s_mov_b32 s{SX+1}, s33
    s_mov_b32 s{SX+2}, 4
    s_andn2_b32 s3, s34, 30
    s_or_b32 s3, s3, 1
    v_mov_b32 v{u2}, s3
    v_mov_b32 v{u3}, 0
    """)
    a.emit_item((f"buffer_atomic_cmpswap {vr(u2,2)}, v{VLZ}, {sr(SX,4)}, s{SW1K} offen sc1", "nonce"))
    pro_vm = list(a.vm)
    a("K1_PRO:")
    stamp()
    a("s_waitcnt lgkmcnt(0)")
    zm = [f"{MF32} {ar(16*i,16)}, {Z}, {Z}, 0" for i in range(9)]
    G = Sched(qk_mfmas(0, True, KF, True) + zm + qk_mfmas(1, False, VF, True))
    for gp in (9, 27, 44, 62): piece_at(G, gp, "k")
    G.fill(k_reads(1, VF), 0, 16, maxper=1)
    G.tail(40, "s_waitcnt lgkmcnt(0)")
    mx = []
    for qt in range(4):
        s0 = S(0, qt); m_ = TMPQ(qt); t_ = m_ + 1; ng = NEGM(qt)
        bias = f"s{SBIAS}" if qt == 3 else "0"
        ch = [f"v_max3_f32 v{m_}, v{s0}, v{s0+1}, v{s0+2}", f"v_max3_f32 v{t_}, v{s0+3}, v{s0+4}, v{s0+5}",
              f"v_max3_f32 v{m_}, v{m_}, v{s0+6}, v{s0+7}", f"v_max_f32 v{m_}, v{m_}, v{t_}", f"v_mov_b32 v{t_}, v{m_}",
              {"i": f"v_permlane16_swap_b32 v{m_}, v{t_}", "new": True}, f"v_max_f32 v{m_}, v{m_}, v{t_}", f"v_mov_b32 v{t_}, v{m_}",
              {"i": f"v_permlane32_swap_b32 v{m_}, v{t_}", "new": True}, f"v_max_f32 v{m_}, v{m_}, v{t_}",
              f"v_sub_f32 v{ng}, {bias}, v{m_}"] + [f"v_mov_b32 v{ng+i}, v{ng}" for i in range(1, 4)] + \
             [f"v_add_f32 v{s0+i}, v{s0+i}, v{ng}" for i in range(8)]
        ch[0] = {"i": ch[0], "at": 8*qt + 11}
        mx += ch
    g = G.fill(mx, 0, len(G.m))
    assert not G.post, len(G.post)
    for qt in range(4):
        gg = [i for i, v in enumerate(G.V) if f"v_mov_b32 v{NEGM(qt)+3}, v{NEGM(qt)}" in v][0]
        assert gg < 41 + 8*qt - 1, (qt, gg)
    G.fill(sm_stream(0), g, len(G.m))
    tailv = G.post; G.post = []
    G.emit(a)
    a.vm = list(pro_vm)
    for s in range(4): a(f"v_subrev_u32 v{KRD+s}, 16384, v{KRD+s}")
    a(f"s_waitcnt vmcnt(8) lgkmcnt(0)")
    a("s_barrier")
    kr = k_reads(0)
    for i in range(2):
        pre, ins, post = piece("k")
        for p in pre: a(p)
        for r in kr[4*i:4*i+4]: a(r)
        a(ins)
        for p in post: a(p)
    a(f"""
    s_mov_b32 s{SA_}, {kslot(1) - KRING}
    s_mov_b32 s{SBB}, 0
    s_mov_b32 s{SCNT}, 0
    """)
    for it in tailv: a(it)
    a("s_waitcnt lgkmcnt(0)")
    stamp()
    a(".p2align 6")
    a("K1_LOOP:")
    def trip(last=None, mid=False):
        G1 = Sched(qk_mfmas(0, False)); G2 = Sched(pv_mfmas(0)); G3 = Sched(qk_mfmas(1, False)); G4 = Sched(pv_mfmas(1))
        sm_place(G1, G2, 1); sm_place(G3, G4, 0)
        if last: xw = last(G1, G2, G3, G4)
        else:
            xw = opt.get('xwait', 4)
            piece_at(G4, 9, "k"); piece_at(G4, 25, "k"); piece_at(G1, 9, "k", True); piece_at(G1, 25, "k")
            piece_at(G2, 9, "v"); piece_at(G2, 25, "v"); piece_at(G3, 9, "v", True); piece_at(G3, 25, "v")
        G1.fill(v_reads(0), 0, 30); G1.put(31, "s_waitcnt lgkmcnt(0)")
        G2.fill(k_reads(1), 0, 30, maxper=1)
        G2.put(35, "s_waitcnt lgkmcnt(0)")
        G3.fill(v_reads(1), 0, 30)
        G3.put(31, f"s_waitcnt vmcnt({xw}) lgkmcnt(0)" if not opt.get("no_dma") else "s_waitcnt lgkmcnt(0)")
        G3.tail(31, "s_barrier")
        if last:
            if mid:
                G2.fill([f"v_subrev_u32 v{KRD+s}, 16384, v{KRD+s}" for s in range(4)], 32, 36)
                G4.fill(k_reads(0), 0, 30, maxper=1)
                G4.put(35, "s_waitcnt lgkmcnt(0)")
            G4.fill([f"v_add_u32 v{VRD+dt}, 16384, v{VRD+dt}" for dt in range(8)], 21, 36)
        else:
            sal = [f"s_sub_u32 s{SN}, s{SA_}, 16384", f"s_and_b32 s{SN}, s{SN}, 0xffff", f"s_sub_u32 s{SDK}, s{SN}, s{SA_}", f"s_mov_b32 s{SA_}, s{SN}",
                   f"s_add_u32 s{SN}, s{SBB}, 16384", f"s_and_b32 s{SN}, s{SN}, 0xffff", f"s_sub_u32 s{SDV}, s{SN}, s{SBB}", f"s_mov_b32 s{SBB}, s{SN}",
                   f"s_add_u32 s{SCNT}, s{SCNT}, 1"]
            G2.fill(sal, 12, 22, maxper=1)
            G2.fill([f"v_add_u32 v{KRD+s}, s{SDK}, v{KRD+s}" for s in range(4)], 32, 36)
            G4.fill(k_reads(0), 0, 30, maxper=1)
            G4.fill([f"v_add_u32 v{VRD+dt}, s{SDV}, v{VRD+dt}" for dt in range(8)], 21, 36)
            G4.put(34, f"s_cmp_lt_u32 s{SCNT}, s{SEV}")
            G4.put(35, "s_waitcnt lgkmcnt(0)")
            G4.tail(35, "s_cbranch_scc1 K1_LOOP")
        for G in (G1, G2, G3, G4):
            assert not G.post
            G.emit(a)
    trip()
    a(f"s_cmp_eq_u32 s{SR}, 1\ns_cbranch_scc1 K1_FINAL")
    OSTNT = opt.get("o_store", " sc1"); OSTNT2 = opt.get("o_store2", OSTNT)
    def oepi(qt, final):
        r = []
        for s in range(4):
            tb = [0, 8, 32, 40][s]
            pb = [64, 68, 72, 76][s]
            if not final and qt >= 2: pb = Q2V + ((qt-2)*4+s)*4
            if final: tb = 224 + 8*(s & 1); pb = 240 + 4*s
            src = OA(qt, 2*s)
            r += [f"v_accvgpr_read_b32 v{tb+i}, a{src+i}" for i in range(8)]
            r += [f"v_pk_mul_f32 {vr(tb+2*i,2)}, {vr(tb+2*i,2)}, {vr(RCP+2*qt,2)}" for i in range(4)]
            r += [f"v_cvt_pk_bf16_f32 v{pb+p}, v{tb+2*p}, v{tb+2*p+1}" for p in range(4)]
            if final: r.append(f"buffer_store_dwordx4 {vr(pb,4)}, v{OST}, {sr(SO,4)}, s{SOO+qt} offen offset:{s*1024}{OSTNT2}")
            elif qt < 2: r.append(f"ds_write_b128 v{QST}, {vr(pb,4)} offset:{(qt*4+s)*1024}")
        return r
    nk = 2 - 4 + bin(opt.get('mk0', 0x5555)).count('1'); nv = 4 + bin(opt.get('mv0', 0x4444)).count('1')
    assert nk >= 0
    order = ["k", "k"][:nk]
    while len(order) < nk + nv:
        if order.count("v") < nv: order.append("v")
        if order.count("k") < nk: order.append("k")
    lread = [f"v_accvgpr_read_b32 v{RCP+2*qt}, a{LA(qt)}" for qt in range(4)]
    rest_m = [f"ds_read_b128 {vr(QF(j//4, j%4),4)}, v{QST} offset:{j*1024}" for j in range(8)]
    rcps = [f"v_rcp_f32 v{RCP+2*qt}, v{RCP+2*qt}" for qt in range(4)] + [f"v_mov_b32 v{RCP+2*qt+1}, v{RCP+2*qt}" for qt in range(4)]
    rest_v = [f"v_mov_b32 v{QF(2,0)+i}, v{Q2V+i}" for i in range(32)]
    def drain(final, hook30=None, hook31=None):
        for r in v_reads(0): a(r)
        sm = sm_stream(1)
        for x in sm[:9]: a(x)
        a("s_waitcnt lgkmcnt(0)")
        G = Sched(pv_mfmas(0))
        V2 = KF if final else XF
        G.fill(v_reads(1, V2), 0, 36, maxper=2)
        if final: hook30(G)
        else:
            for j in range(4): piece_at(G, 9 + 8*j, order[j])
        G.fill(sm[9:], 0, 36)
        G.emit(a)
        a("s_waitcnt lgkmcnt(0)")
        G = Sched(pv_mfmas(1, V2, True))
        if final: hook31(G)
        else:
            for j in range(min(3, len(order) - 4)): piece_at(G, 3 + 5*j, order[4+j])
        st1 = [f"v_subrev_u32 v{VRD+dt}, {3*16384}, v{VRD+dt}" for dt in range(8)]
        st1 += [{"i": lread[0], "at": 9}] + lread[1:]
        masks = ["s[32:33]", "s[34:35]", "s[36:37]", "vcc"]
        st1 += [f"v_cmp_nge_f32 {masks[qt]}, s{STMP}, v{RCP+2*qt}" for qt in range(4)]
        G.put(3, f"s_mov_b32 s{STMP}, 0x{opt.get('thresh', 0x53800000):08x}")
        g = G.fill(st1, 0, 16)
        assert not G.post
        G.put(16, "s_or_b64 s[32:33], s[32:33], s[34:35]")
        G.put(17, "s_or_b64 s[36:37], s[36:37], vcc")
        G.put(18, "s_or_b64 s[32:33], s[32:33], s[36:37]")
        G.tail(18, "s_cbranch_scc1 K1_SLOW")
        G.fill(rcps, g + 1, 36)
        if not final:
            G.fill(rest_m, 19, 36)
            G.fill(rest_v, 19, 36)
        G.emit(a)
    def dump_stamps(rnd, vt):
        if not stamps: return
        a("s_waitcnt lgkmcnt(0)")
        a(f"""
        s_add_u32 s{SDMP}, s{SWS}, 0x4000000
        s_addc_u32 s{SDMP+1}, s{SWS+1}, 0
        s_mov_b32 s{SDMP+2}, 0x100000
        s_mov_b32 s{SDMP+3}, 0x20000
        s_mul_i32 s3, s2, 3
        s_add_u32 s3, s3, {rnd}
        s_lshl_b32 s3, s3, 10
        s_lshr_b32 s{STMP}, s{SW4K}, 4
        s_add_u32 s3, s3, s{STMP}
        v_mov_b32 v{vt}, s3
        """)
        for i in range(0, nstamp[0], 2):
            for j in range(4): a(f"v_mov_b32 v{vt+4+j}, s{STS+2*i+j}")
            a(f"buffer_store_dwordx4 {vr(vt+4,4)}, v{vt}, {sr(SDMP,4)}, 0 offen offset:{8*i}")
            a("s_nop 1")
    nl = nstamp[0]
    stamp()
    drain(False)
    a("K1_SLOW_RET:")
    stamp()
    a("s_waitcnt lgkmcnt(0)")
    F0 = opt.get('flush_at', 11)
    rem = order[7:]
    ep = [x for qt in range(3) for x in oepi(qt, False)] + [f"ds_read_b128 {ar(XF+4*j,4)}, v{QST} offset:{j*1024}" for j in range(8)] + oepi(3, False)
    step = len(ep) // max(len(rem), 1)
    for j, x in enumerate(ep):
        if j % step == 0 and j // step < len(rem):
            for y in piece_now(rem[j // step]): a(y)
        a(x)
    n0 = nstamp[0]
    dump_stamps(0, 96)
    a(f"""
    buffer_load_dword v{VTAG}, v{VLZ}, {sr(SX,4)}, 0 offen sc1
    s_add_u32 s{SX}, s{SWS}, {FLAGOFF}
    s_addc_u32 s{SX+1}, s{SWS+1}, 0
    s_mov_b32 s{SX+2}, 0x40000
    s_lshl_b32 s3, s{SBR}, 3
    s_add_u32 s3, s3, s{SB_}
    s_lshl_b32 s3, s3, 2
    s_and_b32 s{STMP}, s2, 3
    s_add_u32 s3, s3, s{STMP}
    s_lshl_b32 s3, s3, 9
    s_lshr_b32 s{STMP}, s{SW1K}, 3
    s_add_u32 s{SFO}, s3, s{STMP}
    s_mov_b32 s{SR}, 1
    s_mov_b32 s{SEV}, 13
    s_mov_b32 s{SMK}, {opt.get('mk1', 0x0555)}
    s_mov_b32 s{SMV}, {opt.get('mv1', 0x0924)}
    s_branch K1_PRO
    K1_FINAL:
    """)
    stash_rd = []
    nstamp[0] = nl
    import optail
    optail.gen(a, opt, globals(), locals())
    KA, VA, LNv = RCP, RCP + 1, RCP + 2
    SU, SU2, SE_ = 32, 33, 34
    def VFR(dt): return S(1, dt >> 1) + 4 * (dt & 1)
    def kload():
        for kt in range(2):
            for s_ in range(4):
                a(f"buffer_load_dwordx4 {ar(VF+(kt*4+s_)*4,4)}, v{KA}, {sr(SK,4)}, s{SU2 if kt else SU} offen offset:{s_*64}")
    a(f"""
    K1_SLOW:
    s_waitcnt vmcnt(0)
    s_nop 7
    s_nop 7
    v_mbcnt_lo_u32_b32 v{LNv}, -1, 0
    v_mbcnt_hi_u32_b32 v{LNv}, -1, v{LNv}
    v_and_b32 v{VA}, 15, v{LNv}
    v_lshrrev_b32 v{LNv}, 4, v{LNv}
    v_lshlrev_b32 v{KA}, 8, v{VA}
    v_lshl_add_u32 v{KA}, v{LNv}, 4, v{KA}
    v_lshlrev_b32 v{VA}, 1, v{VA}
    v_lshl_add_u32 v{VA}, v{LNv}, 10, v{VA}
    s_lshl_b32 s{SU}, s{SR}, 18
    s_add_u32 s{SE_}, s{SU}, 262144
    """)
    for qt in range(4): a(f"v_mov_b32 v{TMPQ(qt)}, 0xff800000")
    a(f"K1_SL1:\ns_add_u32 s{SU2}, s{SU}, 4096")
    kload()
    a("s_waitcnt vmcnt(0)")
    for m in qk_mfmas(0, True, VF): a(m)
    a("s_nop 7")
    for qt in range(4):
        for i in range(0, 8, 2): a(f"v_max3_f32 v{TMPQ(qt)}, v{TMPQ(qt)}, v{S(0,qt)+i}, v{S(0,qt)+i+1}")
    a(f"s_add_u32 s{SU}, s{SU}, 8192\ns_cmp_lt_u32 s{SU}, s{SE_}\ns_cbranch_scc1 K1_SL1")
    for qt in range(4):
        m_ = TMPQ(qt); t_ = m_ + 1; ng = NEGM(qt)
        bias = f"s{SBIAS}" if qt == 3 else "0"
        for x in [f"v_mov_b32 v{t_}, v{m_}", f"v_permlane16_swap_b32 v{m_}, v{t_}", f"v_max_f32 v{m_}, v{m_}, v{t_}", f"v_mov_b32 v{t_}, v{m_}",
                  f"v_permlane32_swap_b32 v{m_}, v{t_}", f"v_max_f32 v{m_}, v{m_}, v{t_}", f"v_sub_f32 v{ng}, {bias}, v{m_}"] + \
                 [f"v_mov_b32 v{ng+i}, v{ng}" for i in range(1, 4)]: a(x)
    for x in zm: a(x)
    a(f"s_lshl_b32 s{SU}, s{SR}, 18\nK1_SL2:\ns_add_u32 s{SU2}, s{SU}, 4096")
    kload()
    for aa in range(2):
        def HT(dt, jp): n = dt*2 + jp; return P(1, n >> 2) + (n & 3)
        for dt in range(8):
            for j in range(4):
                d = HT(dt, j >> 1) if j & 1 else VFR(dt) + aa*2 + (j >> 1)
                a(f"buffer_load_ushort v{d}, v{VA}, {sr(SV,4)}, s{SU2 if aa else SU} offen offset:{j*256+dt*32}")
        a("s_waitcnt vmcnt(0)")
        for dt in range(8):
            for jp in range(2):
                d = VFR(dt) + aa*2 + jp
                a(f"v_lshl_or_b32 v{d}, v{HT(dt,jp)}, 16, v{d}")
    for m in qk_mfmas(0, False, VF): a(m)
    a("s_nop 7")
    for x in sm_stream(0): a(x)
    a("s_nop 1")
    for dt in range(8):
        for qt in range(4):
            d = ar(OA(qt, dt), 4)
            a(f"{MF} {d}, {vr(VFR(dt),4)}, {vr(P(0,qt),4)}, {d}")
    for qt in range(4):
        d = ar(LA(qt), 4)
        a(f"{MF} {d}, {ar(ONES,4)}, {vr(P(0,qt),4)}, {d}")
    a(f"s_add_u32 s{SU}, s{SU}, 8192\ns_cmp_lt_u32 s{SU}, s{SE_}\ns_cbranch_scc1 K1_SL2")
    a("s_nop 7")
    for x in lread + rcps: a(x)
    a(f"s_cmp_eq_u32 s{SR}, 1\ns_cbranch_scc1 K1_SLOW_RET2")
    for x in rest_m + rest_v: a(x)
    a(f"""
    s_branch K1_SLOW_RET
    K1_END:
    s_endpgm
    """)

def desc(name, vgpr=512, acc=256, sgpr=102):
    return f""".amdhsa_kernel {name}
  .amdhsa_next_free_vgpr {vgpr}
  .amdhsa_next_free_sgpr {sgpr}
  .amdhsa_accum_offset {acc}
  .amdhsa_group_segment_fixed_size 0
  .amdhsa_kernarg_size 104
  .amdhsa_user_sgpr_count 2
  .amdhsa_user_sgpr_kernarg_segment_ptr 1
  .amdhsa_system_sgpr_workgroup_id_x 1
.end_amdhsa_kernel
"""
```

```python
from asmlib import *
def gen(a, opt, G_, L_):
    g = dict(G_); g.update(L_)
    for k in ("MF MF32 SK SV SX SW SO SQ SWS SBR SB_ STMP SW1K SW4K SFO SCNT SOO VRD OST LN16 WD2 OUTV VLZ VTAG KF VF XF Q2V QST RCP ZERO "
              "stamp dump_stamps nstamp Z n0 SEV drain dma_at OA trip piece").split():
        globals()[k] = g[k]
    R = 8
    def ACC(q, l): return ((l >> 1)*4 + q)*8 + (l & 1)*4
    def AF(k, l): return 176 + ((k-(32-R))*2+l)*4 if (k >= 32-R and l < 2) else KF + l*4
    def O1(q, s): return ar(XF+(q*4+s)*4, 4) if q < 2 else vr(Q2V+((q-2)*4+s)*4, 4)
    def O2r(q, s): return 128 + (s*4+q)*4
    def BF(k, q):
        if k < 4: return O1(q, k)
        if k < 8: return vr(O2r(q, k-4), 4)
        return ar(OA(q, k & 7), 4)
    KT = [(0, 0, s) for s in range(4)] + [(0, 1, s) for s in range(4)] + \
         [(x, 0, s) for s in range(4) for x in (1, 2, 3)] + [(x, 1, s) for s in range(4) for x in (1, 2, 3)]
    SRO, SE, SD = SK, SV, SQ
    SB4 = [46, 47, 50, 51]
    SWO, SW2K, STAG, SF2, SXF, SP = 52, 53, 54, 28, 29, 30
    SO2 = [45, 48, 49, 101]
    VL4, FLV = 204, 208
    def ucalc(dst, k, sh):
        x, hd, s = KT[k]
        return [f"s_xor_b32 s{dst}, s{SP}, {x*8 + hd*4 + s}", f"s_lshl_b32 s{dst}, s{dst}, {sh}"]
    def d_ops(k):
        return ucalc(SWO, k, 15) + [f"s_add_u32 m0, s{SW2K}, {(k & 7)*8192}",
             (f"buffer_load_dwordx4 v{WD2}, {sr(SW,4)}, s{SWO} offen lds", f"d{k}"),
             (f"buffer_load_dwordx4 v{WD2+1}, {sr(SW,4)}, s{SWO} offen offset:1024 lds", f"d{k}")]
    def b_ops(k):
        r = ucalc(SB4[0], k, 10)
        for q in range(4):
            if q: r.append(f"s_add_u32 s{SB4[0]}, s{SB4[0]}, 131072")
            r.append((f"buffer_load_dwordx4 {BF(k,q)}, v{OST}, {sr(SRO,4)}, s{SB4[0]} offen sc1", f"b{k}"))
        return r
    def a_reads(k, l):
        return [f"ds_read_b64_tr_b16 {ar(AF(k,l)+aa*2,2)}, v{VRD+l} offset:{(k&7)*8192 + aa*4096}" for aa in range(2)]
    def st1(q, s): return (f"buffer_store_dwordx4 {O1(q,s)}, v{OST}, {sr(SO,4)}, s{SOO+q} offen offset:{s*1024} sc1", "o1")
    def st2(q, s): return (f"buffer_store_dwordx4 {vr(O2r(q,s),4)}, v{OST}, {sr(SO,4)}, s{SO2[q]} offen offset:{s*1024} sc1", "o2" if s < 2 else "o3")
    wopf = [(f"buffer_load_dwordx4 a[248:251], v{LN16}, {sr(SQ,4)}, {'0' if j < 4 else 's%d' % SB4[2]} offen offset:{(j%4)*1024}", "wo") for j in range(8)]
    def place(G, ops, gaps):
        gi = iter(gaps); pend = []; prev = -1
        for x in ops:
            if isinstance(x, tuple):
                gp = next(gi)
                assert gp > prev
                c = [j for j in range(prev + 1, gp) if not G.S[j]] or list(range(prev + 1, gp)) or [gp]
                for i, y in enumerate(pend): G.put(c[max(0, len(c) - len(pend) + i)], y)
                pend = []; prev = gp
                G.put(gp, x); G.cap[gp] = min(G.cap[gp], 0)
            else: pend.append(x)
        assert not pend
    a.vm = ["v31"]*4 + ["kd"]*2
    a(f"""
    s_lshl_b32 s{SW2K}, s{SW1K}, 1
    s_and_b32 s{SP}, s2, 24
    s_mov_b32 s{SB4[2]}, 4096
    """)
    if opt.get("code_pf2", False):
        a(f"""
        s_getpc_b64 s[32:33]
        s_mov_b32 s34, TAIL_BYTES
        s_mov_b32 s35, 0x20000
        s_lshr_b32 s3, s2, 3
        s_lshl_b32 s3, s3, 10
        s_lshl_b32 s{STMP}, s{SW1K}, 9
        v_subrev_u32 v{FLV}, s{STMP}, v{OST}
        s_lshl_b32 s{STMP}, s{SW1K}, 5
        s_add_u32 s3, s3, s{STMP}
        """)
        a.emit_item((f"buffer_load_dwordx4 a[252:255], v{FLV}, s[32:35], s3 offen", "cpf"))
    o1 = [st1(q, s) for s in range(4) for q in range(4)]
    seq = (wopf + o1) if opt.get("wo_first", True) else (o1[:8] + wopf + o1[8:])
    NVL = bin(opt.get("mv1", 0x0924)).count("1"); NKL = bin(opt.get("mk1", 0x0555)).count("1")
    assert NVL <= 4 and NKL <= 6
    vp = []
    for i in range(NVL):
        pre, ins, post = piece("v")
        vp.append(([f"s_add_u32 s47, s47, 4096"] if i else []) + pre + [(ins, "v31")])
    items = vp + [[x] for x in seq]
    def take(n):
        r = [y for x in items[:n] for y in x]; del items[:n]; return r
    def t13(G1, G2, G3, G4):
        place(G1, take(3), [5, 13, 25]); place(G2, take(4), [5, 13, 21, 29]); place(G3, take(3), [1, 13, 25]); place(G4, take(3), [5, 17, 33])
        return 10
    def t14(G1, G2, G3, G4):
        place(G1, take(3), [1, 13, 25]); place(G2, take(5), [1, 9, 17, 25, 33]); place(G3, take(3), [1, 13, 25])
        n = min(2, len(items))
        place(G4, d_ops(0) + d_ops(1) + d_ops(2) + take(n), [3, 5, 9, 13, 17, 19, 29, 33][:6+n])
        return 24 - NVL
    trip(t13, True)
    trip(t14)
    stamp()
    def h30(G):
        n = len(items)
        place(G, d_ops(3) + d_ops(4) + take(n), [9, 12, 16, 19, 25, 32][:4+n])
    def h31(G): pass
    drain(True, h30, h31)
    a("K1_SLOW_RET2:")
    stamp()
    a(f"""
    s_load_dwordx2 s[36:37], s[0:1], 80
    s_lshl_b32 s{STMP}, s{SP}, 10
    s_sub_u32 s{SRO}, s{SO}, s{STMP}
    s_subb_u32 s{SRO+1}, s{SO+1}, 0
    s_add_u32 s{SRO+2}, s{SO+2}, s{STMP}
    s_lshr_b32 s3, s{SP}, 1
    s_add_u32 s{SF2}, s3, s{SFO}
    s_mov_b32 s{SEV}, 0
    v_readfirstlane_b32 s{STAG}, v{VTAG}
    v_lshrrev_b32 v{VL4}, 18, v{VLZ}
    v_min_u32 v{VL4}, 12, v{VL4}
    """)
    for q in range(4): a(f"s_add_u32 s{SO2[q]}, s{SOO+q}, 4096")
    a(f"s_waitcnt vmcnt({a.vm_need(['d0','d1'])}) lgkmcnt(0)\ns_barrier")
    for l in range(8):
        for r in a_reads(0, l): a(r)
    def ep(q, s, pk):
        t = O2r(q, s); src = OA(q, 2*s)
        r = [f"v_accvgpr_read_b32 v{t+i}, a{src+i}" for i in range(8)]
        if pk: r += [f"v_pk_mul_f32 {vr(t+2*i,2)}, {vr(t+2*i,2)}, {vr(RCP+2*q,2)}" for i in range(4)]
        else: r += [f"v_mul_f32 v{t+i}, v{t+i}, v{RCP+2*q}" for i in range(8)]
        r += [f"v_cvt_pk_bf16_f32 v{t+p}, v{t+2*p}, v{t+2*p+1}" for p in range(4)]
        return r
    NPRE = opt.get("ep_pre", 4)
    grp = [(q, s) for s in range(4) for q in range(4)]
    for q, s in grp[:NPRE]:
        for x in ep(q, s, True): a(x)
    eps = [(s, ep(q, s, False)) for q, s in grp[NPRE:]]
    setup = f"""s_and_b32 s35, s2, 3
    s_lshl_b32 s{STMP}, s35, 15
    s_sub_u32 s{SE}, s{SO}, s{STMP}
    s_subb_u32 s{SE+1}, s{SO+1}, 0
    s_add_u32 s{SE+2}, s{SO+2}, s{STMP}
    s_lshl_b32 s3, s{SBR}, 3
    s_add_u32 s3, s3, s{SB_}
    s_lshl_b32 s3, s3, 5
    s_add_u32 s3, s3, s{SP}
    s_lshl_b32 s{SXF}, s3, 8
    s_add_u32 s{SXF}, s{SXF}, 32768
    s_lshr_b32 s3, s{SW1K}, 3
    s_add_u32 s{SXF}, s{SXF}, s3
    s_lshl_b32 s3, s{SBR}, 10
    s_lshl_b32 s{STMP}, s{SP}, 5
    s_add_u32 s3, s3, s{STMP}
    s_lshl_b32 s{STMP}, s35, 6
    s_add_u32 s3, s3, s{STMP}
    s_sub_u32 s{SD+2}, {240*2048}, s3
    s_mul_i32 s{STMP}, s{SB_}, {240*2048}
    s_add_u32 s3, s3, s{STMP}
    s_add_u32 s{SD}, s36, s3
    s_addc_u32 s{SD+1}, s37, 0"""
    a(setup)
    nstamp[0] = 0
    stamp()
    a("s_waitcnt lgkmcnt(0)")
    plan = {k: [] for k in range(32)}
    for k in range(0, 27): plan[k] = d_ops(k+5)
    PUB = {1: opt.get("pub1", 2), 2: opt.get("pub2", 13), 3: opt.get("pub3", 20)}
    POL = {1: opt.get("pol1", 4), 2: opt.get("pol2", 15), 3: opt.get("pol3", 22)}
    assert PUB[3] >= 20
    o2 = [st2(q, s) for s in range(4) for q in range(4)]
    S2 = opt.get("o2_first", 2)
    LB = opt.get("lb", 4)
    for kb in range(8, 32):
        f, k0 = (1, 8) if kb < 20 else ((2, 20) if kb < 26 else (3, 26))
        at = max(kb - LB, POL[f] + 2 + (kb - k0) // 2)
        assert at < kb
        plan[at] += b_ops(kb)
    for i, x in enumerate(o2): plan[S2 + i].append(x)
    for f in POL: plan[POL[f]].insert(0, (f"buffer_load_dword v{FLV}, v{VL4}, {sr(SX,4)}, s{SFO} offen offset:{16*(f-1)} sc1", f"f{f}"))
    chk = f"v_cmp_ne_u32 vcc, s{STAG}, v{FLV}"
    for k in range(32):
        need = []
        if k >= 8: need.append(f"b{k}")
        if k & 1: need += [f"d{k+1}", f"d{k+2}"]
        for f in PUB:
            if k == PUB[f]: need.append(f"o{f}"); assert not any(isinstance(x, tuple) and x[1] == f"o{f}" for kk in range(k, 32) for x in plan[kk])
        if any(t in a.vm for t in need): a(f"s_waitcnt vmcnt({a.vm_need(need)})")
        if k & 1 and k < 31: a("s_barrier")
        for f in PUB:
            if k == PUB[f]: a.emit_item((f"buffer_store_dword v{VTAG}, v{VLZ}, {sr(SX,4)}, s{SF2} offen offset:{16*(f-1)} sc1", "p"))
        ls = list(range(8)) if k < 32 - R else list(range(2, 8))
        m = [f"{MF} {vr(ACC(q,l),4)}, {ar(AF(k,l),4)}, {BF(k,q)}, {vr(ACC(q,l),4) if k else '0'}" for l in ls for q in range(4)]
        G = Sched(m); n = len(m)
        if k < 31:
            extra = [] if len(ls) == 8 else a_reads(k+1, 0) + a_reads(k+1, 1)
            for j, x in enumerate(extra): G.put(j, x)
            for i, l in enumerate(ls):
                rd = a_reads(k+1, l)
                if i < len(ls) - 1: G.put(4*i + 4, rd[0]); G.put(4*i + 5, rd[1])
                else: G.tail(n - 1, rd)
        for i in range(len(ls)): G.put(4*i + 3, f"s_waitcnt lgkmcnt({6 if k < 31 else max(0, 8 - 2*i)})")
        nv = sum(isinstance(x, tuple) for x in plan[k])
        slots = [x for x in range(3, n) if x % 4 in (2, 3)]
        if nv > len(slots): slots = list(range(3, n))
        if nv: slots = [slots[(i * len(slots)) // nv] for i in range(nv)]
        place(G, plan[k], slots)
        if S2 <= k < S2 + 16: assert 16 - len(eps) > k - S2, (k, len(eps))
        if eps:
            flat = [x for _, e in eps for x in e]
            G.fill(flat, 0, n)
            left = G.post; G.post = []
            used = len(flat) - len(left)
            new = []
            for s_, e in eps:
                if used >= len(e): used -= len(e); continue
                e = e[used:]; used = 0
                if s_ <= k + 1 - 4: G.post += e
                else: new.append((s_, e))
            eps = new
        G.emit(a)
        for f in POL:
            if k == POL[f] + 1:
                a(f"s_waitcnt vmcnt({a.vm_need('f%d' % f)})\n{chk}\ns_cmp_eq_u32 vcc_lo, 0\ns_cbranch_scc0 K1_SPIN{f}\nK1_CHK{f}_OK:")
        if opt.get("op_fine"):
            if k in opt["op_fine"]:
                a(f"s_memtime s[{64+2*(1+opt['op_fine'].index(k))}:{65+2*(1+opt['op_fine'].index(k))}]\ns_waitcnt lgkmcnt(0)")
        elif k == 7 or k == 31: stamp(); (a("s_waitcnt lgkmcnt(0)") if g["stamps"] else None)
    m = [f"{MF} {vr(ACC(q,l),4)}, {ar(AF(k,l),4)}, {BF(k,q)}, {vr(ACC(q,l),4)}" for k in range(32-R, 32) for l in range(2) for q in range(4)]
    G = Sched(m)
    snd = []
    for j in range(1, 4):
        for q in range(4):
            r = 32*j + 8*q
            snd += [f"v_cvt_pk_bf16_f32 v{r+p}, v{r+2*p}, v{r+2*p+1}" for p in range(4)]
            snd.append((f"buffer_store_dwordx4 {vr(r,4)}, v{OST}, {sr(SO,4)}, s{SOO+q} offen offset:{j*1024} sc1", f"x{j}"))
    gl = G.fill(snd, 0, len(m))
    sal = []
    for j in range(4): sal += [f"s_xor_b32 s3, s35, {j}", f"s_lshl_b32 s{32+j if j < 3 else 36}, s3, 15" if j else "s_nop 0", "s_lshl_b32 s3, s3, 9", f"s_add_u32 s{SB4[j]}, s3, s{SXF}"]
    sal += [f"s_mov_b32 s{SEV}, 0"]
    G.fill(sal, gl + 1, len(m), maxper=1)
    G.emit(a)
    SXR = {1: 33, 2: 34, 3: 36}
    for j in range(1, 4):
        a(f"s_waitcnt vmcnt({a.vm_need('x%d' % j)})")
        a.emit_item((f"buffer_store_dword v{VTAG}, v{VLZ}, {sr(SX,4)}, s{SB4[j]} offen offset:{4*j} sc1", "p"))
    for q in range(1, 4): a(f"v_add_u32 v{128+q}, {q*131072}, v{OST}")
    for q in range(4): a(f"s_mov_b32 s{SOO+q}, {q*32768}")
    a(f"""
    K1_POLLX:
    buffer_load_dword v{FLV}, v{VL4}, {sr(SX,4)}, s{SB4[0]} offen sc1
    s_add_u32 s{SEV}, s{SEV}, 1
    s_waitcnt vmcnt(0)
    {chk}
    s_cmp_gt_u32 s{SEV}, 0x20000
    s_cbranch_scc1 K1_GOX
    s_and_b32 s3, vcc_lo, 14
    s_cbranch_scc1 K1_POLLX
    K1_GOX:
    """)
    if not opt.get("op_fine"): stamp()
    for q in range(4):
        for j in range(1, 4):
            a(f"buffer_load_dwordx4 {vr(32*j+8*q,4)}, v{128+q if q else OST}, {sr(SE,4)}, s{SXR[j]} offen offset:{j*1024} sc1")
    a(f"s_mov_b32 s3, 0xffff0000")
    for q in range(4):
        a(f"s_waitcnt vmcnt({3*(3-q) + 2*q})")
        for j in range(1, 4):
            r = 32*j + 8*q
            for p in (3, 2, 1, 0):
                a(f"v_and_b32 v{r+2*p+1}, s3, v{r+p}")
                a(f"v_lshlrev_b32 v{r+2*p}, 16, v{r+p}")
            for p in range(4): a(f"v_pk_add_f32 {vr(8*q+2*p,2)}, {vr(8*q+2*p,2)}, {vr(r+2*p,2)}")
        for l in range(2):
            r = 8*q + 4*l
            a(f"v_cvt_pk_bf16_f32 v{r}, v{r}, v{r+1}")
            a(f"v_cvt_pk_bf16_f32 v{r+1}, v{r+2}, v{r+3}")
            a(f"buffer_store_dwordx2 {vr(r,2)}, v{OUTV}, {sr(SD,4)}, s{SOO+q} offen offset:{l*32}")
    if g["stamps"]:
        a("s_waitcnt vmcnt(0)")
        a(f"s_memtime s[4:5]\ns_memrealtime s[6:7]\ns_waitcnt lgkmcnt(0)")
        nstamp[0] = 16
        dump_stamps(1, 224)
        a("s_waitcnt vmcnt(0)")
        for j in range(4): a(f"s_mov_b32 s{64+j}, s{4+j}")
        nstamp[0] = 2
        dump_stamps(2, 224)
    a("s_endpgm")
    for f in POL:
        a(f"""
        K1_SPIN{f}:
        s_add_u32 s{SEV}, s{SEV}, 1
        s_cmp_gt_u32 s{SEV}, 0x20000
        s_cbranch_scc1 K1_CHK{f}_OK
        buffer_load_dword v{FLV}, v{VL4}, {sr(SX,4)}, s{SFO} offen offset:{16*(f-1)} sc1
        s_waitcnt vmcnt(0)
        {chk}
        s_cmp_eq_u32 vcc_lo, 0
        s_cbranch_scc0 K1_SPIN{f}
        s_branch K1_CHK{f}_OK
        """)
```

```python
from asmlib import *
import struct

MF = "v_mfma_f32_16x16x32_bf16"
MF32 = "v_mfma_f32_32x32x16_bf16"
def QACC(qt, s, y): return 32*qt + (2*s+y)*4
def S(b, qt, kt=0): return 32*qt + 8*b + 4*kt
def P(b, qt): return 32*qt + 16 + 4*b
def NEGM(qt): return 32*qt + 24
def TMPQ(qt): return 32*qt + 28
def QF(qt, s): return 128 + (qt*4+s)*4
KRD, VRD, KDM, VDM, XDM, WDM, XRD, WRD, OST, QST, LN16 = 192, 196, 204, 208, 210, 214, 209, 217, 221, 222, 223
XRD2 = 216
Q2V = 224
T0 = 224
RCP = 210
def OA(qt, dt): return (qt*8+dt)*4
def LA(qt): return 128 + qt*4
KF, VF, XF = 144, 176, 208
WSET = [144, 176]
XSET = [208, 224]
ONES, ZERO = 240, 244
def Q2ACC(qt, s, y):
    return ar(OA(qt, 2*s+y), 4) if qt < 2 else vr(128 + (qt-2)*32 + (2*s+y)*4, 4)
SK, SV, SX, SW, SO, SQ = 4, 8, 12, 16, 20, 24
SPTR, SWS = 28, 38
SW4K, SR, SB_, SH, SBR = 40, 41, 42, 43, 44
SCNT, SKO, SVO, SM0K, SM0V, SDK, SDV, SA_, SBB, SN = 45, 46, 47, 48, 49, 50, 51, 52, 53, 54
SOO = 55
STMP, SWW, SBIAS = 59, 60, 61
SC = 62
SW1K = 100
SVB = 43
SFO = 60
SROT, SKL, SVL, ST2, SEV = 101, 28, 29, 30, 31
SXO, SWO0, SWO1, SW8K = 46, 47, 48, 49
STS = 64
VRING, WREG, KRING = 0, 65536, 98304
STASH = 65536
WHALF = 8224
def xslot(u): return (u & 1) * 32768
def wslot(st, hd): return (((3 - st) & 3) * 2 + hd) * WHALF
def kslot(t): return KRING + ((3 - t) & 3) * 16384
def vslot(t): return VRING + (t & 3) * 16384

EXOFF, FLAGOFF = 0x2000000, 0x3A00000
WD2, OUTV, VLZ, VTAG = 205, 207, 218, 219
FLG = 124
SDMP = 96
CSCALE = struct.unpack("<I", struct.pack("<f", 1.4426950408889634 * 128 ** -0.5))[0]

def gen_k1(a, name, opt):
    stamps = opt.get("stamps", False)
    KVNT = " nt" if opt.get("kv_nt", True) else ""
    XWP = opt.get("xw_pol", " nt")
    nstamp = [0]
    fine = opt.get("fine", False)
    def fstamp():
        if fine:
            a(f"s_memtime {sr(STS + 2*nstamp[0], 2)}")
            nstamp[0] += 1
    def stamp():
        if fine:
            if nstamp[0] < 17: fstamp()
        elif stamps:
            a(f"s_memtime {sr(STS + 2*nstamp[0], 2)}")
            a(f"s_memrealtime {sr(STS + 2*nstamp[0] + 2, 2)}")
            nstamp[0] += 2
    a(f".globl {name}\n.p2align 8\n.type {name},@function\n{name}:")
    a(f"""
    s_cmp_ge_u32 s2, 256
    s_cbranch_scc1 K1_END
    s_bfe_u32 s{SBR}, s2, 0x10002
    s_mul_i32 s3, s{SBR}, 40
    s_load_dwordx8 {sr(SPTR,8)}, s[0:1], s3
    s_add_u32 s3, s3, 32
    s_load_dwordx2 {sr(SPTR+8,2)}, s[0:1], s3
    s_load_dwordx2 {sr(SWS,2)}, s[0:1], 96
    s_getpc_b64 {sr(SQ,2)}
    K1_PC:
    """)
    stamp()
    W, LN = T0, T0 + 1
    t2, t3, t4, t5, t6, t7, t8, t9 = range(T0 + 2, T0 + 10)
    ROTINIT = (f"s_lshr_b32 s{SROT}, s2, 3\ns_add_u32 s{SROT}, s{SROT}, s2\ns_and_b32 s{SROT}, s{SROT}, 15\ns_lshl_b32 s{SROT}, s{SROT}, 14"
               if opt.get("rot", False) else f"s_mov_b32 s{SROT}, 0")
    TD = T0 + 12
    a(f"""
    v_lshrrev_b32 v{W}, 6, v0
    v_and_b32 v{LN}, 63, v0
    v_readfirstlane_b32 s3, v{W}
    v_lshlrev_b32 v{LN16}, 4, v{LN}
    s_lshl_b32 s{SW4K}, s3, 12
    s_lshl_b32 s{SW1K}, s3, 10
    s_lshl_b32 s{SW8K}, s3, 13
    s_mul_i32 s{SWW}, s3, 2056
    s_cmp_eq_u32 s3, 3
    s_cselect_b32 s{SBIAS}, 0xf149f2ca, 0
    s_mov_b32 s{SR}, 0
    s_mov_b32 s{SC}, 0x{CSCALE:08x}
    s_mov_b32 s{SC+1}, 0x{CSCALE:08x}
    s_lshr_b32 s{SB_}, s2, 5
    s_and_b32 s{STMP}, s2, 3
    s_lshl_b32 s{SH}, s{STMP}, 2
    s_bfe_u32 s{STMP}, s2, 0x20003
    s_add_u32 s{SH}, s{SH}, s{STMP}
    s_lshl_b32 s{SH}, s{SH}, 1
    {ROTINIT}
    s_mov_b32 s{SOO}, 0
    s_mov_b32 s{SOO+1}, 131072
    s_mov_b32 s{SOO+2}, 262144
    s_mov_b32 s{SOO+3}, 393216
    """)
    if opt.get("code_pf", True):
        a(f"""
        s_mov_b32 s{SQ+2}, CODE_BYTES
        s_mov_b32 s{SQ+3}, 0x20000
        s_lshr_b32 s3, s2, 3
        s_lshl_b32 s3, s3, 10
        v_lshl_add_u32 v{t2}, v{W}, 15, v{LN16}
        """)
        a.emit_item((f"buffer_load_dwordx4 {vr(TD,4)}, v{t2}, {sr(SQ,4)}, s3 offen", "touch"))
    a(f"""
    v_lshrrev_b32 v{t2}, 3, v{LN}
    v_lshl_add_u32 v{t2}, v{W}, 6, v{t2}
    v_lshlrev_b32 v{t2}, 10, v{t2}
    v_lshrrev_b32 v{t3}, 4, v{LN}
    v_and_b32 v{t5}, 7, v{LN}
    v_xor_b32 v{t4}, v{t3}, v{t5}
    v_lshl_add_u32 v{XDM}, v{t4}, 4, v{t2}
    v_xor_b32 v{XDM+1}, 64, v{XDM}
    v_add_u32 v{XDM+1}, {7*1024}, v{XDM+1}
    v_add_u32 v{XDM+2}, {14*1024}, v{XDM}
    v_add_u32 v{XDM+3}, {14*1024}, v{XDM+1}
    """)
    a(f"""
    v_and_b32 v{t2}, 15, v{LN}
    v_lshlrev_b32 v{t4}, 2, v{t3}
    v_xor_b32 v{t4}, v{t4}, v{t2}
    v_lshlrev_b32 v{t4}, 4, v{t4}
    v_lshl_add_u32 v{t5}, v{W}, 3, v{t3}
    v_lshl_add_u32 v{WDM}, v{t5}, 13, v{t4}
    v_add_u32 v{WDM+1}, {4*8192-1024}, v{WDM}
    s_mov_b32 s{SXO}, 0
    s_mov_b32 s{SWO0}, 0
    s_mov_b32 s{SWO1}, 256
    s_waitcnt lgkmcnt(0)
    """)
    fstamp()
    a(f"""
    s_mul_i32 s3, s{SB_}, 245760
    s_add_u32 s{SX}, s{SPTR}, s3
    s_addc_u32 s{SX+1}, s{SPTR+1}, 0
    s_mov_b32 s{SX+2}, {opt.get('exp_rows', 240)*1024}
    s_mov_b32 s{SX+3}, 0x20000
    s_lshl_b32 s3, s{SH}, 8
    s_add_u32 s{SW}, s{SPTR+6}, s3
    s_addc_u32 s{SW+1}, s{SPTR+7}, 0
    s_sub_u32 s{SW+2}, 4194304, s3
    s_mov_b32 s{SW+3}, 0x20000
    """)
    def w_dma(st):
        r = []
        for hd, so in ((1, SWO1), (0, SWO0)):
            r += [f"s_add_u32 m0, s{SWW}, {WREG + wslot(st, hd)}"]
            r += [(f"buffer_load_dwordx4 v{WDM+i}, {sr(SW,4)}, s{so} offen offset:{1024*i}{XWP} lds", f"w{st}") for i in range(2)]
            r += [f"s_add_u32 s{so}, s{so}, 262144"]
        return r
    def x_dma(u):
        r = []
        for hf in range(2):
            r += [f"s_add_u32 m0, s{SW8K}, {xslot(u) + hf*4096}"]
            r += [(f"buffer_load_dwordx4 v{XDM+i}, {sr(SX,4)}, s{SXO} offen offset:{1024*i}{XWP} lds", f"x{u}") for i in range(4)]
            r += [f"s_add_u32 s{SXO}, s{SXO}, 32768" if hf == 0 else f"s_sub_u32 s{SXO}, s{SXO}, {32768-128}"]
        return r
    CONTIG = opt.get("contig", True)
    ROT = opt.get("rot", False)
    def rot_calc(dst, lin):
        if isinstance(lin, int):
            return [f"s_add_u32 s{dst}, s{SROT}, {lin}", f"s_and_b32 s{dst}, s{dst}, 0x3ffff"]
        return [f"s_add_u32 s{dst}, s{lin[0]}, s{SROT}", f"s_and_b32 s{dst}, s{dst}, 0x3ffff", f"s_and_b32 s{ST2}, s{lin[0]}, 0xfffc0000",
                f"s_or_b32 s{dst}, s{dst}, s{ST2}", f"s_add_u32 s{lin[0]}, s{lin[0]}, 16384"]
    def kv_dma(kind, tile):
        base = kslot(tile) if kind == "k" else vslot(tile)
        srd = SK if kind == "k" else SV
        if CONTIG:
            r = []
            for i in range(4):
                r += (rot_calc(3, tile*16384) if i == 0 else ["s_add_u32 s3, s3, 4096"])
                r += [f"s_add_u32 m0, s{SW1K}, {base + 4096*i}",
                      (f"buffer_load_dwordx4 v{KDM if kind == 'k' else VDM}, {sr(srd,4)}, s3 offen{KVNT} lds", f"{kind}{tile}")]
            return r
        r = [f"s_add_u32 m0, s{SW4K}, {base}", f"s_mov_b32 s3, {tile*16384}"]
        for i in range(4):
            vo = KDM + i if kind == "k" else VDM + (i & 1)
            r.append((f"buffer_load_dwordx4 v{vo}, {sr(srd,4)}, s3 offen offset:{1024*i}{KVNT} lds", f"{kind}{tile}"))
        return r
    for it in w_dma(0) + x_dma(0): a.emit_item(it)
    a(f"""
    s_lshl_b32 s3, s{SB_}, 5
    s_add_u32 s3, s3, s{SH}
    s_lshl_b32 s3, s3, 18
    s_add_u32 s{SK}, s{SPTR+2}, s3
    s_addc_u32 s{SK+1}, s{SPTR+3}, 0
    s_mov_b32 s{SK+2}, 524288
    s_mov_b32 s{SK+3}, 0x20000
    s_add_u32 s{SV}, s{SPTR+4}, s3
    s_addc_u32 s{SV+1}, s{SPTR+5}, 0
    s_mov_b32 s{SV+2}, 524288
    s_mov_b32 s{SV+3}, 0x20000
    s_mul_i32 s3, s{SBR}, 120
    s_mul_i32 s{STMP}, s{SB_}, 15
    s_add_u32 s3, s3, s{STMP}
    s_lshl_b32 s3, s3, 17
    s_lshl_b32 s{STMP}, s{SH}, 12
    s_add_u32 s3, s3, s{STMP}
    s_add_u32 s{SO}, s{SWS}, s3
    s_addc_u32 s{SO+1}, s{SWS+1}, 0
    s_sub_u32 s{SO+2}, {15*131072}, s{STMP}
    s_mov_b32 s{SO+3}, 0x20000
    s_and_b32 s3, s2, 3
    s_lshl_b32 s3, s3, 5
    s_lshr_b32 s{STMP}, s2, 3
    s_add_u32 s3, s3, s{STMP}
    s_lshl_b32 s3, s3, 15
    s_add_u32 s{SQ}, s{SPTR+8}, s3
    s_addc_u32 s{SQ+1}, s{SPTR+9}, 0
    s_mov_b32 s{SQ+2}, 32768
    s_mov_b32 s{SQ+3}, 0x20000
    """)
    if opt.get("tlb", True):
        a(f"v_lshlrev_b32 v{t6}, 17, v{W}")
        a.emit_item((f"buffer_load_dword v{TD+4}, v{t6}, {sr(SK,4)}, 0 offen nt", "touch"))
        a.emit_item((f"buffer_load_dword v{TD+5}, v{t6}, {sr(SV,4)}, 0 offen nt", "touch"))
        a(f"v_lshlrev_b32 v{t6}, 20, v{W}")
        a(f"v_add_u32 v{t6}, 0xfe000, v{t6}")
        a.emit_item((f"buffer_load_dword v{TD+7}, v{t6}, {sr(SW,4)}, 0 offen", "touch"))
    fstamp()
    if CONTIG:
        a(f"""
        v_lshl_add_u32 v{t6}, v{W}, 2, v{t3}
        v_lshlrev_b32 v{t5}, 8, v{t6}
        v_xor_b32 v{t7}, v{t6}, v{t2}
        v_lshl_add_u32 v{KDM}, v{t7}, 4, v{t5}
        v_and_b32 v{t6}, 7, v{t6}
        v_lshlrev_b32 v{t6}, 1, v{t6}
        v_xor_b32 v{t7}, v{t6}, v{t2}
        v_lshl_add_u32 v{VDM}, v{t7}, 4, v{t5}
        """)
    else:
        a(f"""
        v_lshlrev_b32 v{t5}, 8, v{t3}
        v_lshl_add_u32 v{t5}, v{W}, 12, v{t5}
        """)
        for i in range(4):
            a(f"v_add_u32 v{t6}, {4*i}, v{t3}")
            a(f"v_xor_b32 v{t7}, v{t6}, v{t2}")
            a(f"v_lshl_add_u32 v{KDM+i}, v{t7}, 4, v{t5}")
            if i < 2:
                a(f"v_lshlrev_b32 v{t6}, 1, v{t6}")
                a(f"v_xor_b32 v{t7}, v{t6}, v{t2}")
                a(f"v_lshl_add_u32 v{VDM+i}, v{t7}, 4, v{t5}")
    a(f"v_lshlrev_b32 v{t5}, 8, v{t2}\nv_add_u32 v{t5}, {kslot(0)}, v{t5}")
    for s in range(4):
        a(f"v_add_u32 v{t6}, {4*s}, v{t3}")
        a(f"v_xor_b32 v{t6}, v{t6}, v{t2}")
        a(f"v_lshl_add_u32 v{KRD+s}, v{t6}, 4, v{t5}")
    a(f"""
    v_lshrrev_b32 v{t4}, 1, v{t2}
    v_xor_b32 v{t5}, v{t4}, v{t3}
    v_lshlrev_b32 v{t5}, 4, v{t5}
    v_lshl_add_u32 v{t5}, v{t2}, 7, v{t5}
    v_lshl_add_u32 v{XRD}, v{W}, 13, v{t5}
    v_xor_b32 v{XRD2}, 64, v{XRD}
    v_lshrrev_b32 v{t4}, 2, v{t2}
    """)
    a(f"""
    v_and_b32 v{t5}, 3, v{LN}
    v_lshl_add_u32 v{t6}, v{t3}, 2, v{t4}
    v_and_b32 v{t7}, 7, v{t6}
    v_lshlrev_b32 v{t6}, 8, v{t6}
    v_lshl_add_u32 v{t6}, v{t5}, 3, v{t6}
    """)
    for dt in range(8):
        a(f"v_xor_b32 v{t8}, {dt}, v{t7}")
        a(f"v_lshl_add_u32 v{VRD+dt}, v{t8}, 5, v{t6}")
    a(f"""
    v_mul_u32_u24 v{t6}, 2056, v{t3}
    v_lshl_add_u32 v{t6}, v{t4}, 8, v{t6}
    v_lshl_add_u32 v{t6}, v{t5}, 4, v{t6}
    v_add_u32 v{t6}, {WREG}, v{t6}
    """)
    for s in range(4):
        a(f"v_xor_b32 v{t8}, {s}, v{t4}")
        a(f"v_lshl_add_u32 v{WRD+s}, v{t8}, 6, v{t6}")
    a(f"""
    v_lshl_add_u32 v{OST}, v{W}, 19, v{LN16}
    v_lshl_add_u32 v{LN16}, v{W}, 13, v{LN16}
    v_add_u32 v{QST}, {STASH}, v{LN16}
    v_cmp_eq_u32 vcc, 0, v{t5}
    v_mov_b32 v{t6}, 0x3f803f80
    s_nop 0
    v_cndmask_b32 v{t6}, 0, v{t6}, vcc
    """)
    for i in range(4):
        a(f"v_accvgpr_write_b32 a{ONES+i}, v{t6}")
        a(f"v_accvgpr_write_b32 a{ZERO+i}, 0")
    Z = ar(ZERO, 4)
    for i in range(12): a(f"{MF32} {vr(16*i,16)}, {Z}, {Z}, 0")
    for i in range(4): a(f"{MF32} {ar(16*i,16)}, {Z}, {Z}, 0")

    def w_reads(st, hd, wset):
        return [f"ds_read_b64_tr_b16 {ar(WSET[wset]+(2*s+y)*4+aa*2,2)}, v{WRD+s} offset:{wslot(st,hd) + aa*1024 + 8*y}"
                for s in range(4) for y in range(2) for aa in range(2)]
    def x_reads(st):
        return [f"ds_read_b128 {ar(XSET[st&1]+qt*4,4)}, v{XRD2 if st & 1 else XRD} offset:{xslot(st>>1) + qt*2048}" for qt in range(4)]
    def k_reads(half, dst=KF):
        return [f"ds_read_b128 {ar(dst+(kt*4+s)*4,4)}, v{KRD+s} offset:{(half*2+kt)*4096}" for s in range(4) for kt in range(2)]
    def v_reads(half, dst=VF):
        return [f"ds_read_b64_tr_b16 {ar(dst+dt*4+aa*2,2)}, v{VRD+dt} offset:{half*8192 + aa*4096}" for dt in range(8) for aa in range(2)]
    def qk_mfmas(sb, c0, src=KF, qmajor=False):
        idx = [(s, kt, qt) for s in range(4) for kt in range(2) for qt in range(4)]
        if qmajor: idx = [(s, kt, qt) for qt in range(4) for s in range(4) for kt in range(2)]
        m = []
        for s, kt, qt in idx:
            d = vr(S(sb, qt, kt), 4)
            c = d if s else ("0" if c0 else vr(NEGM(qt), 4))
            m.append(f"{MF} {d}, {ar(src+(kt*4+s)*4,4)}, {vr(QF(qt,s),4)}, {c}")
        return m
    def pv_mfmas(pb, src=VF, qmajor=False):
        def pv(dt, qt): d = ar(OA(qt, dt), 4); return f"{MF} {d}, {ar(src+dt*4,4)}, {vr(P(pb,qt),4)}, {d}"
        def ls(qt): d = ar(LA(qt), 4); return f"{MF} {d}, {ar(ONES,4)}, {vr(P(pb,qt),4)}, {d}"
        if qmajor: return [ls(qt) for qt in range(4)] + [pv(dt, qt) for qt in range(4) for dt in range(8)]
        return [pv(dt, qt) for dt in range(8) for qt in range(4)] + [ls(qt) for qt in range(4)]
    def sm_E(sb, e): r = S(sb, e // 8) + e % 8; return f"v_exp_f32 v{r}, v{r}"
    def sm_C(sb, p): r = S(sb, p // 4) + 2 * (p % 4); return f"v_cvt_pk_bf16_f32 v{P(sb, p//4) + p%4}, v{r}, v{r+1}"
    def sm_place(G1, G2, sb):
        n1 = len(G1.m)
        def put(g, it): (G1.put(g, it) if g < n1 else G2.put(g - n1, it))
        for i in range(32): put(2*i, sm_E(sb, i))
        for p in range(16): put(4*p+3, sm_C(sb, p))
    def sm_stream(sb):
        r = []
        for p in range(16):
            r += [sm_E(sb, 2*p), sm_E(sb, 2*p+1)]
            if p: r.append(sm_C(sb, p-1))
        r.append(sm_C(sb, 15))
        return r
    def dma_at(G, g, it):
        G.put(g, it); G.cap[g] = 0
    def spaced(dm, first, stride):
        out = []; nd = 0
        for it in dm:
            if isinstance(it, tuple): out.append({"i": it, "at": first + nd * stride}); nd += 1
            else: out.append(it)
        return out
    SKB, STM, SMK, SMV, SEF, SINC = SM0K, SM0V, SKL, SVL, ST2, SROT
    def piece(kind, skip=False):
        srd, so = (SK, SKO) if kind == "k" else (SV, SVO)
        if kind == "k": pre = [f"s_xor_b32 s{STM}, s{so}, 0xc000", f"s_and_b32 s{STM}, s{STM}, 0xf000", f"s_add_u32 m0, s{STM}, s{SKB}"]
        else: pre = [f"s_and_b32 s{STM}, s{so}, 0xf000", f"s_add_u32 m0, s{STM}, s{SVB}"]
        if skip:
            pre += [f"s_bitcmp1_b32 s{SMK if kind == 'k' else SMV}, s{SCNT}", f"s_cselect_b32 s{SEF}, 0x40000000, s{so}", f"s_cselect_b32 s{SINC}, 0, 4096"]
        ins = f"buffer_load_dwordx4 v{KDM if kind == 'k' else VDM}, {sr(srd,4)}, s{SEF if skip else so} offen{KVNT} lds"
        post = [f"s_add_u32 s{so}, s{so}, " + (f"s{SINC}" if skip else "4096")]
        return pre, ins, post
    def piece_at(G, g, kind, skip=False):
        pre, ins, post = piece(kind, skip)
        for j, p in enumerate(pre):
            assert not G.S[g - len(pre) + j], (g, j)
            G.put(g - len(pre) + j, p)
        if not opt.get("no_dma"): dma_at(G, g, ins)
        G.put(g + 1, post[0])
    def piece_now(kind):
        pre, ins, post = piece(kind)
        return pre + ["s_nop 0", ins] + post
    def pkmul(r, s): return f"v_pk_mul_f32 {vr(r,2)}, {vr(r,2)}, {s}"

    for it in w_dma(1): a.emit_item(it)
    fstamp()
    a(f"s_waitcnt vmcnt({a.vm_need(['w0','x0'])})")
    a("s_barrier")
    for r in x_reads(0) + w_reads(0, 1, 0): a(r)
    a(f"s_mov_b32 s{SCNT}, 0")
    stamp()
    def half_step(k, st, hd, nxt, wait, dm, extra=None, order=None):
        a(wait)
        if k > 24: fstamp()
        idx = [(s, y, qt) for s in range(4) for y in range(2) for qt in range(4)]
        if order: idx = [(s, y, qt) for qt in order for s in range(4) for y in range(2)]
        m = []
        for s, y, qt in idx:
            d = vr(QACC(qt, s, y), 4) if hd == 0 else Q2ACC(qt, s, y)
            m.append(f"{MF} {d}, {ar(WSET[k&1]+(2*s+y)*4,4)}, {ar(XSET[st&1]+qt*4,4)}, {d}")
        G = Sched(m)
        if nxt is None: rd = k_reads(0)
        else: rd = (x_reads(nxt[0]) if nxt[1] == 1 else []) + w_reads(nxt[0], nxt[1], (k+1) & 1)
        G.fill(rd, 0, 26, maxper=1)
        nd = sum(isinstance(x, tuple) for x in dm)
        G.fill(spaced(dm, 1 if nd > 8 else 2, {16: 2, 8: 4}.get(nd, 7)), 0, 32, maxper=(2 if nd > 8 else 1))
        post = G.post; G.post = []
        left = None
        if extra:
            G.fill(extra[0], extra[1], 32)
            left = G.post; G.post = []
        G.post = post
        G.emit(a)
        return left
    NPF = opt.get("l2pf", 0)
    SPF = 50
    PFS = opt.get("l2pf_stride", 16384)
    def pf_dma():
        r = []
        for i in range(NPF):
            kind = "k" if (i & 1) == 0 or not opt.get("l2pf_v") else "v"
            r += [(f"buffer_load_dwordx4 {vr(Q2V + 4*(i%4),4)}, v{KDM if kind == 'k' else VDM}, {sr(SK if kind == 'k' else SV,4)}, s{SPF} offen{opt.get('l2pf_pol','')}", "pf")]
            if kind == "v" or not opt.get("l2pf_v"): r += [f"s_add_u32 s{SPF}, s{SPF}, {PFS}"]
        return r
    a(f"s_mov_b32 s{SPF}, {opt.get('l2pf_first', 4)*16384}")
    half_step(0, 0, 1, (0, 0), "s_waitcnt lgkmcnt(0)", w_dma(2) + x_dma(1) + w_dma(3))
    for it in pf_dma(): a.emit_item(it)
    a(f"s_waitcnt vmcnt({16+NPF}) lgkmcnt(0)")
    a("s_branch K1_QENTRY")
    a(".p2align 6\nK1_QLOOP:")
    for st in range(4):
        half_step(2*st, st, 1, (st, 0), "s_waitcnt lgkmcnt(0)", x_dma((st+3)//2) if st & 1 else pf_dma())
        dm = w_dma(st + 4)
        if st == 3: dm += [f"s_add_u32 s{SCNT}, s{SCNT}, 1", f"s_cmp_lt_u32 s{SCNT}, 3"]
        n = 16 + (NPF if st & 1 else 2*NPF)
        half_step(2*st+1, st, 0, (st+1, 1), f"s_waitcnt vmcnt({n}) lgkmcnt(0)\n" + ("K1_QENTRY:\n" if st == 0 else "") + "s_barrier", dm)
    a("s_cbranch_scc1 K1_QLOOP")
    stamp()
    a.vm = ["w13"]*4 + ["pf"]*NPF + ["w14"]*4 + ["x7"]*8 + ["w15"]*4
    finv = []
    for qt in (2, 3):
        for s in range(4):
            b = 128 + (qt-2)*32 + s*8
            finv += [f"v_mul_f32 v{b+i}, s{SC}, v{b+i}" for i in range(8)]
            finv += [f"v_cvt_pk_bf16_f32 v{Q2V+((qt-2)*4+s)*4+p}, v{b+2*p}, v{b+2*p+1}" for p in range(4)]
    def bar(tag): return f"s_waitcnt vmcnt({a.vm_need(tag)}) lgkmcnt(0)\ns_barrier"
    L0 = "s_waitcnt lgkmcnt(0)"
    wopf = [f"s_mov_b32 s{STMP}, 4096"] + [(f"buffer_load_dwordx4 a[248:251], v{LN16}, {sr(SQ,4)}, {'0' if j < 4 else 's%d' % STMP} offen offset:{(j%4)*1024}", "wo") for j in range(8)]
    WPA = opt.get("wopf_at", 0)
    half_step(24, 12, 1, (12, 0), L0, kv_dma("k", 0) if WPA != 24 else wopf)
    half_step(25, 12, 0, (13, 1), bar("w13"), wopf if WPA == 25 else (kv_dma("k", 0) if WPA == 24 else []))
    half_step(26, 13, 1, (13, 0), L0, kv_dma("k", 1))
    half_step(27, 13, 0, (14, 1), bar(["w14", "x7"]), [])
    half_step(28, 14, 1, (15, 1), bar("w15"), kv_dma("v", 0))
    left = half_step(29, 15, 1, (14, 0), L0, kv_dma("k", 2), extra=(finv, 20), order=(2, 3, 0, 1))
    left = half_step(30, 14, 0, (15, 0), L0, kv_dma("v", 1), extra=(left, 0))
    fina = []
    for qt in (0, 1):
        for s in range(4):
            tb = 128 + ((qt*4+s) % 4) * 16
            src = OA(qt, 2*s)
            fina += [f"v_accvgpr_read_b32 v{tb+i}, a{src+i}" for i in range(8)]
            fina += [f"v_mul_f32 v{tb+i}, s{SC}, v{tb+i}" for i in range(8)]
            fina += [f"v_cvt_pk_bf16_f32 v{tb+8+p}, v{tb+2*p}, v{tb+2*p+1}" for p in range(4)]
            fina.append(f"ds_write_b128 v{QST}, {vr(tb+8,4)} offset:{(qt*4+s)*1024}")
    left = half_step(31, 15, 0, None, bar("k0"), kv_dma("v", 2), extra=(left + fina, 0), order=(0, 1, 2, 3))
    stamp()
    i = 0
    while i < len(left):
        x = left[i]
        if x.startswith("v_mul_f32") and i + 1 < len(left) and left[i+1].startswith("v_mul_f32"):
            r = int(x.split()[1][1:-1])
            if r % 2 == 0:
                a(pkmul(r, sr(SC, 2))); i += 2; continue
        a(x); i += 1
    for qt in range(4):
        for s in range(4):
            b = QACC(qt, s, 0)
            for i in range(4): a(pkmul(b+2*i, sr(SC, 2)))
        if qt == 0: a("s_waitcnt lgkmcnt(0)")
        for s in range(4):
            b = QACC(qt, s, 0)
            for p in range(4): a(f"v_cvt_pk_bf16_f32 v{QF(qt,s)+p}, v{b+2*p}, v{b+2*p+1}")
    a(f"""
    s_mov_b32 s{SKO}, {3*16384}
    s_mov_b32 s{SVO}, {3*16384}
    s_mov_b32 s{SEV}, 15
    s_mov_b32 s{SVB}, s{SW1K}
    s_add_u32 s{SKB}, s{SW1K}, {KRING}
    s_mov_b32 s{SMK}, {opt.get('mk0', 0x5555)}
    s_mov_b32 s{SMV}, {opt.get('mv0', 0x4444)}
    """)
    if opt.get("trip_ts"):
        a("s_mov_b32 s34, 0\ns_mov_b32 s32, 0\nv_mbcnt_lo_u32_b32 v205, -1, 0\nv_mbcnt_hi_u32_b32 v205, -1, v205\nv_mov_b32 v207, 0")
    u0, u1, u2, u3 = 210, 211, 212, 213
    a(f"""
    s_load_dwordx2 s[32:33], s[0:1], 88
    s_memrealtime s[34:35]
    s_and_b32 s3, s2, 3
    s_lshl_b32 s3, s3, 20
    s_bfe_u32 s{STMP}, s2, 0x20003
    s_lshl_b32 s{STMP}, s{STMP}, 8
    s_add_u32 s3, s3, s{STMP}
    s_add_u32 s{SW}, s{SPTR+8}, s3
    s_addc_u32 s{SW+1}, s{SPTR+9}, 0
    s_sub_u32 s{SW+2}, 1048576, s{STMP}
    v_mbcnt_lo_u32_b32 v{u0}, -1, 0
    v_mbcnt_hi_u32_b32 v{u0}, -1, v{u0}
    v_lshlrev_b32 v{VLZ}, 20, v{u0}
    v_lshrrev_b32 v{u1}, 4, v{u0}
    v_and_b32 v{u0}, 15, v{u0}
    v_lshlrev_b32 v{u2}, 1, v{u1}
    v_xor_b32 v{u2}, v{u2}, v{u0}
    s_and_b32 s3, s2, 3
    s_lshl_b32 s3, s3, 2
    v_xor_b32 v{u2}, s3, v{u2}
    v_lshlrev_b32 v{u2}, 4, v{u2}
    v_lshl_add_u32 v{u2}, v{u1}, 10, v{u2}
    s_lshl_b32 s3, s{SW1K}, 3
    v_add_u32 v{WD2}, s3, v{u2}
    v_xor_b32 v{WD2+1}, 128, v{WD2}
    v_add_u32 v{WD2+1}, 3072, v{WD2+1}
    v_lshlrev_b32 v{u2}, 11, v{u0}
    v_lshl_add_u32 v{u2}, v{u1}, 3, v{u2}
    s_lshl_b32 s3, s{SW1K}, 7
    v_add_u32 v{OUTV}, s3, v{u2}
    s_waitcnt lgkmcnt(0)
    s_mov_b32 s{SX}, s32
    s_mov_b32 s{SX+1}, s33
    s_mov_b32 s{SX+2}, 4
    s_andn2_b32 s3, s34, 30
    s_or_b32 s3, s3, 1
    v_mov_b32 v{u2}, s3
    v_mov_b32 v{u3}, 0
    """)
    a.emit_item((f"buffer_atomic_cmpswap {vr(u2,2)}, v{VLZ}, {sr(SX,4)}, s{SW1K} offen sc1", "nonce"))
    pro_vm = list(a.vm)
    a("K1_PRO:")
    stamp()
    a("s_waitcnt lgkmcnt(0)")
    zm = [f"{MF32} {ar(16*i,16)}, {Z}, {Z}, 0" for i in range(9)]
    G = Sched(qk_mfmas(0, True, KF, True) + zm + qk_mfmas(1, False, VF, True))
    for gp in (9, 27, 44, 62): piece_at(G, gp, "k")
    G.fill(k_reads(1, VF), 0, 16, maxper=1)
    G.tail(40, "s_waitcnt lgkmcnt(0)")
    mx = []
    for qt in range(4):
        s0 = S(0, qt); m_ = TMPQ(qt); t_ = m_ + 1; ng = NEGM(qt)
        bias = f"s{SBIAS}" if qt == 3 else "0"
        ch = [f"v_max3_f32 v{m_}, v{s0}, v{s0+1}, v{s0+2}", f"v_max3_f32 v{t_}, v{s0+3}, v{s0+4}, v{s0+5}",
              f"v_max3_f32 v{m_}, v{m_}, v{s0+6}, v{s0+7}", f"v_max_f32 v{m_}, v{m_}, v{t_}", f"v_mov_b32 v{t_}, v{m_}",
              {"i": f"v_permlane16_swap_b32 v{m_}, v{t_}", "new": True}, f"v_max_f32 v{m_}, v{m_}, v{t_}", f"v_mov_b32 v{t_}, v{m_}",
              {"i": f"v_permlane32_swap_b32 v{m_}, v{t_}", "new": True}, f"v_max_f32 v{m_}, v{m_}, v{t_}",
              f"v_sub_f32 v{ng}, {bias}, v{m_}"] + [f"v_mov_b32 v{ng+i}, v{ng}" for i in range(1, 4)] + \
             [f"v_add_f32 v{s0+i}, v{s0+i}, v{ng}" for i in range(8)]
        ch[0] = {"i": ch[0], "at": 8*qt + 11}
        mx += ch
    g = G.fill(mx, 0, len(G.m))
    assert not G.post, len(G.post)
    for qt in range(4):
        gg = [i for i, v in enumerate(G.V) if f"v_mov_b32 v{NEGM(qt)+3}, v{NEGM(qt)}" in v][0]
        assert gg < 41 + 8*qt - 1, (qt, gg)
    G.fill(sm_stream(0), g, len(G.m))
    tailv = G.post; G.post = []
    G.emit(a)
    a.vm = list(pro_vm)
    for s in range(4): a(f"v_subrev_u32 v{KRD+s}, 16384, v{KRD+s}")
    a(f"s_waitcnt vmcnt(8) lgkmcnt(0)")
    a("s_barrier")
    kr = k_reads(0)
    for i in range(2):
        pre, ins, post = piece("k")
        for p in pre: a(p)
        for r in kr[4*i:4*i+4]: a(r)
        a(ins)
        for p in post: a(p)
    a(f"""
    s_mov_b32 s{SA_}, {kslot(1) - KRING}
    s_mov_b32 s{SBB}, 0
    s_mov_b32 s{SCNT}, 0
    """)
    for it in tailv: a(it)
    a("s_waitcnt lgkmcnt(0)")
    stamp()
    a(".p2align 6")
    a("K1_LOOP:")
    def trip(last=None, mid=False):
        G1 = Sched(qk_mfmas(0, False)); G2 = Sched(pv_mfmas(0)); G3 = Sched(qk_mfmas(1, False)); G4 = Sched(pv_mfmas(1))
        sm_place(G1, G2, 1); sm_place(G3, G4, 0)
        if last: xw = last(G1, G2, G3, G4)
        else:
            xw = opt.get('xwait', 4)
            piece_at(G4, 9, "k"); piece_at(G4, 25, "k"); piece_at(G1, 9, "k", True); piece_at(G1, 25, "k")
            piece_at(G2, 9, "v"); piece_at(G2, 25, "v"); piece_at(G3, 9, "v", True); piece_at(G3, 25, "v")
        G1.fill(v_reads(0), 0, 30); G1.put(31, "s_waitcnt lgkmcnt(0)")
        G2.fill(k_reads(1), 0, 30, maxper=1)
        G2.put(35, "s_waitcnt lgkmcnt(0)")
        G3.fill(v_reads(1), 0, 30)
        G3.put(31, f"s_waitcnt vmcnt({xw}) lgkmcnt(0)" if not opt.get("no_dma") else "s_waitcnt lgkmcnt(0)")
        G3.tail(31, "s_barrier")
        if last:
            if mid:
                G2.fill([f"v_subrev_u32 v{KRD+s}, 16384, v{KRD+s}" for s in range(4)], 32, 36)
                G4.fill(k_reads(0), 0, 30, maxper=1)
                G4.put(35, "s_waitcnt lgkmcnt(0)")
            G4.fill([f"v_add_u32 v{VRD+dt}, 16384, v{VRD+dt}" for dt in range(8)], 21, 36)
        else:
            sal = [f"s_sub_u32 s{SN}, s{SA_}, 16384", f"s_and_b32 s{SN}, s{SN}, 0xffff", f"s_sub_u32 s{SDK}, s{SN}, s{SA_}", f"s_mov_b32 s{SA_}, s{SN}",
                   f"s_add_u32 s{SN}, s{SBB}, 16384", f"s_and_b32 s{SN}, s{SN}, 0xffff", f"s_sub_u32 s{SDV}, s{SN}, s{SBB}", f"s_mov_b32 s{SBB}, s{SN}",
                   f"s_add_u32 s{SCNT}, s{SCNT}, 1"]
            G2.fill(sal, 12, 22, maxper=1)
            G2.fill([f"v_add_u32 v{KRD+s}, s{SDK}, v{KRD+s}" for s in range(4)], 32, 36)
            G4.fill(k_reads(0), 0, 30, maxper=1)
            G4.fill([f"v_add_u32 v{VRD+dt}, s{SDV}, v{VRD+dt}" for dt in range(8)], 21, 36)
            G4.put(34, f"s_cmp_lt_u32 s{SCNT}, s{SEV}")
            G4.put(35, "s_waitcnt lgkmcnt(0)")
            G4.tail(35, "s_cbranch_scc1 K1_LOOP")
        if opt.get("exp_slow") and not last:
            for G in (G1, G2, G3, G4):
                for j in range(opt["exp_slow"]): G.tail(2 + 6*j, "s_nop 3")
        for G in (G1, G2, G3, G4):
            assert not G.post
            G.emit(a)
    trip()
    a(f"s_cmp_eq_u32 s{SR}, 1\ns_cbranch_scc1 K1_FINAL")
    OSTNT = opt.get("o_store", " sc1"); OSTNT2 = opt.get("o_store2", OSTNT)
    def oepi(qt, final):
        r = []
        for s in range(4):
            tb = [0, 8, 32, 40][s]
            pb = [64, 68, 72, 76][s]
            if not final and qt >= 2: pb = Q2V + ((qt-2)*4+s)*4
            if final: tb = 224 + 8*(s & 1); pb = 240 + 4*s
            src = OA(qt, 2*s)
            r += [f"v_accvgpr_read_b32 v{tb+i}, a{src+i}" for i in range(8)]
            r += [f"v_pk_mul_f32 {vr(tb+2*i,2)}, {vr(tb+2*i,2)}, {vr(RCP+2*qt,2)}" for i in range(4)]
            r += [f"v_cvt_pk_bf16_f32 v{pb+p}, v{tb+2*p}, v{tb+2*p+1}" for p in range(4)]
            if final: r.append(f"buffer_store_dwordx4 {vr(pb,4)}, v{OST}, {sr(SO,4)}, s{SOO+qt} offen offset:{s*1024}{OSTNT2}")
            elif qt < 2: r.append(f"ds_write_b128 v{QST}, {vr(pb,4)} offset:{(qt*4+s)*1024}")
        return r
    nk = 2 - 4 + bin(opt.get('mk0', 0x5555)).count('1'); nv = 4 + bin(opt.get('mv0', 0x4444)).count('1')
    assert nk >= 0
    order = ["k", "k"][:nk]
    while len(order) < nk + nv:
        if order.count("v") < nv: order.append("v")
        if order.count("k") < nk: order.append("k")
    lread = [f"v_accvgpr_read_b32 v{RCP+2*qt}, a{LA(qt)}" for qt in range(4)]
    rest_m = [f"ds_read_b128 {vr(QF(j//4, j%4),4)}, v{QST} offset:{j*1024}" for j in range(8)]
    rcps = [f"v_rcp_f32 v{RCP+2*qt}, v{RCP+2*qt}" for qt in range(4)] + [f"v_mov_b32 v{RCP+2*qt+1}, v{RCP+2*qt}" for qt in range(4)]
    rest_v = [f"v_mov_b32 v{QF(2,0)+i}, v{Q2V+i}" for i in range(32)]
    def drain(final, hook30=None, hook31=None):
        for r in v_reads(0): a(r)
        sm = sm_stream(1)
        for x in sm[:9]: a(x)
        a("s_waitcnt lgkmcnt(0)")
        G = Sched(pv_mfmas(0))
        V2 = KF if final else XF
        G.fill(v_reads(1, V2), 0, 36, maxper=2)
        if final: hook30(G)
        else:
            for j in range(4): piece_at(G, 9 + 8*j, order[j])
        G.fill(sm[9:], 0, 36)
        G.emit(a)
        a("s_waitcnt lgkmcnt(0)")
        G = Sched(pv_mfmas(1, V2, True))
        if final: hook31(G)
        else:
            for j in range(min(3, len(order) - 4)): piece_at(G, 3 + 5*j, order[4+j])
        st1 = [f"v_subrev_u32 v{VRD+dt}, {3*16384}, v{VRD+dt}" for dt in range(8)]
        st1 += [{"i": lread[0], "at": 9}] + lread[1:]
        masks = ["s[32:33]", "s[34:35]", "s[36:37]", "vcc"]
        st1 += [f"v_cmp_nge_f32 {masks[qt]}, s{STMP}, v{RCP+2*qt}" for qt in range(4)]
        G.put(3, f"s_mov_b32 s{STMP}, 0x{opt.get('thresh', 0x53800000):08x}")
        g = G.fill(st1, 0, 16)
        assert not G.post
        G.put(16, "s_or_b64 s[32:33], s[32:33], s[34:35]")
        G.put(17, "s_or_b64 s[36:37], s[36:37], vcc")
        G.put(18, "s_or_b64 s[32:33], s[32:33], s[36:37]")
        G.tail(18, "s_cbranch_scc1 K1_SLOW")
        G.fill(rcps, g + 1, 36)
        if not final:
            G.fill(rest_m, 19, 36)
            G.fill(rest_v, 19, 36)
        G.emit(a)
    def dump_stamps(rnd, vt):
        if opt.get('dbg_span'):
            a('s_waitcnt lgkmcnt(0)\ns_mov_b32 s96, s66\ns_mov_b32 s98, s86')
            return
        if not stamps: return
        a("s_waitcnt lgkmcnt(0)")
        a(f"""
        s_add_u32 s{SDMP}, s{SWS}, 0x4000000
        s_addc_u32 s{SDMP+1}, s{SWS+1}, 0
        s_mov_b32 s{SDMP+2}, 0x100000
        s_mov_b32 s{SDMP+3}, 0x20000
        s_mul_i32 s3, s2, 3
        s_add_u32 s3, s3, {rnd}
        s_lshl_b32 s3, s3, 10
        s_lshr_b32 s{STMP}, s{SW4K}, 4
        s_add_u32 s3, s3, s{STMP}
        v_mov_b32 v{vt}, s3
        """)
        for i in range(0, nstamp[0], 2):
            for j in range(4): a(f"v_mov_b32 v{vt+4+j}, s{STS+2*i+j}")
            a(f"buffer_store_dwordx4 {vr(vt+4,4)}, v{vt}, {sr(SDMP,4)}, 0 offen offset:{8*i}")
            a("s_nop 1")
    nl = nstamp[0]
    stamp()
    drain(False)
    a("K1_SLOW_RET:")
    stamp()
    a("s_waitcnt lgkmcnt(0)")
    F0 = opt.get('flush_at', 11)
    rem = order[7:]
    ep = [x for qt in range(3) for x in oepi(qt, False)] + [f"ds_read_b128 {ar(XF+4*j,4)}, v{QST} offset:{j*1024}" for j in range(8)] + oepi(3, False)
    step = len(ep) // max(len(rem), 1)
    for j, x in enumerate(ep):
        if j % step == 0 and j // step < len(rem):
            for y in piece_now(rem[j // step]): a(y)
        a(x)
    n0 = nstamp[0]
    dump_stamps(0, 96)
    a(f"""
    buffer_load_dword v{VTAG}, v{VLZ}, {sr(SX,4)}, 0 offen sc1
    s_add_u32 s{SX}, s{SWS}, {FLAGOFF}
    s_addc_u32 s{SX+1}, s{SWS+1}, 0
    s_mov_b32 s{SX+2}, 0x40000
    s_lshl_b32 s3, s{SBR}, 3
    s_add_u32 s3, s3, s{SB_}
    s_lshl_b32 s3, s3, 2
    s_and_b32 s{STMP}, s2, 3
    s_add_u32 s3, s3, s{STMP}
    s_lshl_b32 s3, s3, 9
    s_lshr_b32 s{STMP}, s{SW1K}, 3
    s_add_u32 s{SFO}, s3, s{STMP}
    s_mov_b32 s{SR}, 1
    s_mov_b32 s{SEV}, 13
    s_mov_b32 s{SMK}, {opt.get('mk1', 0x0555)}
    s_mov_b32 s{SMV}, {opt.get('mv1', 0)}
    s_branch K1_PRO
    K1_FINAL:
    """)
    stash_rd = []
    nstamp[0] = nl
    import optail
    optail.gen(a, opt, globals(), locals())
    KA, VA, LNv = RCP, RCP + 1, RCP + 2
    SU, SU2, SE_ = 32, 33, 34
    def VFR(dt): return S(1, dt >> 1) + 4 * (dt & 1)
    def kload():
        for kt in range(2):
            for s_ in range(4):
                a(f"buffer_load_dwordx4 {ar(VF+(kt*4+s_)*4,4)}, v{KA}, {sr(SK,4)}, s{SU2 if kt else SU} offen offset:{s_*64}")
    a(f"""
    K1_SLOW:
    s_waitcnt vmcnt(0)
    s_nop 7
    s_nop 7
    v_mbcnt_lo_u32_b32 v{LNv}, -1, 0
    v_mbcnt_hi_u32_b32 v{LNv}, -1, v{LNv}
    v_and_b32 v{VA}, 15, v{LNv}
    v_lshrrev_b32 v{LNv}, 4, v{LNv}
    v_lshlrev_b32 v{KA}, 8, v{VA}
    v_lshl_add_u32 v{KA}, v{LNv}, 4, v{KA}
    v_lshlrev_b32 v{VA}, 1, v{VA}
    v_lshl_add_u32 v{VA}, v{LNv}, 10, v{VA}
    s_lshl_b32 s{SU}, s{SR}, 18
    s_add_u32 s{SE_}, s{SU}, 262144
    """)
    for qt in range(4): a(f"v_mov_b32 v{TMPQ(qt)}, 0xff800000")
    a(f"K1_SL1:\ns_add_u32 s{SU2}, s{SU}, 4096")
    kload()
    a("s_waitcnt vmcnt(0)")
    for m in qk_mfmas(0, True, VF): a(m)
    a("s_nop 7")
    for qt in range(4):
        for i in range(0, 8, 2): a(f"v_max3_f32 v{TMPQ(qt)}, v{TMPQ(qt)}, v{S(0,qt)+i}, v{S(0,qt)+i+1}")
    a(f"s_add_u32 s{SU}, s{SU}, 8192\ns_cmp_lt_u32 s{SU}, s{SE_}\ns_cbranch_scc1 K1_SL1")
    for qt in range(4):
        m_ = TMPQ(qt); t_ = m_ + 1; ng = NEGM(qt)
        bias = f"s{SBIAS}" if qt == 3 else "0"
        for x in [f"v_mov_b32 v{t_}, v{m_}", f"v_permlane16_swap_b32 v{m_}, v{t_}", f"v_max_f32 v{m_}, v{m_}, v{t_}", f"v_mov_b32 v{t_}, v{m_}",
                  f"v_permlane32_swap_b32 v{m_}, v{t_}", f"v_max_f32 v{m_}, v{m_}, v{t_}", f"v_sub_f32 v{ng}, {bias}, v{m_}"] + \
                 [f"v_mov_b32 v{ng+i}, v{ng}" for i in range(1, 4)]: a(x)
    for x in zm: a(x)
    a(f"s_lshl_b32 s{SU}, s{SR}, 18\nK1_SL2:\ns_add_u32 s{SU2}, s{SU}, 4096")
    kload()
    for aa in range(2):
        def HT(dt, jp): n = dt*2 + jp; return P(1, n >> 2) + (n & 3)
        for dt in range(8):
            for j in range(4):
                d = HT(dt, j >> 1) if j & 1 else VFR(dt) + aa*2 + (j >> 1)
                a(f"buffer_load_ushort v{d}, v{VA}, {sr(SV,4)}, s{SU2 if aa else SU} offen offset:{j*256+dt*32}")
        a("s_waitcnt vmcnt(0)")
        for dt in range(8):
            for jp in range(2):
                d = VFR(dt) + aa*2 + jp
                a(f"v_lshl_or_b32 v{d}, v{HT(dt,jp)}, 16, v{d}")
    for m in qk_mfmas(0, False, VF): a(m)
    a("s_nop 7")
    for x in sm_stream(0): a(x)
    a("s_nop 1")
    for dt in range(8):
        for qt in range(4):
            d = ar(OA(qt, dt), 4)
            a(f"{MF} {d}, {vr(VFR(dt),4)}, {vr(P(0,qt),4)}, {d}")
    for qt in range(4):
        d = ar(LA(qt), 4)
        a(f"{MF} {d}, {ar(ONES,4)}, {vr(P(0,qt),4)}, {d}")
    a(f"s_add_u32 s{SU}, s{SU}, 8192\ns_cmp_lt_u32 s{SU}, s{SE_}\ns_cbranch_scc1 K1_SL2")
    a("s_nop 7")
    for x in lread + rcps: a(x)
    a(f"s_cmp_eq_u32 s{SR}, 1\ns_cbranch_scc1 K1_SLOW_RET2")
    for x in rest_m + rest_v: a(x)
    a(f"""
    s_branch K1_SLOW_RET
    K1_END:
    s_endpgm
    """)

def desc(name, vgpr=512, acc=256, sgpr=102):
    return f""".amdhsa_kernel {name}
  .amdhsa_next_free_vgpr {vgpr}
  .amdhsa_next_free_sgpr {sgpr}
  .amdhsa_accum_offset {acc}
  .amdhsa_group_segment_fixed_size 0
  .amdhsa_kernarg_size 104
  .amdhsa_user_sgpr_count 2
  .amdhsa_user_sgpr_kernarg_segment_ptr 1
  .amdhsa_system_sgpr_workgroup_id_x 1
.end_amdhsa_kernel
"""
```

```python
from asmlib import *
def gen(a, opt, G_, L_):
    g = dict(G_); g.update(L_)
    for k in ("MF MF32 SK SV SX SW SO SQ SWS SBR SB_ STMP SW1K SW4K SFO SCNT SOO VRD OST LN16 WD2 OUTV VLZ VTAG KF VF XF Q2V QST RCP ZERO "
              "stamp dump_stamps nstamp Z n0 SEV drain dma_at OA trip piece").split():
        globals()[k] = g[k]
    R = 8
    def ACC(q, l): return ((l >> 1)*4 + q)*8 + (l & 1)*4
    def AF(k, l): return 176 + ((k-(32-R))*2+l)*4 if (k >= 32-R and l < 2) else KF + l*4
    def O1(q, s): return ar(XF+(q*4+s)*4, 4) if q < 2 else vr(Q2V+((q-2)*4+s)*4, 4)
    def O2r(q, s): return 128 + (s*4+q)*4
    def BF(k, q):
        if k < 4: return O1(q, k)
        if k < 8: return vr(O2r(q, k-4), 4)
        return ar(OA(q, k & 7), 4)
    KT = [(0, 0, s) for s in range(4)] + [(0, 1, s) for s in range(4)] + \
         [(x, 0, s) for s in range(4) for x in (1, 2, 3)] + [(x, 1, s) for s in range(4) for x in (1, 2, 3)]
    SRO, SE, SD = SK, SV, SQ
    SB4 = [46, 47, 50, 51]
    SWO, SW2K, STAG, SF2, SXF, SP = 52, 53, 54, 28, 29, 30
    SO2 = [45, 48, 49, 101]
    VL4, FLV = 204, 208
    def ucalc(dst, k, sh):
        x, hd, s = KT[k]
        return [f"s_xor_b32 s{dst}, s{SP}, {x*8 + hd*4 + s}", f"s_lshl_b32 s{dst}, s{dst}, {sh}"]
    def d_ops(k):
        return ucalc(SWO, k, 15) + [f"s_add_u32 m0, s{SW2K}, {(k & 7)*8192}",
             (f"buffer_load_dwordx4 v{WD2}, {sr(SW,4)}, s{SWO} offen lds", f"d{k}"),
             (f"buffer_load_dwordx4 v{WD2+1}, {sr(SW,4)}, s{SWO} offen offset:1024 lds", f"d{k}")]
    def b_ops(k):
        r = ucalc(SB4[0], k, 10)
        for q in range(4):
            if q: r.append(f"s_add_u32 s{SB4[0]}, s{SB4[0]}, 131072")
            r.append((f"buffer_load_dwordx4 {BF(k,q)}, v{OST}, {sr(SRO,4)}, s{SB4[0]} offen sc1", f"b{k}"))
        return r
    def a_reads(k, l):
        return [f"ds_read_b64_tr_b16 {ar(AF(k,l)+aa*2,2)}, v{VRD+l} offset:{(k&7)*8192 + aa*4096}" for aa in range(2)]
    def st1(q, s): return (f"buffer_store_dwordx4 {O1(q,s)}, v{OST}, {sr(SO,4)}, s{SOO+q} offen offset:{s*1024} sc1", "o1")
    def st2(q, s): return (f"buffer_store_dwordx4 {vr(O2r(q,s),4)}, v{OST}, {sr(SO,4)}, s{SO2[q]} offen offset:{s*1024} sc1", "o2" if s < 2 else "o3")
    wopf = [(f"buffer_load_dwordx4 a[248:251], v{LN16}, {sr(SQ,4)}, {'0' if j < 4 else 's%d' % SB4[2]} offen offset:{(j%4)*1024}", "wo") for j in range(8)]
    def place(G, ops, gaps):
        gi = iter(gaps); pend = []; prev = -1
        for x in ops:
            if isinstance(x, tuple):
                gp = next(gi)
                assert gp > prev
                c = [j for j in range(prev + 1, gp) if not G.S[j]] or list(range(prev + 1, gp)) or [gp]
                for i, y in enumerate(pend): G.put(c[max(0, len(c) - len(pend) + i)], y)
                pend = []; prev = gp
                G.put(gp, x); G.cap[gp] = min(G.cap[gp], 0)
            else: pend.append(x)
        assert not pend
    a.vm = ["v31"]*4 + ["kd"]*2
    a(f"""
    s_lshl_b32 s{SW2K}, s{SW1K}, 1
    s_and_b32 s{SP}, s2, 24
    s_mov_b32 s{SB4[2]}, 4096
    """)
    if opt.get("code_pf2", False):
        a(f"""
        s_getpc_b64 s[32:33]
        s_mov_b32 s34, TAIL_BYTES
        s_mov_b32 s35, 0x20000
        s_lshr_b32 s3, s2, 3
        s_lshl_b32 s3, s3, 10
        s_lshl_b32 s{STMP}, s{SW1K}, 9
        v_subrev_u32 v{FLV}, s{STMP}, v{OST}
        s_lshl_b32 s{STMP}, s{SW1K}, 5
        s_add_u32 s3, s3, s{STMP}
        """)
        a.emit_item((f"buffer_load_dwordx4 a[252:255], v{FLV}, s[32:35], s3 offen", "cpf"))
    o1 = [st1(q, s) for s in range(4) for q in range(4)]
    seq = (wopf + o1) if opt.get("wo_first", True) else (o1[:8] + wopf + o1[8:])
    NVL = bin(opt.get("mv1", 0)).count("1"); NKL = bin(opt.get("mk1", 0x0555)).count("1")
    assert NVL <= 4 and NKL <= 6
    vp = []
    for i in range(NVL):
        pre, ins, post = piece("v")
        vp.append(([f"s_add_u32 s47, s47, 4096"] if i else []) + pre + [(ins, "v31")])
    items = vp + [[x] for x in seq]
    def take(n):
        r = [y for x in items[:n] for y in x]; del items[:n]; return r
    def t13(G1, G2, G3, G4):
        place(G1, take(3), [5, 13, 25]); place(G2, take(4), [5, 13, 21, 29]); place(G3, take(3), [1, 13, 25]); place(G4, take(3), [5, 17, 33])
        return 10
    def t14(G1, G2, G3, G4):
        place(G1, take(3), [1, 13, 25]); place(G2, take(5), [1, 9, 17, 25, 33]); place(G3, take(3), [1, 13, 25])
        n = min(2, len(items))
        place(G4, d_ops(0) + d_ops(1) + d_ops(2) + take(n), [3, 5, 9, 13, 17, 19, 29, 33][:6+n])
        return 24 - NVL
    trip(t13, True)
    trip(t14)
    stamp()
    def h30(G):
        n = len(items)
        place(G, d_ops(3) + d_ops(4) + take(n), [9, 12, 16, 19, 25, 32][:4+n])
    def h31(G): pass
    drain(True, h30, h31)
    a("K1_SLOW_RET2:")
    stamp()
    a(f"""
    s_load_dwordx2 s[36:37], s[0:1], 80
    s_lshl_b32 s{STMP}, s{SP}, 10
    s_sub_u32 s{SRO}, s{SO}, s{STMP}
    s_subb_u32 s{SRO+1}, s{SO+1}, 0
    s_add_u32 s{SRO+2}, s{SO+2}, s{STMP}
    s_lshr_b32 s3, s{SP}, 1
    s_add_u32 s{SF2}, s3, s{SFO}
    s_mov_b32 s{SEV}, 0
    v_readfirstlane_b32 s{STAG}, v{VTAG}
    v_lshrrev_b32 v{VL4}, 18, v{VLZ}
    v_min_u32 v{VL4}, 12, v{VL4}
    """)
    for q in range(4): a(f"s_add_u32 s{SO2[q]}, s{SOO+q}, 4096")
    a(f"s_waitcnt vmcnt({a.vm_need(['d0','d1'])}) lgkmcnt(0)\ns_barrier")
    for l in range(8):
        for r in a_reads(0, l): a(r)
    def ep(q, s, pk):
        t = O2r(q, s); src = OA(q, 2*s)
        r = [f"v_accvgpr_read_b32 v{t+i}, a{src+i}" for i in range(8)]
        if pk: r += [f"v_pk_mul_f32 {vr(t+2*i,2)}, {vr(t+2*i,2)}, {vr(RCP+2*q,2)}" for i in range(4)]
        else: r += [f"v_mul_f32 v{t+i}, v{t+i}, v{RCP+2*q}" for i in range(8)]
        r += [f"v_cvt_pk_bf16_f32 v{t+p}, v{t+2*p}, v{t+2*p+1}" for p in range(4)]
        return r
    NPRE = opt.get("ep_pre", 4)
    grp = [(q, s) for s in range(4) for q in range(4)]
    for q, s in grp[:NPRE]:
        for x in ep(q, s, True): a(x)
    eps = [(s, ep(q, s, False)) for q, s in grp[NPRE:]]
    setup = f"""s_and_b32 s35, s2, 3
    s_lshl_b32 s{STMP}, s35, 15
    s_sub_u32 s{SE}, s{SO}, s{STMP}
    s_subb_u32 s{SE+1}, s{SO+1}, 0
    s_add_u32 s{SE+2}, s{SO+2}, s{STMP}
    s_lshl_b32 s3, s{SBR}, 3
    s_add_u32 s3, s3, s{SB_}
    s_lshl_b32 s3, s3, 5
    s_add_u32 s3, s3, s{SP}
    s_lshl_b32 s{SXF}, s3, 8
    s_add_u32 s{SXF}, s{SXF}, 32768
    s_lshr_b32 s3, s{SW1K}, 3
    s_add_u32 s{SXF}, s{SXF}, s3
    s_lshl_b32 s3, s{SBR}, 10
    s_lshl_b32 s{STMP}, s{SP}, 5
    s_add_u32 s3, s3, s{STMP}
    s_lshl_b32 s{STMP}, s35, 6
    s_add_u32 s3, s3, s{STMP}
    s_sub_u32 s{SD+2}, {240*2048}, s3
    s_mul_i32 s{STMP}, s{SB_}, {240*2048}
    s_add_u32 s3, s3, s{STMP}
    s_add_u32 s{SD}, s36, s3
    s_addc_u32 s{SD+1}, s37, 0"""
    a(setup)
    nstamp[0] = 0
    stamp()
    a("s_waitcnt lgkmcnt(0)")
    plan = {k: [] for k in range(32)}
    for k in range(0, 27): plan[k] = d_ops(k+5)
    PUB = {1: opt.get("pub1", 0), 2: opt.get("pub2", 13), 3: opt.get("pub3", 20)}
    POL = {1: opt.get("pol1", 4), 2: opt.get("pol2", 15), 3: opt.get("pol3", 22)}
    assert PUB[3] >= 20
    o2 = [st2(q, s) for s in range(4) for q in range(4)]
    S2 = opt.get("o2_first", 2)
    LB = opt.get("lb", 4)
    for kb in range(8, 32):
        f, k0 = (1, 8) if kb < 20 else ((2, 20) if kb < 26 else (3, 26))
        at = max(kb - LB, POL[f] + 2 + (kb - k0) // 2)
        assert at < kb
        plan[at] += b_ops(kb)
    for i, x in enumerate(o2): plan[S2 + i].append(x)
    for f in POL: plan[POL[f]].insert(0, (f"buffer_load_dword v{FLV}, v{VL4}, {sr(SX,4)}, s{SFO} offen offset:{16*(f-1)} sc1", f"f{f}"))
    chk = f"v_cmp_ne_u32 vcc, s{STAG}, v{FLV}"
    for k in range(32):
        need = []
        if k >= 8: need.append(f"b{k}")
        if k & 1: need += [f"d{k+1}", f"d{k+2}"]
        for f in PUB:
            if k == PUB[f]: need.append(f"o{f}"); assert not any(isinstance(x, tuple) and x[1] == f"o{f}" for kk in range(k, 32) for x in plan[kk])
        if any(t in a.vm for t in need): a(f"s_waitcnt vmcnt({a.vm_need(need)})")
        if k & 1 and k < 31: a("s_barrier")
        for f in PUB:
            if k == PUB[f]: a.emit_item((f"buffer_store_dword v{VTAG}, v{VLZ}, {sr(SX,4)}, s{SF2} offen offset:{16*(f-1)} sc1", "p"))
        ls = list(range(8)) if k < 32 - R else list(range(2, 8))
        m = [f"{MF} {vr(ACC(q,l),4)}, {ar(AF(k,l),4)}, {BF(k,q)}, {vr(ACC(q,l),4) if k else '0'}" for l in ls for q in range(4)]
        G = Sched(m); n = len(m)
        if k < 31:
            extra = [] if len(ls) == 8 else a_reads(k+1, 0) + a_reads(k+1, 1)
            for j, x in enumerate(extra): G.put(j, x)
            for i, l in enumerate(ls):
                rd = a_reads(k+1, l)
                if i < len(ls) - 1: G.put(4*i + 4, rd[0]); G.put(4*i + 5, rd[1])
                else: G.tail(n - 1, rd)
        for i in range(len(ls)): G.put(4*i + 3, f"s_waitcnt lgkmcnt({6 if k < 31 else max(0, 8 - 2*i)})")
        nv = sum(isinstance(x, tuple) for x in plan[k])
        slots = [x for x in range(3, n) if x % 4 in (2, 3)]
        if nv > len(slots): slots = list(range(3, n))
        if nv: slots = [slots[(i * len(slots)) // nv] for i in range(nv)]
        place(G, plan[k], slots)
        if S2 <= k < S2 + 16: assert 16 - len(eps) > k - S2, (k, len(eps))
        if eps:
            flat = [x for _, e in eps for x in e]
            G.fill(flat, 0, n)
            left = G.post; G.post = []
            used = len(flat) - len(left)
            new = []
            for s_, e in eps:
                if used >= len(e): used -= len(e); continue
                e = e[used:]; used = 0
                if s_ <= k + 1 - 4: G.post += e
                else: new.append((s_, e))
            eps = new
        G.emit(a)
        for f in POL:
            if k == POL[f] + 1:
                a(f"s_waitcnt vmcnt({a.vm_need('f%d' % f)})\n{chk}\ns_cmp_eq_u32 vcc_lo, 0\ns_cbranch_scc0 K1_SPIN{f}\nK1_CHK{f}_OK:")
        if opt.get("op_fine"):
            if k in opt["op_fine"]:
                a(f"s_memtime s[{64+2*(1+opt['op_fine'].index(k))}:{65+2*(1+opt['op_fine'].index(k))}]\ns_waitcnt lgkmcnt(0)")
        elif k == 7 or k == 31: stamp(); (a("s_waitcnt lgkmcnt(0)") if g["stamps"] else None)
    m = [f"{MF} {vr(ACC(q,l),4)}, {ar(AF(k,l),4)}, {BF(k,q)}, {vr(ACC(q,l),4)}" for k in range(32-R, 32) for l in range(2) for q in range(4)]
    G = Sched(m)
    snd = []
    for j in range(1, 4):
        for q in range(4):
            r = 32*j + 8*q
            snd += [f"v_cvt_pk_bf16_f32 v{r+p}, v{r+2*p}, v{r+2*p+1}" for p in range(4)]
            snd.append((f"buffer_store_dwordx4 {vr(r,4)}, v{OST}, {sr(SO,4)}, s{SOO+q} offen offset:{j*1024} sc1", f"x{j}"))
    gl = G.fill(snd, 0, len(m))
    sal = []
    for j in range(4): sal += [f"s_xor_b32 s3, s35, {j}", f"s_lshl_b32 s{32+j if j < 3 else 36}, s3, 15" if j else "s_nop 0", "s_lshl_b32 s3, s3, 9", f"s_add_u32 s{SB4[j]}, s3, s{SXF}"]
    sal += [f"s_mov_b32 s{SEV}, 0"]
    G.fill(sal, gl + 1, len(m), maxper=1)
    G.emit(a)
    SXR = {1: 33, 2: 34, 3: 36}
    for j in range(1, 4):
        a(f"s_waitcnt vmcnt({a.vm_need('x%d' % j)})")
        a.emit_item((f"buffer_store_dword v{VTAG}, v{VLZ}, {sr(SX,4)}, s{SB4[j]} offen offset:{4*j} sc1", "p"))
    for q in range(1, 4): a(f"v_add_u32 v{128+q}, {q*131072}, v{OST}")
    for q in range(4): a(f"s_mov_b32 s{SOO+q}, {q*32768}")
    a(f"""
    K1_POLLX:
    buffer_load_dword v{FLV}, v{VL4}, {sr(SX,4)}, s{SB4[0]} offen sc1
    s_add_u32 s{SEV}, s{SEV}, 1
    s_waitcnt vmcnt(0)
    {chk}
    s_cmp_gt_u32 s{SEV}, 0x20000
    s_cbranch_scc1 K1_GOX
    s_and_b32 s3, vcc_lo, 14
    s_cbranch_scc1 K1_POLLX
    K1_GOX:
    """)
    if not opt.get("op_fine"): stamp()
    for q in range(4):
        for j in range(1, 4):
            a(f"buffer_load_dwordx4 {vr(32*j+8*q,4)}, v{128+q if q else OST}, {sr(SE,4)}, s{SXR[j]} offen offset:{j*1024} sc1")
    a(f"s_mov_b32 s3, 0xffff0000")
    for q in range(4):
        a(f"s_waitcnt vmcnt({3*(3-q) + 2*q})")
        for j in range(1, 4):
            r = 32*j + 8*q
            for p in (3, 2, 1, 0):
                a(f"v_and_b32 v{r+2*p+1}, s3, v{r+p}")
                a(f"v_lshlrev_b32 v{r+2*p}, 16, v{r+p}")
            for p in range(4): a(f"v_pk_add_f32 {vr(8*q+2*p,2)}, {vr(8*q+2*p,2)}, {vr(r+2*p,2)}")
        for l in range(2):
            r = 8*q + 4*l
            a(f"v_cvt_pk_bf16_f32 v{r}, v{r}, v{r+1}")
            a(f"v_cvt_pk_bf16_f32 v{r+1}, v{r+2}, v{r+3}")
            a(f"buffer_store_dwordx2 {vr(r,2)}, v{OUTV}, {sr(SD,4)}, s{SOO+q} offen offset:{l*32}")
    if g["stamps"] and not opt.get("dbg_span"):
        a("s_waitcnt vmcnt(0)")
        a(f"s_memtime s[4:5]\ns_memrealtime s[6:7]\ns_waitcnt lgkmcnt(0)")
        nstamp[0] = 16
        dump_stamps(1, 224)
        a("s_waitcnt vmcnt(0)")
        for j in range(4): a(f"s_mov_b32 s{64+j}, s{4+j}")
        nstamp[0] = 2
        dump_stamps(2, 224)
    if opt.get("dbg_span"):
        a("s_waitcnt vmcnt(0)\ns_memrealtime s[6:7]\ns_load_dwordx2 s[8:9], s[0:1], 88\ns_waitcnt lgkmcnt(0)\ns_mov_b32 s10, 64\ns_mov_b32 s11, 0x20000")
        a("s_not_b32 s96, s96\nv_mov_b32 v0, s96\nv_mov_b32 v1, s6")
        a(f"buffer_atomic_umax v0, v{VLZ}, s[8:11], 0 offen offset:4 sc1\nbuffer_atomic_umax v1, v{VLZ}, s[8:11], 0 offen offset:8 sc1")
        for i in range(8):
            a(f"v_mov_b32 v{2+i}, s{66+4*i}\nbuffer_atomic_umax v{2+i}, v{VLZ}, s[8:11], 0 offen offset:{12+4*i} sc1")
        a(f"v_mov_b32 v10, s98\nbuffer_atomic_umax v10, v{VLZ}, s[8:11], 0 offen offset:44 sc1")
    a("s_endpgm")
    for f in POL:
        a(f"""
        K1_SPIN{f}:
        s_add_u32 s{SEV}, s{SEV}, 1
        s_cmp_gt_u32 s{SEV}, 0x20000
        s_cbranch_scc1 K1_CHK{f}_OK
        buffer_load_dword v{FLV}, v{VL4}, {sr(SX,4)}, s{SFO} offen offset:{16*(f-1)} sc1
        s_waitcnt vmcnt(0)
        {chk}
        s_cmp_eq_u32 vcc_lo, 0
        s_cbranch_scc0 K1_SPIN{f}
        s_branch K1_CHK{f}_OK
        """)
```

```python
from asmlib import *
import struct

MF = "v_mfma_f32_16x16x32_bf16"
MF32 = "v_mfma_f32_32x32x16_bf16"
def QACC(qt, s, y): return 32*qt + (2*s+y)*4
def S(b, qt, kt=0): return 32*qt + 8*b + 4*kt
def P(b, qt): return 32*qt + 16 + 4*b
def NEGM(qt): return 32*qt + 24
def TMPQ(qt): return 32*qt + 28
def QF(qt, s): return 128 + (qt*4+s)*4
KRD, VRD, KDM, VDM, XDM, WDM, XRD, WRD, OST, QST, LN16 = 192, 196, 204, 208, 210, 214, 209, 217, 221, 222, 223
XRD2 = 216
Q2V = 224
T0 = 224
RCP = 210
def OA(qt, dt): return (qt*8+dt)*4
def LA(qt): return 128 + qt*4
KF, VF, XF = 144, 176, 208
WSET = [144, 176]
XSET = [208, 224]
ONES, ZERO = 240, 244
def Q2ACC(qt, s, y):
    return ar(OA(qt, 2*s+y), 4) if qt < 2 else vr(128 + (qt-2)*32 + (2*s+y)*4, 4)
SK, SV, SX, SW, SO, SQ = 4, 8, 12, 16, 20, 24
SPTR, SWS = 28, 38
SW4K, SR, SB_, SH, SBR = 40, 41, 42, 43, 44
SCNT, SKO, SVO, SM0K, SM0V, SDK, SDV, SA_, SBB, SN = 45, 46, 47, 48, 49, 50, 51, 52, 53, 54
SOO = 55
STMP, SWW, SBIAS = 59, 60, 61
SC = 62
SW1K = 100
SVB = 43
SFO = 60
SROT, SKL, SVL, ST2, SEV = 101, 28, 29, 30, 31
SXO, SWO0, SWO1, SW8K = 46, 47, 48, 49
STS = 64
VRING, WREG, KRING = 0, 65536, 98304
STASH = 65536
WHALF = 8224
def xslot(u): return (u & 1) * 32768
def wslot(st, hd): return (((3 - st) & 3) * 2 + hd) * WHALF
def kslot(t): return KRING + ((3 - t) & 3) * 16384
def vslot(t): return VRING + (t & 3) * 16384

EXOFF, FLAGOFF = 0x2000000, 0x3A00000
WD2, OUTV, VLZ, VTAG = 205, 207, 218, 219
FLG = 124
SDMP = 96
CSCALE = struct.unpack("<I", struct.pack("<f", 1.4426950408889634 * 128 ** -0.5))[0]

def gen_k1(a, name, opt):
    stamps = opt.get("stamps", False)
    KVNT = opt.get("kv_pol", " nt")
    XWP = opt.get("xw_pol", " nt")
    nstamp = [0]
    fine = opt.get("fine", False)
    def fstamp():
        if fine:
            a(f"s_memtime {sr(STS + 2*nstamp[0], 2)}")
            nstamp[0] += 1
    def stamp():
        if opt.get("qfine"):
            if nstamp[0] < 3: a(f"s_memtime s[{90+2*nstamp[0]}:{91+2*nstamp[0]}]"); nstamp[0] += 1
            return
        if fine:
            if nstamp[0] < 17: fstamp()
        elif stamps:
            a(f"s_memtime {sr(STS + 2*nstamp[0], 2)}")
            a(f"s_memrealtime {sr(STS + 2*nstamp[0] + 2, 2)}")
            nstamp[0] += 2
    a(f".globl {name}\n.p2align 8\n.type {name},@function\n{name}:")
    a(f"""
    s_cmp_ge_u32 s2, 256
    s_cbranch_scc1 K1_END
    s_bfe_u32 s{SBR}, s2, 0x10002
    s_mul_i32 s3, s{SBR}, 40
    s_load_dwordx8 {sr(SPTR,8)}, s[0:1], s3
    s_add_u32 s3, s3, 32
    s_load_dwordx2 {sr(SPTR+8,2)}, s[0:1], s3
    s_load_dwordx2 {sr(SWS,2)}, s[0:1], 96
    s_getpc_b64 {sr(SQ,2)}
    K1_PC:
    """)
    stamp()
    W, LN = T0, T0 + 1
    t2, t3, t4, t5, t6, t7, t8, t9 = range(T0 + 2, T0 + 10)
    ROTINIT = (f"s_lshr_b32 s{SROT}, s2, 3\ns_add_u32 s{SROT}, s{SROT}, s2\ns_and_b32 s{SROT}, s{SROT}, 15\ns_lshl_b32 s{SROT}, s{SROT}, 14"
               if opt.get("rot", False) else f"s_mov_b32 s{SROT}, 0")
    TD = T0 + 12
    a(f"""
    v_lshrrev_b32 v{W}, 6, v0
    v_and_b32 v{LN}, 63, v0
    v_readfirstlane_b32 s3, v{W}
    v_lshlrev_b32 v{LN16}, 4, v{LN}
    s_lshl_b32 s{SW4K}, s3, 12
    s_lshl_b32 s{SW1K}, s3, 10
    s_lshl_b32 s{SW8K}, s3, 13
    s_mul_i32 s{SWW}, s3, 2056
    s_cmp_eq_u32 s3, 3
    s_cselect_b32 s{SBIAS}, 0xf149f2ca, 0
    s_mov_b32 s{SR}, 0
    s_mov_b32 s{SC}, 0x{CSCALE:08x}
    s_mov_b32 s{SC+1}, 0x{CSCALE:08x}
    s_lshr_b32 s{SB_}, s2, 5
    s_and_b32 s{STMP}, s2, 3
    s_lshl_b32 s{SH}, s{STMP}, 2
    s_bfe_u32 s{STMP}, s2, 0x20003
    s_add_u32 s{SH}, s{SH}, s{STMP}
    s_lshl_b32 s{SH}, s{SH}, 1
    {ROTINIT}
    s_mov_b32 s{SOO}, 0
    s_mov_b32 s{SOO+1}, 131072
    s_mov_b32 s{SOO+2}, 262144
    s_mov_b32 s{SOO+3}, 393216
    """)
    if opt.get("code_pf", True):
        a(f"""
        s_mov_b32 s{SQ+2}, CODE_BYTES
        s_mov_b32 s{SQ+3}, 0x20000
        s_lshr_b32 s3, s2, 3
        s_lshl_b32 s3, s3, 10
        v_lshl_add_u32 v{t2}, v{W}, 15, v{LN16}
        """)
        a.emit_item((f"buffer_load_dwordx4 {vr(TD,4)}, v{t2}, {sr(SQ,4)}, s3 offen", "touch"))
    a(f"""
    v_lshrrev_b32 v{t2}, 3, v{LN}
    v_lshl_add_u32 v{t2}, v{W}, 6, v{t2}
    v_lshlrev_b32 v{t2}, 10, v{t2}
    v_lshrrev_b32 v{t3}, 4, v{LN}
    v_and_b32 v{t5}, 7, v{LN}
    v_xor_b32 v{t4}, v{t3}, v{t5}
    v_lshl_add_u32 v{XDM}, v{t4}, 4, v{t2}
    v_xor_b32 v{XDM+1}, 64, v{XDM}
    v_add_u32 v{XDM+1}, {7*1024}, v{XDM+1}
    v_add_u32 v{XDM+2}, {14*1024}, v{XDM}
    v_add_u32 v{XDM+3}, {14*1024}, v{XDM+1}
    """)
    a(f"""
    v_and_b32 v{t2}, 15, v{LN}
    v_lshlrev_b32 v{t4}, 2, v{t3}
    v_xor_b32 v{t4}, v{t4}, v{t2}
    v_lshlrev_b32 v{t4}, 4, v{t4}
    v_lshl_add_u32 v{t5}, v{W}, 3, v{t3}
    v_lshl_add_u32 v{WDM}, v{t5}, 13, v{t4}
    v_add_u32 v{WDM+1}, {4*8192-1024}, v{WDM}
    s_mov_b32 s{SXO}, 0
    s_mov_b32 s{SWO0}, 0
    s_mov_b32 s{SWO1}, 256
    s_waitcnt lgkmcnt(0)
    """)
    fstamp()
    a(f"""
    s_mul_i32 s3, s{SB_}, 245760
    s_add_u32 s{SX}, s{SPTR}, s3
    s_addc_u32 s{SX+1}, s{SPTR+1}, 0
    s_mov_b32 s{SX+2}, {opt.get('exp_rows', 240)*1024}
    s_mov_b32 s{SX+3}, 0x20000
    s_lshl_b32 s3, s{SH}, 8
    s_add_u32 s{SW}, s{SPTR+6}, s3
    s_addc_u32 s{SW+1}, s{SPTR+7}, 0
    s_sub_u32 s{SW+2}, 4194304, s3
    s_mov_b32 s{SW+3}, 0x20000
    """)
    def w_dma(st):
        r = []
        for hd, so in ((1, SWO1), (0, SWO0)):
            r += [f"s_add_u32 m0, s{SWW}, {WREG + wslot(st, hd)}"]
            r += [(f"buffer_load_dwordx4 v{WDM+i}, {sr(SW,4)}, s{so} offen offset:{1024*i}{XWP} lds", f"w{st}") for i in range(2)]
            r += [f"s_add_u32 s{so}, s{so}, 262144"]
        return r
    def x_dma(u):
        r = []
        for hf in range(2):
            r += [f"s_add_u32 m0, s{SW8K}, {xslot(u) + hf*4096}"]
            r += [(f"buffer_load_dwordx4 v{XDM+i}, {sr(SX,4)}, s{SXO} offen offset:{1024*i}{XWP} lds", f"x{u}") for i in range(4)]
            r += [f"s_add_u32 s{SXO}, s{SXO}, 32768" if hf == 0 else f"s_sub_u32 s{SXO}, s{SXO}, {32768-128}"]
        return r
    CONTIG = opt.get("contig", True)
    ROT = opt.get("rot", False)
    def rot_calc(dst, lin):
        if isinstance(lin, int):
            return [f"s_add_u32 s{dst}, s{SROT}, {lin}", f"s_and_b32 s{dst}, s{dst}, 0x3ffff"]
        return [f"s_add_u32 s{dst}, s{lin[0]}, s{SROT}", f"s_and_b32 s{dst}, s{dst}, 0x3ffff", f"s_and_b32 s{ST2}, s{lin[0]}, 0xfffc0000",
                f"s_or_b32 s{dst}, s{dst}, s{ST2}", f"s_add_u32 s{lin[0]}, s{lin[0]}, 16384"]
    def kv_dma(kind, tile):
        base = kslot(tile) if kind == "k" else vslot(tile)
        srd = SK if kind == "k" else SV
        if CONTIG:
            r = []
            for i in range(4):
                r += (rot_calc(3, tile*16384) if i == 0 else ["s_add_u32 s3, s3, 4096"])
                r += [f"s_add_u32 m0, s{SW1K}, {base + 4096*i}",
                      (f"buffer_load_dwordx4 v{KDM if kind == 'k' else VDM}, {sr(srd,4)}, s3 offen{KVNT} lds", f"{kind}{tile}")]
            return r
        r = [f"s_add_u32 m0, s{SW4K}, {base}", f"s_mov_b32 s3, {tile*16384}"]
        for i in range(4):
            vo = KDM + i if kind == "k" else VDM + (i & 1)
            r.append((f"buffer_load_dwordx4 v{vo}, {sr(srd,4)}, s3 offen offset:{1024*i}{KVNT} lds", f"{kind}{tile}"))
        return r
    for it in w_dma(0) + x_dma(0): a.emit_item(it)
    a(f"""
    s_lshl_b32 s3, s{SB_}, 5
    s_add_u32 s3, s3, s{SH}
    s_lshl_b32 s3, s3, 18
    s_add_u32 s{SK}, s{SPTR+2}, s3
    s_addc_u32 s{SK+1}, s{SPTR+3}, 0
    s_mov_b32 s{SK+2}, 524288
    s_mov_b32 s{SK+3}, 0x20000
    s_add_u32 s{SV}, s{SPTR+4}, s3
    s_addc_u32 s{SV+1}, s{SPTR+5}, 0
    s_mov_b32 s{SV+2}, 524288
    s_mov_b32 s{SV+3}, 0x20000
    s_mul_i32 s3, s{SBR}, 120
    s_mul_i32 s{STMP}, s{SB_}, 15
    s_add_u32 s3, s3, s{STMP}
    s_lshl_b32 s3, s3, 17
    s_lshl_b32 s{STMP}, s{SH}, 12
    s_add_u32 s3, s3, s{STMP}
    s_add_u32 s{SO}, s{SWS}, s3
    s_addc_u32 s{SO+1}, s{SWS+1}, 0
    s_sub_u32 s{SO+2}, {15*131072}, s{STMP}
    s_mov_b32 s{SO+3}, 0x20000
    s_and_b32 s3, s2, 3
    s_lshl_b32 s3, s3, 5
    s_lshr_b32 s{STMP}, s2, 3
    s_add_u32 s3, s3, s{STMP}
    s_lshl_b32 s3, s3, 15
    s_add_u32 s{SQ}, s{SPTR+8}, s3
    s_addc_u32 s{SQ+1}, s{SPTR+9}, 0
    s_mov_b32 s{SQ+2}, 32768
    s_mov_b32 s{SQ+3}, 0x20000
    """)
    if opt.get("tlb", True):
        a(f"v_lshlrev_b32 v{t6}, 17, v{W}")
        a.emit_item((f"buffer_load_dword v{TD+4}, v{t6}, {sr(SK,4)}, 0 offen nt", "touch"))
        a.emit_item((f"buffer_load_dword v{TD+5}, v{t6}, {sr(SV,4)}, 0 offen nt", "touch"))
        a(f"v_lshlrev_b32 v{t6}, 20, v{W}")
        a(f"v_add_u32 v{t6}, 0xfe000, v{t6}")
        a.emit_item((f"buffer_load_dword v{TD+7}, v{t6}, {sr(SW,4)}, 0 offen", "touch"))
    fstamp()
    if CONTIG:
        a(f"""
        v_lshl_add_u32 v{t6}, v{W}, 2, v{t3}
        v_lshlrev_b32 v{t5}, 8, v{t6}
        v_xor_b32 v{t7}, v{t6}, v{t2}
        v_lshl_add_u32 v{KDM}, v{t7}, 4, v{t5}
        v_and_b32 v{t6}, 7, v{t6}
        v_lshlrev_b32 v{t6}, 1, v{t6}
        v_xor_b32 v{t7}, v{t6}, v{t2}
        v_lshl_add_u32 v{VDM}, v{t7}, 4, v{t5}
        """)
    else:
        a(f"""
        v_lshlrev_b32 v{t5}, 8, v{t3}
        v_lshl_add_u32 v{t5}, v{W}, 12, v{t5}
        """)
        for i in range(4):
            a(f"v_add_u32 v{t6}, {4*i}, v{t3}")
            a(f"v_xor_b32 v{t7}, v{t6}, v{t2}")
            a(f"v_lshl_add_u32 v{KDM+i}, v{t7}, 4, v{t5}")
            if i < 2:
                a(f"v_lshlrev_b32 v{t6}, 1, v{t6}")
                a(f"v_xor_b32 v{t7}, v{t6}, v{t2}")
                a(f"v_lshl_add_u32 v{VDM+i}, v{t7}, 4, v{t5}")
    a(f"v_lshlrev_b32 v{t5}, 8, v{t2}\nv_add_u32 v{t5}, {kslot(0)}, v{t5}")
    for s in range(4):
        a(f"v_add_u32 v{t6}, {4*s}, v{t3}")
        a(f"v_xor_b32 v{t6}, v{t6}, v{t2}")
        a(f"v_lshl_add_u32 v{KRD+s}, v{t6}, 4, v{t5}")
    a(f"""
    v_lshrrev_b32 v{t4}, 1, v{t2}
    v_xor_b32 v{t5}, v{t4}, v{t3}
    v_lshlrev_b32 v{t5}, 4, v{t5}
    v_lshl_add_u32 v{t5}, v{t2}, 7, v{t5}
    v_lshl_add_u32 v{XRD}, v{W}, 13, v{t5}
    v_xor_b32 v{XRD2}, 64, v{XRD}
    v_lshrrev_b32 v{t4}, 2, v{t2}
    """)
    a(f"""
    v_and_b32 v{t5}, 3, v{LN}
    v_lshl_add_u32 v{t6}, v{t3}, 2, v{t4}
    v_and_b32 v{t7}, 7, v{t6}
    v_lshlrev_b32 v{t6}, 8, v{t6}
    v_lshl_add_u32 v{t6}, v{t5}, 3, v{t6}
    """)
    for dt in range(8):
        a(f"v_xor_b32 v{t8}, {dt}, v{t7}")
        a(f"v_lshl_add_u32 v{VRD+dt}, v{t8}, 5, v{t6}")
    a(f"""
    v_mul_u32_u24 v{t6}, 2056, v{t3}
    v_lshl_add_u32 v{t6}, v{t4}, 8, v{t6}
    v_lshl_add_u32 v{t6}, v{t5}, 4, v{t6}
    v_add_u32 v{t6}, {WREG}, v{t6}
    """)
    for s in range(4):
        a(f"v_xor_b32 v{t8}, {s}, v{t4}")
        a(f"v_lshl_add_u32 v{WRD+s}, v{t8}, 6, v{t6}")
    a(f"""
    v_lshl_add_u32 v{OST}, v{W}, 19, v{LN16}
    v_lshl_add_u32 v{LN16}, v{W}, 13, v{LN16}
    v_add_u32 v{QST}, {STASH}, v{LN16}
    v_cmp_eq_u32 vcc, 0, v{t5}
    v_mov_b32 v{t6}, 0x3f803f80
    s_nop 0
    v_cndmask_b32 v{t6}, 0, v{t6}, vcc
    """)
    for i in range(4):
        a(f"v_accvgpr_write_b32 a{ONES+i}, v{t6}")
        a(f"v_accvgpr_write_b32 a{ZERO+i}, 0")
    Z = ar(ZERO, 4)
    for i in range(12): a(f"{MF32} {vr(16*i,16)}, {Z}, {Z}, 0")
    for i in range(4): a(f"{MF32} {ar(16*i,16)}, {Z}, {Z}, 0")

    def w_reads(st, hd, wset):
        return [f"ds_read_b64_tr_b16 {ar(WSET[wset]+(2*s+y)*4+aa*2,2)}, v{WRD+s} offset:{wslot(st,hd) + aa*1024 + 8*y}"
                for s in range(4) for y in range(2) for aa in range(2)]
    def x_reads(st):
        return [f"ds_read_b128 {ar(XSET[st&1]+qt*4,4)}, v{XRD2 if st & 1 else XRD} offset:{xslot(st>>1) + qt*2048}" for qt in range(4)]
    def k_reads(half, dst=KF):
        return [f"ds_read_b128 {ar(dst+(kt*4+s)*4,4)}, v{KRD+s} offset:{(half*2+kt)*4096}" for s in range(4) for kt in range(2)]
    def v_reads(half, dst=VF):
        return [f"ds_read_b64_tr_b16 {ar(dst+dt*4+aa*2,2)}, v{VRD+dt} offset:{half*8192 + aa*4096}" for dt in range(8) for aa in range(2)]
    def qk_mfmas(sb, c0, src=KF, qmajor=False):
        idx = [(s, kt, qt) for s in range(4) for kt in range(2) for qt in range(4)]
        if qmajor: idx = [(s, kt, qt) for qt in range(4) for s in range(4) for kt in range(2)]
        m = []
        for s, kt, qt in idx:
            d = vr(S(sb, qt, kt), 4)
            c = d if s else ("0" if c0 else vr(NEGM(qt), 4))
            m.append(f"{MF} {d}, {ar(src+(kt*4+s)*4,4)}, {vr(QF(qt,s),4)}, {c}")
        return m
    def pv_mfmas(pb, src=VF, qmajor=False):
        def pv(dt, qt): d = ar(OA(qt, dt), 4); return f"{MF} {d}, {ar(src+dt*4,4)}, {vr(P(pb,qt),4)}, {d}"
        def ls(qt): d = ar(LA(qt), 4); return f"{MF} {d}, {ar(ONES,4)}, {vr(P(pb,qt),4)}, {d}"
        if qmajor: return [ls(qt) for qt in range(4)] + [pv(dt, qt) for qt in range(4) for dt in range(8)]
        return [pv(dt, qt) for dt in range(8) for qt in range(4)] + [ls(qt) for qt in range(4)]
    def sm_E(sb, e): r = S(sb, e // 8) + e % 8; return f"v_exp_f32 v{r}, v{r}"
    def sm_C(sb, p): r = S(sb, p // 4) + 2 * (p % 4); return f"v_cvt_pk_bf16_f32 v{P(sb, p//4) + p%4}, v{r}, v{r+1}"
    def sm_place(G1, G2, sb):
        n1 = len(G1.m)
        def put(g, it): (G1.put(g, it) if g < n1 else G2.put(g - n1, it))
        for i in range(32): put(2*i, sm_E(sb, i))
        for p in range(16): put(4*p+3, sm_C(sb, p))
    def sm_stream(sb):
        r = []
        for p in range(16):
            r += [sm_E(sb, 2*p), sm_E(sb, 2*p+1)]
            if p: r.append(sm_C(sb, p-1))
        r.append(sm_C(sb, 15))
        return r
    def dma_at(G, g, it):
        G.put(g, it); G.cap[g] = 0
    def spaced(dm, first, stride):
        out = []; nd = 0
        for it in dm:
            if isinstance(it, tuple): out.append({"i": it, "at": first + nd * stride}); nd += 1
            else: out.append(it)
        return out
    SKB, STM, SMK, SMV, SEF, SINC = SM0K, SM0V, SKL, SVL, ST2, SROT
    def piece(kind, skip=False):
        srd, so = (SK, SKO) if kind == "k" else (SV, SVO)
        if kind == "k": pre = [f"s_xor_b32 s{STM}, s{so}, 0xc000", f"s_and_b32 s{STM}, s{STM}, 0xf000", f"s_add_u32 m0, s{STM}, s{SKB}"]
        else: pre = [f"s_and_b32 s{STM}, s{so}, 0xf000", f"s_add_u32 m0, s{STM}, s{SVB}"]
        if skip:
            pre += [f"s_bitcmp1_b32 s{SMK if kind == 'k' else SMV}, s{SCNT}", f"s_cselect_b32 s{SEF}, 0x40000000, s{so}", f"s_cselect_b32 s{SINC}, 0, 4096"]
        ins = f"buffer_load_dwordx4 v{KDM if kind == 'k' else VDM}, {sr(srd,4)}, s{SEF if skip else so} offen{KVNT} lds"
        post = [f"s_add_u32 s{so}, s{so}, " + (f"s{SINC}" if skip else "4096")]
        return pre, ins, post
    def piece_at(G, g, kind, skip=False):
        pre, ins, post = piece(kind, skip)
        for j, p in enumerate(pre):
            assert not G.S[g - len(pre) + j], (g, j)
            G.put(g - len(pre) + j, p)
        if not opt.get("no_dma"): dma_at(G, g, ins)
        G.put(g + 1, post[0])
    def piece_now(kind):
        pre, ins, post = piece(kind)
        return pre + ["s_nop 0", ins] + post
    def pkmul(r, s): return f"v_pk_mul_f32 {vr(r,2)}, {vr(r,2)}, {s}"

    for it in w_dma(1): a.emit_item(it)
    fstamp()
    a(f"s_waitcnt vmcnt({a.vm_need(['w0','x0'])})")
    a("s_barrier")
    for r in x_reads(0) + w_reads(0, 1, 0): a(r)
    a(f"s_mov_b32 s{SCNT}, 0")
    stamp()
    def half_step(k, st, hd, nxt, wait, dm, extra=None, order=None):
        a(wait)
        if opt.get("qfine") and k < 8 and k % 2 == 1:
            a("s_memtime s[88:89]\ns_waitcnt lgkmcnt(0)")
            for j in range(12): a(f"s_mov_b32 s{64+2*j}, s{66+2*j}")
        if k > 24: fstamp()
        idx = [(s, y, qt) for s in range(4) for y in range(2) for qt in range(4)]
        if order: idx = [(s, y, qt) for qt in order for s in range(4) for y in range(2)]
        m = []
        for s, y, qt in idx:
            d = vr(QACC(qt, s, y), 4) if hd == 0 else Q2ACC(qt, s, y)
            m.append(f"{MF} {d}, {ar(WSET[k&1]+(2*s+y)*4,4)}, {ar(XSET[st&1]+qt*4,4)}, {d}")
        G = Sched(m)
        if nxt is None: rd = k_reads(0)
        else: rd = (x_reads(nxt[0]) if nxt[1] == 1 else []) + w_reads(nxt[0], nxt[1], (k+1) & 1)
        G.fill(rd, 0, 26, maxper=1)
        nd = sum(isinstance(x, tuple) for x in dm)
        G.fill(spaced(dm, 1 if nd > 8 else 2, {16: 2, 8: 4}.get(nd, 7)), 0, 32, maxper=(2 if nd > 8 else 1))
        post = G.post; G.post = []
        left = None
        if extra:
            G.fill(extra[0], extra[1], 32)
            left = G.post; G.post = []
        G.post = post
        G.emit(a)
        return left
    NPF = opt.get("l2pf", 0)
    SPF = 50
    PFS = opt.get("l2pf_stride", 16384)
    def pf_dma():
        r = []
        for i in range(NPF):
            kind = "k" if (i & 1) == 0 or not opt.get("l2pf_v") else "v"
            r += [(f"buffer_load_dwordx4 {vr(Q2V + 4*(i%4),4)}, v{KDM if kind == 'k' else VDM}, {sr(SK if kind == 'k' else SV,4)}, s{SPF} offen{opt.get('l2pf_pol','')}", "pf")]
            if kind == "v" or not opt.get("l2pf_v"): r += [f"s_add_u32 s{SPF}, s{SPF}, {PFS}"]
        return r
    a(f"s_mov_b32 s{SPF}, {opt.get('l2pf_first', 4)*16384}")
    half_step(0, 0, 1, (0, 0), "s_waitcnt lgkmcnt(0)", w_dma(2) + x_dma(1) + w_dma(3))
    for it in pf_dma(): a.emit_item(it)
    a(f"s_waitcnt vmcnt({16+NPF}) lgkmcnt(0)")
    a("s_branch K1_QENTRY")
    a(".p2align 6\nK1_QLOOP:")
    for st in range(4):
        half_step(2*st, st, 1, (st, 0), "s_waitcnt lgkmcnt(0)", x_dma((st+3)//2) if st & 1 else pf_dma())
        dm = w_dma(st + 4)
        if st == 3: dm += [f"s_add_u32 s{SCNT}, s{SCNT}, 1", f"s_cmp_lt_u32 s{SCNT}, 3"]
        n = 16 + (NPF if st & 1 else 2*NPF)
        half_step(2*st+1, st, 0, (st+1, 1), f"s_waitcnt vmcnt({n}) lgkmcnt(0)\n" + ("K1_QENTRY:\n" if st == 0 else "") + "s_barrier", dm)
    a("s_cbranch_scc1 K1_QLOOP")
    stamp()
    a.vm = ["w13"]*4 + ["pf"]*NPF + ["w14"]*4 + ["x7"]*8 + ["w15"]*4
    finv = []
    for qt in (2, 3):
        for s in range(4):
            b = 128 + (qt-2)*32 + s*8
            finv += [f"v_mul_f32 v{b+i}, s{SC}, v{b+i}" for i in range(8)]
            finv += [f"v_cvt_pk_bf16_f32 v{Q2V+((qt-2)*4+s)*4+p}, v{b+2*p}, v{b+2*p+1}" for p in range(4)]
    def bar(tag): return f"s_waitcnt vmcnt({a.vm_need(tag)}) lgkmcnt(0)\ns_barrier"
    L0 = "s_waitcnt lgkmcnt(0)"
    wopf = [f"s_mov_b32 s{STMP}, 4096"] + [(f"buffer_load_dwordx4 a[248:251], v{LN16}, {sr(SQ,4)}, {'0' if j < 4 else 's%d' % STMP} offen offset:{(j%4)*1024}", "wo") for j in range(8)]
    WPA = opt.get("wopf_at", 0)
    half_step(24, 12, 1, (12, 0), L0, kv_dma("k", 0) if WPA != 24 else wopf)
    half_step(25, 12, 0, (13, 1), bar("w13"), wopf if WPA == 25 else (kv_dma("k", 0) if WPA == 24 else []))
    half_step(26, 13, 1, (13, 0), L0, kv_dma("k", 1))
    half_step(27, 13, 0, (14, 1), bar(["w14", "x7"]), [])
    half_step(28, 14, 1, (15, 1), bar("w15"), kv_dma("v", 0))
    left = half_step(29, 15, 1, (14, 0), L0, kv_dma("k", 2), extra=(finv, 20), order=(2, 3, 0, 1))
    left = half_step(30, 14, 0, (15, 0), L0, kv_dma("v", 1), extra=(left, 0))
    fina = []
    for qt in (0, 1):
        for s in range(4):
            tb = 128 + ((qt*4+s) % 4) * 16
            src = OA(qt, 2*s)
            fina += [f"v_accvgpr_read_b32 v{tb+i}, a{src+i}" for i in range(8)]
            fina += [f"v_mul_f32 v{tb+i}, s{SC}, v{tb+i}" for i in range(8)]
            fina += [f"v_cvt_pk_bf16_f32 v{tb+8+p}, v{tb+2*p}, v{tb+2*p+1}" for p in range(4)]
            fina.append(f"ds_write_b128 v{QST}, {vr(tb+8,4)} offset:{(qt*4+s)*1024}")
    left = half_step(31, 15, 0, None, bar("k0"), kv_dma("v", 2), extra=(left + fina, 0), order=(0, 1, 2, 3))
    stamp()
    i = 0
    while i < len(left):
        x = left[i]
        if x.startswith("v_mul_f32") and i + 1 < len(left) and left[i+1].startswith("v_mul_f32"):
            r = int(x.split()[1][1:-1])
            if r % 2 == 0:
                a(pkmul(r, sr(SC, 2))); i += 2; continue
        a(x); i += 1
    for qt in range(4):
        for s in range(4):
            b = QACC(qt, s, 0)
            for i in range(4): a(pkmul(b+2*i, sr(SC, 2)))
        if qt == 0: a("s_waitcnt lgkmcnt(0)")
        for s in range(4):
            b = QACC(qt, s, 0)
            for p in range(4): a(f"v_cvt_pk_bf16_f32 v{QF(qt,s)+p}, v{b+2*p}, v{b+2*p+1}")
    a(f"""
    s_mov_b32 s{SKO}, {3*16384}
    s_mov_b32 s{SVO}, {3*16384}
    s_mov_b32 s{SEV}, 15
    s_mov_b32 s{SVB}, s{SW1K}
    s_add_u32 s{SKB}, s{SW1K}, {KRING}
    s_mov_b32 s{SMK}, {opt.get('mk0', 0x5555)}
    s_mov_b32 s{SMV}, {opt.get('mv0', 0x4444)}
    """)
    if opt.get("trip_ts"):
        a("s_mov_b32 s34, 0\ns_mov_b32 s32, 0\nv_mbcnt_lo_u32_b32 v205, -1, 0\nv_mbcnt_hi_u32_b32 v205, -1, v205\nv_mov_b32 v207, 0")
    u0, u1, u2, u3 = 210, 211, 212, 213
    a(f"""
    s_load_dwordx2 s[32:33], s[0:1], 88
    s_memrealtime s[34:35]
    s_and_b32 s3, s2, 3
    s_lshl_b32 s3, s3, 20
    s_bfe_u32 s{STMP}, s2, 0x20003
    s_lshl_b32 s{STMP}, s{STMP}, 8
    s_add_u32 s3, s3, s{STMP}
    s_add_u32 s{SW}, s{SPTR+8}, s3
    s_addc_u32 s{SW+1}, s{SPTR+9}, 0
    s_sub_u32 s{SW+2}, 1048576, s{STMP}
    v_mbcnt_lo_u32_b32 v{u0}, -1, 0
    v_mbcnt_hi_u32_b32 v{u0}, -1, v{u0}
    v_lshlrev_b32 v{VLZ}, 20, v{u0}
    v_lshrrev_b32 v{u1}, 4, v{u0}
    v_and_b32 v{u0}, 15, v{u0}
    v_lshlrev_b32 v{u2}, 1, v{u1}
    v_xor_b32 v{u2}, v{u2}, v{u0}
    s_and_b32 s3, s2, 3
    s_lshl_b32 s3, s3, 2
    v_xor_b32 v{u2}, s3, v{u2}
    v_lshlrev_b32 v{u2}, 4, v{u2}
    v_lshl_add_u32 v{u2}, v{u1}, 10, v{u2}
    s_lshl_b32 s3, s{SW1K}, 3
    v_add_u32 v{WD2}, s3, v{u2}
    v_xor_b32 v{WD2+1}, 128, v{WD2}
    v_add_u32 v{WD2+1}, 3072, v{WD2+1}
    v_lshlrev_b32 v{u2}, 11, v{u0}
    v_lshl_add_u32 v{u2}, v{u1}, 3, v{u2}
    s_lshl_b32 s3, s{SW1K}, 7
    v_add_u32 v{OUTV}, s3, v{u2}
    s_waitcnt lgkmcnt(0)
    s_mov_b32 s{SX}, s32
    s_mov_b32 s{SX+1}, s33
    s_mov_b32 s{SX+2}, 4
    s_andn2_b32 s3, s34, 30
    s_or_b32 s3, s3, 1
    v_mov_b32 v{u2}, s3
    v_mov_b32 v{u3}, 0
    """)
    a.emit_item((f"buffer_atomic_cmpswap {vr(u2,2)}, v{VLZ}, {sr(SX,4)}, s{SW1K} offen sc1", "nonce"))
    pro_vm = list(a.vm)
    a("K1_PRO:")
    stamp()
    a("s_waitcnt lgkmcnt(0)")
    zm = [f"{MF32} {ar(16*i,16)}, {Z}, {Z}, 0" for i in range(9)]
    G = Sched(qk_mfmas(0, True, KF, True) + zm + qk_mfmas(1, False, VF, True))
    for gp in (9, 27, 44, 62): piece_at(G, gp, "k")
    G.fill(k_reads(1, VF), 0, 16, maxper=1)
    G.tail(40, "s_waitcnt lgkmcnt(0)")
    mx = []
    for qt in range(4):
        s0 = S(0, qt); m_ = TMPQ(qt); t_ = m_ + 1; ng = NEGM(qt)
        bias = f"s{SBIAS}" if qt == 3 else "0"
        ch = [f"v_max3_f32 v{m_}, v{s0}, v{s0+1}, v{s0+2}", f"v_max3_f32 v{t_}, v{s0+3}, v{s0+4}, v{s0+5}",
              f"v_max3_f32 v{m_}, v{m_}, v{s0+6}, v{s0+7}", f"v_max_f32 v{m_}, v{m_}, v{t_}", f"v_mov_b32 v{t_}, v{m_}",
              {"i": f"v_permlane16_swap_b32 v{m_}, v{t_}", "new": True}, f"v_max_f32 v{m_}, v{m_}, v{t_}", f"v_mov_b32 v{t_}, v{m_}",
              {"i": f"v_permlane32_swap_b32 v{m_}, v{t_}", "new": True}, f"v_max_f32 v{m_}, v{m_}, v{t_}",
              f"v_sub_f32 v{ng}, {bias}, v{m_}"] + [f"v_mov_b32 v{ng+i}, v{ng}" for i in range(1, 4)] + \
             [f"v_add_f32 v{s0+i}, v{s0+i}, v{ng}" for i in range(8)]
        ch[0] = {"i": ch[0], "at": 8*qt + 11}
        mx += ch
    g = G.fill(mx, 0, len(G.m))
    assert not G.post, len(G.post)
    for qt in range(4):
        gg = [i for i, v in enumerate(G.V) if f"v_mov_b32 v{NEGM(qt)+3}, v{NEGM(qt)}" in v][0]
        assert gg < 41 + 8*qt - 1, (qt, gg)
    G.fill(sm_stream(0), g, len(G.m))
    tailv = G.post; G.post = []
    G.emit(a)
    a.vm = list(pro_vm)
    for s in range(4): a(f"v_subrev_u32 v{KRD+s}, 16384, v{KRD+s}")
    a(f"s_waitcnt vmcnt(8) lgkmcnt(0)")
    a("s_barrier")
    kr = k_reads(0)
    for i in range(2):
        pre, ins, post = piece("k")
        for p in pre: a(p)
        for r in kr[4*i:4*i+4]: a(r)
        a(ins)
        for p in post: a(p)
    a(f"""
    s_mov_b32 s{SA_}, {kslot(1) - KRING}
    s_mov_b32 s{SBB}, 0
    s_mov_b32 s{SCNT}, 0
    """)
    for it in tailv: a(it)
    a("s_waitcnt lgkmcnt(0)")
    stamp()
    a(".p2align 6")
    a("K1_LOOP:")
    def trip(last=None, mid=False):
        G1 = Sched(qk_mfmas(0, False)); G2 = Sched(pv_mfmas(0)); G3 = Sched(qk_mfmas(1, False)); G4 = Sched(pv_mfmas(1))
        sm_place(G1, G2, 1); sm_place(G3, G4, 0)
        if last: xw = last(G1, G2, G3, G4)
        else:
            xw = opt.get('xwait', 4)
            piece_at(G4, 9, "k"); piece_at(G4, 25, "k"); piece_at(G1, 9, "k", True); piece_at(G1, 25, "k")
            piece_at(G2, 9, "v"); piece_at(G2, 25, "v"); piece_at(G3, 9, "v", True); piece_at(G3, 25, "v")
        G1.fill(v_reads(0), 0, 30); G1.put(31, "s_waitcnt lgkmcnt(0)")
        G2.fill(k_reads(1), 0, 30, maxper=1)
        G2.put(35, "s_waitcnt lgkmcnt(0)")
        G3.fill(v_reads(1), 0, 30)
        G3.put(31, f"s_waitcnt vmcnt({xw}) lgkmcnt(0)" if not opt.get("no_dma") else "s_waitcnt lgkmcnt(0)")
        G3.tail(31, "s_barrier")
        if last:
            if mid:
                G2.fill([f"v_subrev_u32 v{KRD+s}, 16384, v{KRD+s}" for s in range(4)], 32, 36)
                G4.fill(k_reads(0), 0, 30, maxper=1)
                G4.put(35, "s_waitcnt lgkmcnt(0)")
            G4.fill([f"v_add_u32 v{VRD+dt}, 16384, v{VRD+dt}" for dt in range(8)], 21, 36)
        else:
            sal = [f"s_sub_u32 s{SN}, s{SA_}, 16384", f"s_and_b32 s{SN}, s{SN}, 0xffff", f"s_sub_u32 s{SDK}, s{SN}, s{SA_}", f"s_mov_b32 s{SA_}, s{SN}",
                   f"s_add_u32 s{SN}, s{SBB}, 16384", f"s_and_b32 s{SN}, s{SN}, 0xffff", f"s_sub_u32 s{SDV}, s{SN}, s{SBB}", f"s_mov_b32 s{SBB}, s{SN}",
                   f"s_add_u32 s{SCNT}, s{SCNT}, 1"]
            G2.fill(sal, 12, 22, maxper=1)
            G2.fill([f"v_add_u32 v{KRD+s}, s{SDK}, v{KRD+s}" for s in range(4)], 32, 36)
            G4.fill(k_reads(0), 0, 30, maxper=1)
            G4.fill([f"v_add_u32 v{VRD+dt}, s{SDV}, v{VRD+dt}" for dt in range(8)], 21, 36)
            G4.put(34, f"s_cmp_lt_u32 s{SCNT}, s{SEV}")
            G4.put(35, "s_waitcnt lgkmcnt(0)")
            G4.tail(35, "s_cbranch_scc1 K1_LOOP")
        if opt.get("exp_slow") and not last:
            for G in (G1, G2, G3, G4):
                for j in range(opt["exp_slow"]): G.tail(2 + 6*j, "s_nop 3")
        for G in (G1, G2, G3, G4):
            assert not G.post
            G.emit(a)
    trip()
    a(f"s_cmp_eq_u32 s{SR}, 1\ns_cbranch_scc1 K1_FINAL")
    OSTNT = opt.get("o_store", " sc1"); OSTNT2 = opt.get("o_store2", OSTNT)
    def oepi(qt, final):
        r = []
        for s in range(4):
            tb = [0, 8, 32, 40][s]
            pb = [64, 68, 72, 76][s]
            if not final and qt >= 2: pb = Q2V + ((qt-2)*4+s)*4
            if final: tb = 224 + 8*(s & 1); pb = 240 + 4*s
            src = OA(qt, 2*s)
            r += [f"v_accvgpr_read_b32 v{tb+i}, a{src+i}" for i in range(8)]
            r += [f"v_pk_mul_f32 {vr(tb+2*i,2)}, {vr(tb+2*i,2)}, {vr(RCP+2*qt,2)}" for i in range(4)]
            r += [f"v_cvt_pk_bf16_f32 v{pb+p}, v{tb+2*p}, v{tb+2*p+1}" for p in range(4)]
            if final: r.append(f"buffer_store_dwordx4 {vr(pb,4)}, v{OST}, {sr(SO,4)}, s{SOO+qt} offen offset:{s*1024}{OSTNT2}")
            elif qt < 2: r.append(f"ds_write_b128 v{QST}, {vr(pb,4)} offset:{(qt*4+s)*1024}")
        return r
    nk = 2 - 4 + bin(opt.get('mk0', 0x5555)).count('1'); nv = 4 + bin(opt.get('mv0', 0x4444)).count('1')
    assert nk >= 0
    order = ["k", "k"][:nk]
    while len(order) < nk + nv:
        if order.count("v") < nv: order.append("v")
        if order.count("k") < nk: order.append("k")
    lread = [f"v_accvgpr_read_b32 v{RCP+2*qt}, a{LA(qt)}" for qt in range(4)]
    rest_m = [f"ds_read_b128 {vr(QF(j//4, j%4),4)}, v{QST} offset:{j*1024}" for j in range(8)]
    rcps = [f"v_rcp_f32 v{RCP+2*qt}, v{RCP+2*qt}" for qt in range(4)] + [f"v_mov_b32 v{RCP+2*qt+1}, v{RCP+2*qt}" for qt in range(4)]
    rest_v = [f"v_mov_b32 v{QF(2,0)+i}, v{Q2V+i}" for i in range(32)]
    def drain(final, hook30=None, hook31=None):
        for r in v_reads(0): a(r)
        sm = sm_stream(1)
        for x in sm[:9]: a(x)
        a("s_waitcnt lgkmcnt(0)")
        G = Sched(pv_mfmas(0))
        V2 = KF if final else XF
        G.fill(v_reads(1, V2), 0, 36, maxper=2)
        if final: hook30(G)
        else:
            for j in range(4): piece_at(G, 9 + 8*j, order[j])
        G.fill(sm[9:], 0, 36)
        G.emit(a)
        a("s_waitcnt lgkmcnt(0)")
        G = Sched(pv_mfmas(1, V2, True))
        if final: hook31(G)
        else:
            for j in range(min(3, len(order) - 4)): piece_at(G, 3 + 5*j, order[4+j])
        st1 = [f"v_subrev_u32 v{VRD+dt}, {3*16384}, v{VRD+dt}" for dt in range(8)]
        st1 += [{"i": lread[0], "at": 9}] + lread[1:]
        masks = ["s[32:33]", "s[34:35]", "s[36:37]", "vcc"]
        st1 += [f"v_cmp_nge_f32 {masks[qt]}, s{STMP}, v{RCP+2*qt}" for qt in range(4)]
        G.put(3, f"s_mov_b32 s{STMP}, 0x{opt.get('thresh', 0x53800000):08x}")
        g = G.fill(st1, 0, 16)
        assert not G.post
        G.put(16, "s_or_b64 s[32:33], s[32:33], s[34:35]")
        G.put(17, "s_or_b64 s[36:37], s[36:37], vcc")
        G.put(18, "s_or_b64 s[32:33], s[32:33], s[36:37]")
        G.tail(18, "s_cbranch_scc1 K1_SLOW")
        G.fill(rcps, g + 1, 36)
        if not final:
            G.fill(rest_m, 19, 36)
            G.fill(rest_v, 19, 36)
        G.emit(a)
    def dump_stamps(rnd, vt):
        if opt.get('dbg_span'):
            a('s_waitcnt lgkmcnt(0)\ns_mov_b32 s96, s66\ns_mov_b32 s98, s86')
            return
        if not stamps: return
        if opt.get('qfine'):
            if rnd: return
            nstamp[0] = 16
        a("s_waitcnt lgkmcnt(0)")
        a(f"""
        s_add_u32 s{SDMP}, s{SWS}, 0x4000000
        s_addc_u32 s{SDMP+1}, s{SWS+1}, 0
        s_mov_b32 s{SDMP+2}, 0x100000
        s_mov_b32 s{SDMP+3}, 0x20000
        s_mul_i32 s3, s2, 3
        s_add_u32 s3, s3, {rnd}
        s_lshl_b32 s3, s3, 10
        s_lshr_b32 s{STMP}, s{SW4K}, 4
        s_add_u32 s3, s3, s{STMP}
        v_mov_b32 v{vt}, s3
        """)
        for i in range(0, nstamp[0], 2):
            for j in range(4): a(f"v_mov_b32 v{vt+4+j}, s{STS+2*i+j}")
            a(f"buffer_store_dwordx4 {vr(vt+4,4)}, v{vt}, {sr(SDMP,4)}, 0 offen offset:{8*i}")
            a("s_nop 1")
    nl = nstamp[0]
    stamp()
    drain(False)
    a("K1_SLOW_RET:")
    stamp()
    a("s_waitcnt lgkmcnt(0)")
    F0 = opt.get('flush_at', 11)
    rem = order[7:]
    ep = [x for qt in range(3) for x in oepi(qt, False)] + [f"ds_read_b128 {ar(XF+4*j,4)}, v{QST} offset:{j*1024}" for j in range(8)] + oepi(3, False)
    step = len(ep) // max(len(rem), 1)
    for j, x in enumerate(ep):
        if j % step == 0 and j // step < len(rem):
            for y in piece_now(rem[j // step]): a(y)
        a(x)
    n0 = nstamp[0]
    dump_stamps(0, 96)
    a(f"""
    buffer_load_dword v{VTAG}, v{VLZ}, {sr(SX,4)}, 0 offen sc1
    s_add_u32 s{SX}, s{SWS}, {FLAGOFF}
    s_addc_u32 s{SX+1}, s{SWS+1}, 0
    s_mov_b32 s{SX+2}, 0x40000
    s_lshl_b32 s3, s{SBR}, 3
    s_add_u32 s3, s3, s{SB_}
    s_lshl_b32 s3, s3, 2
    s_and_b32 s{STMP}, s2, 3
    s_add_u32 s3, s3, s{STMP}
    s_lshl_b32 s3, s3, 9
    s_lshr_b32 s{STMP}, s{SW1K}, 3
    s_add_u32 s{SFO}, s3, s{STMP}
    s_mov_b32 s{SR}, 1
    s_mov_b32 s{SEV}, 13
    s_mov_b32 s{SMK}, {opt.get('mk1', 0x0555)}
    s_mov_b32 s{SMV}, {opt.get('mv1', 0)}
    s_branch K1_PRO
    K1_FINAL:
    """)
    stash_rd = []
    nstamp[0] = nl
    import optail
    optail.gen(a, opt, globals(), locals())
    KA, VA, LNv = RCP, RCP + 1, RCP + 2
    SU, SU2, SE_ = 32, 33, 34
    def VFR(dt): return S(1, dt >> 1) + 4 * (dt & 1)
    def kload():
        for kt in range(2):
            for s_ in range(4):
                a(f"buffer_load_dwordx4 {ar(VF+(kt*4+s_)*4,4)}, v{KA}, {sr(SK,4)}, s{SU2 if kt else SU} offen offset:{s_*64}")
    a(f"""
    K1_SLOW:
    s_waitcnt vmcnt(0)
    s_nop 7
    s_nop 7
    v_mbcnt_lo_u32_b32 v{LNv}, -1, 0
    v_mbcnt_hi_u32_b32 v{LNv}, -1, v{LNv}
    v_and_b32 v{VA}, 15, v{LNv}
    v_lshrrev_b32 v{LNv}, 4, v{LNv}
    v_lshlrev_b32 v{KA}, 8, v{VA}
    v_lshl_add_u32 v{KA}, v{LNv}, 4, v{KA}
    v_lshlrev_b32 v{VA}, 1, v{VA}
    v_lshl_add_u32 v{VA}, v{LNv}, 10, v{VA}
    s_lshl_b32 s{SU}, s{SR}, 18
    s_add_u32 s{SE_}, s{SU}, 262144
    """)
    for qt in range(4): a(f"v_mov_b32 v{TMPQ(qt)}, 0xff800000")
    a(f"K1_SL1:\ns_add_u32 s{SU2}, s{SU}, 4096")
    kload()
    a("s_waitcnt vmcnt(0)")
    for m in qk_mfmas(0, True, VF): a(m)
    a("s_nop 7")
    for qt in range(4):
        for i in range(0, 8, 2): a(f"v_max3_f32 v{TMPQ(qt)}, v{TMPQ(qt)}, v{S(0,qt)+i}, v{S(0,qt)+i+1}")
    a(f"s_add_u32 s{SU}, s{SU}, 8192\ns_cmp_lt_u32 s{SU}, s{SE_}\ns_cbranch_scc1 K1_SL1")
    for qt in range(4):
        m_ = TMPQ(qt); t_ = m_ + 1; ng = NEGM(qt)
        bias = f"s{SBIAS}" if qt == 3 else "0"
        for x in [f"v_mov_b32 v{t_}, v{m_}", f"v_permlane16_swap_b32 v{m_}, v{t_}", f"v_max_f32 v{m_}, v{m_}, v{t_}", f"v_mov_b32 v{t_}, v{m_}",
                  f"v_permlane32_swap_b32 v{m_}, v{t_}", f"v_max_f32 v{m_}, v{m_}, v{t_}", f"v_sub_f32 v{ng}, {bias}, v{m_}"] + \
                 [f"v_mov_b32 v{ng+i}, v{ng}" for i in range(1, 4)]: a(x)
    for x in zm: a(x)
    a(f"s_lshl_b32 s{SU}, s{SR}, 18\nK1_SL2:\ns_add_u32 s{SU2}, s{SU}, 4096")
    kload()
    for aa in range(2):
        def HT(dt, jp): n = dt*2 + jp; return P(1, n >> 2) + (n & 3)
        for dt in range(8):
            for j in range(4):
                d = HT(dt, j >> 1) if j & 1 else VFR(dt) + aa*2 + (j >> 1)
                a(f"buffer_load_ushort v{d}, v{VA}, {sr(SV,4)}, s{SU2 if aa else SU} offen offset:{j*256+dt*32}")
        a("s_waitcnt vmcnt(0)")
        for dt in range(8):
            for jp in range(2):
                d = VFR(dt) + aa*2 + jp
                a(f"v_lshl_or_b32 v{d}, v{HT(dt,jp)}, 16, v{d}")
    for m in qk_mfmas(0, False, VF): a(m)
    a("s_nop 7")
    for x in sm_stream(0): a(x)
    a("s_nop 1")
    for dt in range(8):
        for qt in range(4):
            d = ar(OA(qt, dt), 4)
            a(f"{MF} {d}, {vr(VFR(dt),4)}, {vr(P(0,qt),4)}, {d}")
    for qt in range(4):
        d = ar(LA(qt), 4)
        a(f"{MF} {d}, {ar(ONES,4)}, {vr(P(0,qt),4)}, {d}")
    a(f"s_add_u32 s{SU}, s{SU}, 8192\ns_cmp_lt_u32 s{SU}, s{SE_}\ns_cbranch_scc1 K1_SL2")
    a("s_nop 7")
    for x in lread + rcps: a(x)
    a(f"s_cmp_eq_u32 s{SR}, 1\ns_cbranch_scc1 K1_SLOW_RET2")
    for x in rest_m + rest_v: a(x)
    a(f"""
    s_branch K1_SLOW_RET
    K1_END:
    s_endpgm
    """)

def desc(name, vgpr=512, acc=256, sgpr=102):
    return f""".amdhsa_kernel {name}
  .amdhsa_next_free_vgpr {vgpr}
  .amdhsa_next_free_sgpr {sgpr}
  .amdhsa_accum_offset {acc}
  .amdhsa_group_segment_fixed_size 0
  .amdhsa_kernarg_size 104
  .amdhsa_user_sgpr_count 2
  .amdhsa_user_sgpr_kernarg_segment_ptr 1
  .amdhsa_system_sgpr_workgroup_id_x 1
.end_amdhsa_kernel
"""
```

```python
from asmlib import *
def gen(a, opt, G_, L_):
    g = dict(G_); g.update(L_)
    for k in ("MF MF32 SK SV SX SW SO SQ SWS SBR SB_ STMP SW1K SW4K SFO SCNT SOO VRD OST LN16 WD2 OUTV VLZ VTAG KF VF XF Q2V QST RCP ZERO "
              "stamp dump_stamps nstamp Z n0 SEV drain dma_at OA trip piece").split():
        globals()[k] = g[k]
    R = 8
    def ACC(q, l): return ((l >> 1)*4 + q)*8 + (l & 1)*4
    def AF(k, l): return 176 + ((k-(32-R))*2+l)*4 if (k >= 32-R and l < 2) else KF + l*4
    def O1(q, s): return ar(XF+(q*4+s)*4, 4) if q < 2 else vr(Q2V+((q-2)*4+s)*4, 4)
    def O2r(q, s): return 128 + (s*4+q)*4
    def BF(k, q):
        if k < 4: return O1(q, k)
        if k < 8: return vr(O2r(q, k-4), 4)
        return ar(OA(q, k & 7), 4)
    KT = [(0, 0, s) for s in range(4)] + [(0, 1, s) for s in range(4)] + \
         [(x, 0, s) for s in range(4) for x in (1, 2, 3)] + [(x, 1, s) for s in range(4) for x in (1, 2, 3)]
    SRO, SE, SD = SK, SV, SQ
    SB4 = [46, 47, 50, 51]
    SWO, SW2K, STAG, SF2, SXF, SP = 52, 53, 54, 28, 29, 30
    SO2 = [45, 48, 49, 101]
    VL4, FLV = 204, 208
    def ucalc(dst, k, sh):
        x, hd, s = KT[k]
        return [f"s_xor_b32 s{dst}, s{SP}, {x*8 + hd*4 + s}", f"s_lshl_b32 s{dst}, s{dst}, {sh}"]
    def d_ops(k):
        return ucalc(SWO, k, 15) + [f"s_add_u32 m0, s{SW2K}, {(k & 7)*8192}",
             (f"buffer_load_dwordx4 v{WD2}, {sr(SW,4)}, s{SWO} offen lds", f"d{k}"),
             (f"buffer_load_dwordx4 v{WD2+1}, {sr(SW,4)}, s{SWO} offen offset:1024 lds", f"d{k}")]
    def b_ops(k):
        r = ucalc(SB4[0], k, 10)
        for q in range(4):
            if q: r.append(f"s_add_u32 s{SB4[0]}, s{SB4[0]}, 131072")
            r.append((f"buffer_load_dwordx4 {BF(k,q)}, v{OST}, {sr(SRO,4)}, s{SB4[0]} offen sc1", f"b{k}"))
        return r
    def a_reads(k, l):
        return [f"ds_read_b64_tr_b16 {ar(AF(k,l)+aa*2,2)}, v{VRD+l} offset:{(k&7)*8192 + aa*4096}" for aa in range(2)]
    def st1(q, s): return (f"buffer_store_dwordx4 {O1(q,s)}, v{OST}, {sr(SO,4)}, s{SOO+q} offen offset:{s*1024} sc1", "o1")
    def st2(q, s): return (f"buffer_store_dwordx4 {vr(O2r(q,s),4)}, v{OST}, {sr(SO,4)}, s{SO2[q]} offen offset:{s*1024} sc1", "o2" if s < 2 else "o3")
    wopf = [(f"buffer_load_dwordx4 a[248:251], v{LN16}, {sr(SQ,4)}, {'0' if j < 4 else 's%d' % SB4[2]} offen offset:{(j%4)*1024}", "wo") for j in range(8)]
    def place(G, ops, gaps):
        gi = iter(gaps); pend = []; prev = -1
        for x in ops:
            if isinstance(x, tuple):
                gp = next(gi)
                assert gp > prev
                c = [j for j in range(prev + 1, gp) if not G.S[j]] or list(range(prev + 1, gp)) or [gp]
                for i, y in enumerate(pend): G.put(c[max(0, len(c) - len(pend) + i)], y)
                pend = []; prev = gp
                G.put(gp, x); G.cap[gp] = min(G.cap[gp], 0)
            else: pend.append(x)
        assert not pend
    a.vm = ["v31"]*4 + ["kd"]*2
    a(f"""
    s_lshl_b32 s{SW2K}, s{SW1K}, 1
    s_and_b32 s{SP}, s2, 24
    s_mov_b32 s{SB4[2]}, 4096
    """)
    if opt.get("code_pf2", False):
        a(f"""
        s_getpc_b64 s[32:33]
        s_mov_b32 s34, TAIL_BYTES
        s_mov_b32 s35, 0x20000
        s_lshr_b32 s3, s2, 3
        s_lshl_b32 s3, s3, 10
        s_lshl_b32 s{STMP}, s{SW1K}, 9
        v_subrev_u32 v{FLV}, s{STMP}, v{OST}
        s_lshl_b32 s{STMP}, s{SW1K}, 5
        s_add_u32 s3, s3, s{STMP}
        """)
        a.emit_item((f"buffer_load_dwordx4 a[252:255], v{FLV}, s[32:35], s3 offen", "cpf"))
    o1 = [st1(q, s) for s in range(4) for q in range(4)]
    seq = (wopf + o1) if opt.get("wo_first", True) else (o1[:8] + wopf + o1[8:])
    NVL = bin(opt.get("mv1", 0)).count("1"); NKL = bin(opt.get("mk1", 0x0555)).count("1")
    assert NVL <= 4 and NKL <= 6
    vp = []
    for i in range(NVL):
        pre, ins, post = piece("v")
        vp.append(([f"s_add_u32 s47, s47, 4096"] if i else []) + pre + [(ins, "v31")])
    items = vp + [[x] for x in seq]
    def take(n):
        r = [y for x in items[:n] for y in x]; del items[:n]; return r
    def t13(G1, G2, G3, G4):
        place(G1, take(3), [5, 13, 25]); place(G2, take(4), [5, 13, 21, 29]); place(G3, take(3), [1, 13, 25]); place(G4, take(3), [5, 17, 33])
        return 10
    def t14(G1, G2, G3, G4):
        place(G1, take(3), [1, 13, 25]); place(G2, take(5), [1, 9, 17, 25, 33]); place(G3, take(3), [1, 13, 25])
        n = min(2, len(items))
        place(G4, d_ops(0) + d_ops(1) + d_ops(2) + take(n), [3, 5, 9, 13, 17, 19, 29, 33][:6+n])
        return 24 - NVL
    trip(t13, True)
    trip(t14)
    stamp()
    def h30(G):
        n = len(items)
        place(G, d_ops(3) + d_ops(4) + take(n), [9, 12, 16, 19, 25, 32][:4+n])
    def h31(G): pass
    drain(True, h30, h31)
    a("K1_SLOW_RET2:")
    stamp()
    a(f"""
    s_load_dwordx2 s[36:37], s[0:1], 80
    s_lshl_b32 s{STMP}, s{SP}, 10
    s_sub_u32 s{SRO}, s{SO}, s{STMP}
    s_subb_u32 s{SRO+1}, s{SO+1}, 0
    s_add_u32 s{SRO+2}, s{SO+2}, s{STMP}
    s_lshr_b32 s3, s{SP}, 1
    s_add_u32 s{SF2}, s3, s{SFO}
    s_mov_b32 s{SEV}, 0
    v_readfirstlane_b32 s{STAG}, v{VTAG}
    v_lshrrev_b32 v{VL4}, 18, v{VLZ}
    v_min_u32 v{VL4}, 12, v{VL4}
    """)
    for q in range(4): a(f"s_add_u32 s{SO2[q]}, s{SOO+q}, 4096")
    a(f"s_waitcnt vmcnt({a.vm_need(['d0','d1'])}) lgkmcnt(0)\ns_barrier")
    for l in range(8):
        for r in a_reads(0, l): a(r)
    def ep(q, s, pk):
        t = O2r(q, s); src = OA(q, 2*s)
        r = [f"v_accvgpr_read_b32 v{t+i}, a{src+i}" for i in range(8)]
        if pk: r += [f"v_pk_mul_f32 {vr(t+2*i,2)}, {vr(t+2*i,2)}, {vr(RCP+2*q,2)}" for i in range(4)]
        else: r += [f"v_mul_f32 v{t+i}, v{t+i}, v{RCP+2*q}" for i in range(8)]
        r += [f"v_cvt_pk_bf16_f32 v{t+p}, v{t+2*p}, v{t+2*p+1}" for p in range(4)]
        return r
    NPRE = opt.get("ep_pre", 4)
    grp = [(q, s) for s in range(4) for q in range(4)]
    for q, s in grp[:NPRE]:
        for x in ep(q, s, True): a(x)
    eps = [(s, ep(q, s, False)) for q, s in grp[NPRE:]]
    setup = f"""s_and_b32 s35, s2, 3
    s_lshl_b32 s{STMP}, s35, 15
    s_sub_u32 s{SE}, s{SO}, s{STMP}
    s_subb_u32 s{SE+1}, s{SO+1}, 0
    s_add_u32 s{SE+2}, s{SO+2}, s{STMP}
    s_lshl_b32 s3, s{SBR}, 3
    s_add_u32 s3, s3, s{SB_}
    s_lshl_b32 s3, s3, 5
    s_add_u32 s3, s3, s{SP}
    s_lshl_b32 s{SXF}, s3, 8
    s_add_u32 s{SXF}, s{SXF}, 32768
    s_lshr_b32 s3, s{SW1K}, 3
    s_add_u32 s{SXF}, s{SXF}, s3
    s_lshl_b32 s3, s{SBR}, 10
    s_lshl_b32 s{STMP}, s{SP}, 5
    s_add_u32 s3, s3, s{STMP}
    s_lshl_b32 s{STMP}, s35, 6
    s_add_u32 s3, s3, s{STMP}
    s_sub_u32 s{SD+2}, {240*2048}, s3
    s_mul_i32 s{STMP}, s{SB_}, {240*2048}
    s_add_u32 s3, s3, s{STMP}
    s_add_u32 s{SD}, s36, s3
    s_addc_u32 s{SD+1}, s37, 0"""
    a(setup)
    nstamp[0] = 0
    stamp()
    a("s_waitcnt lgkmcnt(0)")
    plan = {k: [] for k in range(32)}
    for k in range(0, 27): plan[k] = d_ops(k+5)
    PUB = {1: opt.get("pub1", 0), 2: opt.get("pub2", 11), 3: opt.get("pub3", 18), 4: 21}
    POL = {1: opt.get("pol1", 2), 2: opt.get("pol2", 14), 3: opt.get("pol3", 20), 4: 28}
    o2 = [st2(q, s) for s in range(4) for q in range(4)]
    S2 = opt.get("o2_first", 0)
    LB = opt.get("lb", 4)
    for kb in range(8, 32):
        f, k0 = (1, 8) if kb < 20 else ((2, 20) if kb < 26 else (3, 26))
        at = max(kb - LB, POL[f] + 2 + (kb - k0) // 2)
        assert at < kb
        assert kb >= 16 or at >= 4 + ((kb & 7) >> 1) - (NPRE // 4 > ((kb & 7) >> 1)) * 9, (kb, at)
        plan[at] += b_ops(kb)
    for i, x in enumerate(o2): plan[S2 + i].append(x)
    for f in POL: plan[POL[f]].insert(0, (f"buffer_load_dword v{FLV}, v{VL4}, {sr(SX,4)}, s{SFO} offen offset:{16*(f-1)} sc1", f"f{f}"))
    chk = f"v_cmp_ne_u32 vcc, s{STAG}, v{FLV}"
    for k in range(32):
        need = []
        if k >= 8: need.append(f"b{k}")
        if k & 1: need += [f"d{k+1}", f"d{k+2}"]
        for f in PUB:
            if k == PUB[f]: need.append(f"o{f}"); assert not any(isinstance(x, tuple) and x[1] == f"o{f}" for kk in range(k, 32) for x in plan[kk])
        if any(t in a.vm for t in need): a(f"s_waitcnt vmcnt({a.vm_need(need)})")
        if k & 1 and k < 31: a("s_barrier")
        for f in PUB:
            if k == PUB[f]: a.emit_item((f"buffer_store_dword v{VTAG}, v{VLZ}, {sr(SX,4)}, s{SF2} offen offset:{16*(f-1)} sc1", "p"))
        ls = list(range(8)) if k < 32 - R else list(range(2, 8))
        m = [f"{MF} {vr(ACC(q,l),4)}, {ar(AF(k,l),4)}, {BF(k,q)}, {vr(ACC(q,l),4) if k else '0'}" for l in ls for q in range(4)]
        G = Sched(m); n = len(m)
        if k < 31:
            extra = [] if len(ls) == 8 else a_reads(k+1, 0) + a_reads(k+1, 1)
            for j, x in enumerate(extra): G.put(j, x)
            for i, l in enumerate(ls):
                rd = a_reads(k+1, l)
                if i < len(ls) - 1: G.put(4*i + 4, rd[0]); G.put(4*i + 5, rd[1])
                else: G.tail(n - 1, rd)
        for i in range(len(ls)): G.put(4*i + 3, f"s_waitcnt lgkmcnt({6 if k < 31 else max(0, 8 - 2*i)})")
        nv = sum(isinstance(x, tuple) for x in plan[k])
        slots = [x for x in range(3, n) if x % 4 in (2, 3)]
        if nv > len(slots): slots = list(range(3, n))
        if nv: slots = [slots[(i * len(slots)) // nv] for i in range(nv)]
        place(G, plan[k], slots)
        if S2 <= k < S2 + 16: assert 16 - len(eps) > k - S2, (k, len(eps))
        if eps:
            flat = [x for _, e in eps for x in e]
            G.fill(flat, 0, n)
            left = G.post; G.post = []
            used = len(flat) - len(left)
            new = []
            for s_, e in eps:
                if used >= len(e): used -= len(e); continue
                e = e[used:]; used = 0
                if s_ <= k + 1 - 4: G.post += e
                else: new.append((s_, e))
            eps = new
        G.emit(a)
        for f in POL:
            if k == POL[f] + 1:
                a(f"s_waitcnt vmcnt({a.vm_need('f%d' % f)})\n{chk}\ns_cmp_eq_u32 vcc_lo, 0\ns_cbranch_scc0 K1_SPIN{f}\nK1_CHK{f}_OK:")
        if opt.get("op_fine"):
            if k in opt["op_fine"]:
                a(f"s_memtime s[{64+2*(1+opt['op_fine'].index(k))}:{65+2*(1+opt['op_fine'].index(k))}]\ns_waitcnt lgkmcnt(0)")
        elif k == 7 or k == 31: stamp(); (a("s_waitcnt lgkmcnt(0)") if g["stamps"] else None)
    m = [f"{MF} {vr(ACC(q,l),4)}, {ar(AF(k,l),4)}, {BF(k,q)}, {vr(ACC(q,l),4)}" for k in range(32-R, 32) for l in range(2) for q in range(4)]
    G = Sched(m)
    snd = []
    for j in range(1, 4):
        for q in range(4):
            r = 32*j + 8*q
            snd += [f"v_cvt_pk_bf16_f32 v{r+p}, v{r+2*p}, v{r+2*p+1}" for p in range(4)]
            snd.append((f"buffer_store_dwordx4 {vr(r,4)}, v{OST}, {sr(SO,4)}, s{SOO+q} offen offset:{j*1024} sc1", f"x{j}"))
    gl = G.fill(snd, 0, len(m))
    sal = []
    for j in range(4): sal += [f"s_xor_b32 s3, s35, {j}", f"s_lshl_b32 s{32+j if j < 3 else 36}, s3, 15" if j else "s_nop 0", "s_lshl_b32 s3, s3, 9", f"s_add_u32 s{SB4[j]}, s3, s{SXF}"]
    sal += [f"s_mov_b32 s{SEV}, 0"]
    G.fill(sal, gl + 1, len(m), maxper=1)
    G.emit(a)
    SXR = {1: 33, 2: 34, 3: 36}
    for j in range(1, 4):
        a(f"s_waitcnt vmcnt({a.vm_need('x%d' % j)})")
        a.emit_item((f"buffer_store_dword v{VTAG}, v{VLZ}, {sr(SX,4)}, s{SB4[j]} offen offset:{4*j} sc1", "p"))
    for q in range(1, 4): a(f"v_add_u32 v{128+q}, {q*131072}, v{OST}")
    for q in range(4): a(f"s_mov_b32 s{SOO+q}, {q*32768}")
    a(f"""
    K1_POLLX:
    buffer_load_dword v{FLV}, v{VL4}, {sr(SX,4)}, s{SB4[0]} offen sc1
    s_add_u32 s{SEV}, s{SEV}, 1
    s_waitcnt vmcnt(0)
    {chk}
    s_cmp_gt_u32 s{SEV}, 0x20000
    s_cbranch_scc1 K1_GOX
    s_and_b32 s3, vcc_lo, 14
    s_cbranch_scc1 K1_POLLX
    K1_GOX:
    """)
    if not opt.get("op_fine"): stamp()
    for q in range(4):
        for j in range(1, 4):
            a(f"buffer_load_dwordx4 {vr(32*j+8*q,4)}, v{128+q if q else OST}, {sr(SE,4)}, s{SXR[j]} offen offset:{j*1024} sc1")
    a(f"s_mov_b32 s3, 0xffff0000")
    for q in range(4):
        a(f"s_waitcnt vmcnt({3*(3-q) + 2*q})")
        for j in range(1, 4):
            r = 32*j + 8*q
            for p in (3, 2, 1, 0):
                a(f"v_and_b32 v{r+2*p+1}, s3, v{r+p}")
                a(f"v_lshlrev_b32 v{r+2*p}, 16, v{r+p}")
            for p in range(4): a(f"v_pk_add_f32 {vr(8*q+2*p,2)}, {vr(8*q+2*p,2)}, {vr(r+2*p,2)}")
        for l in range(2):
            r = 8*q + 4*l
            a(f"v_cvt_pk_bf16_f32 v{r}, v{r}, v{r+1}")
            a(f"v_cvt_pk_bf16_f32 v{r+1}, v{r+2}, v{r+3}")
            a(f"buffer_store_dwordx2 {vr(r,2)}, v{OUTV}, {sr(SD,4)}, s{SOO+q} offen offset:{l*32}")
    if g["stamps"] and not opt.get("dbg_span"):
        a("s_waitcnt vmcnt(0)")
        a(f"s_memtime s[4:5]\ns_memrealtime s[6:7]\ns_waitcnt lgkmcnt(0)")
        nstamp[0] = 16
        dump_stamps(1, 224)
        a("s_waitcnt vmcnt(0)")
        for j in range(4): a(f"s_mov_b32 s{64+j}, s{4+j}")
        nstamp[0] = 2
        dump_stamps(2, 224)
    if opt.get("dbg_span"):
        a("s_waitcnt vmcnt(0)\ns_memrealtime s[6:7]\ns_load_dwordx2 s[8:9], s[0:1], 88\ns_waitcnt lgkmcnt(0)\ns_mov_b32 s10, 64\ns_mov_b32 s11, 0x20000")
        a("s_not_b32 s96, s96\nv_mov_b32 v0, s96\nv_mov_b32 v1, s6")
        a(f"buffer_atomic_umax v0, v{VLZ}, s[8:11], 0 offen offset:4 sc1\nbuffer_atomic_umax v1, v{VLZ}, s[8:11], 0 offen offset:8 sc1")
        for i in range(8):
            a(f"v_mov_b32 v{2+i}, s{66+4*i}\nbuffer_atomic_umax v{2+i}, v{VLZ}, s[8:11], 0 offen offset:{12+4*i} sc1")
        a(f"v_mov_b32 v10, s98\nbuffer_atomic_umax v10, v{VLZ}, s[8:11], 0 offen offset:44 sc1")
    a("s_endpgm")
    for f in POL:
        a(f"""
        K1_SPIN{f}:
        s_add_u32 s{SEV}, s{SEV}, 1
        s_cmp_gt_u32 s{SEV}, 0x20000
        s_cbranch_scc1 K1_CHK{f}_OK
        buffer_load_dword v{FLV}, v{VL4}, {sr(SX,4)}, s{SFO} offen offset:{16*(f-1)} sc1
        s_waitcnt vmcnt(0)
        {chk}
        s_cmp_eq_u32 vcc_lo, 0
        s_cbranch_scc0 K1_SPIN{f}
        s_branch K1_CHK{f}_OK
        """)
```

```python
from asmlib import *
def gen(a, opt, G_, L_):
    g = dict(G_); g.update(L_)
    for k in ("MF MF32 SK SV SX SW SO SQ SWS SBR SB_ STMP SW1K SW4K SFO SCNT SOO VRD OST LN16 WD2 OUTV VLZ VTAG KF VF XF Q2V QST RCP ZERO "
              "stamp dump_stamps nstamp Z n0 SEV drain dma_at OA trip piece").split():
        globals()[k] = g[k]
    R = 8
    def ACC(q, l): return ((l >> 1)*4 + q)*8 + (l & 1)*4
    def AF(k, l): return 176 + ((k-(32-R))*2+l)*4 if (k >= 32-R and l < 2) else KF + l*4
    def O1(q, s): return ar(XF+(q*4+s)*4, 4) if q < 2 else vr(Q2V+((q-2)*4+s)*4, 4)
    def O2r(q, s): return 128 + (s*4+q)*4
    def BF(k, q):
        if k < 4: return O1(q, k)
        if k < 8: return vr(O2r(q, k-4), 4)
        return ar(OA(q, k & 7), 4)
    KT = [(0, 0, s) for s in range(4)] + [(0, 1, s) for s in range(4)] + \
         [(x, 0, s) for s in range(4) for x in (1, 2, 3)] + [(x, 1, s) for s in range(4) for x in (1, 2, 3)]
    SRO, SE, SD = SK, SV, SQ
    SB4 = [46, 47, 50, 51]
    SWO, SW2K, STAG, SF2, SXF, SP = 52, 53, 54, 28, 29, 30
    SO2 = [45, 48, 49, 101]
    VL4, FLV = 204, 208
    def ucalc(dst, k, sh):
        x, hd, s = KT[k]
        return [f"s_xor_b32 s{dst}, s{SP}, {x*8 + hd*4 + s}", f"s_lshl_b32 s{dst}, s{dst}, {sh}"]
    def d_ops(k):
        return ucalc(SWO, k, 15) + [f"s_add_u32 m0, s{SW2K}, {(k & 7)*8192}",
             (f"buffer_load_dwordx4 v{WD2}, {sr(SW,4)}, s{SWO} offen lds", f"d{k}"),
             (f"buffer_load_dwordx4 v{WD2+1}, {sr(SW,4)}, s{SWO} offen offset:1024 lds", f"d{k}")]
    def b_ops(k):
        r = ucalc(SB4[0], k, 10)
        for q in range(4):
            if q: r.append(f"s_add_u32 s{SB4[0]}, s{SB4[0]}, 131072")
            r.append((f"buffer_load_dwordx4 {BF(k,q)}, v{OST}, {sr(SRO,4)}, s{SB4[0]} offen sc1", f"b{k}"))
        return r
    def a_reads(k, l):
        return [f"ds_read_b64_tr_b16 {ar(AF(k,l)+aa*2,2)}, v{VRD+l} offset:{(k&7)*8192 + aa*4096}" for aa in range(2)]
    def st1(q, s): return (f"buffer_store_dwordx4 {O1(q,s)}, v{OST}, {sr(SO,4)}, s{SOO+q} offen offset:{s*1024} sc1", "o1")
    def st2(q, s): return (f"buffer_store_dwordx4 {vr(O2r(q,s),4)}, v{OST}, {sr(SO,4)}, s{SO2[q]} offen offset:{s*1024} sc1", "o2" if s < 2 else "o3")
    wopf = [(f"buffer_load_dwordx4 a[248:251], v{LN16}, {sr(SQ,4)}, {'0' if j < 4 else 's%d' % SB4[2]} offen offset:{(j%4)*1024}", "wo") for j in range(8)]
    def place(G, ops, gaps):
        gi = iter(gaps); pend = []; prev = -1
        for x in ops:
            if isinstance(x, tuple):
                gp = next(gi)
                assert gp > prev
                c = [j for j in range(prev + 1, gp) if not G.S[j]] or list(range(prev + 1, gp)) or [gp]
                for i, y in enumerate(pend): G.put(c[max(0, len(c) - len(pend) + i)], y)
                pend = []; prev = gp
                G.put(gp, x); G.cap[gp] = min(G.cap[gp], 0)
            else: pend.append(x)
        assert not pend
    a.vm = ["v31"]*4 + ["kd"]*2
    a(f"""
    s_lshl_b32 s{SW2K}, s{SW1K}, 1
    s_and_b32 s{SP}, s2, 24
    s_mov_b32 s{SB4[2]}, 4096
    """)
    if opt.get("code_pf2", False):
        a(f"""
        s_getpc_b64 s[32:33]
        s_mov_b32 s34, TAIL_BYTES
        s_mov_b32 s35, 0x20000
        s_lshr_b32 s3, s2, 3
        s_lshl_b32 s3, s3, 10
        s_lshl_b32 s{STMP}, s{SW1K}, 9
        v_subrev_u32 v{FLV}, s{STMP}, v{OST}
        s_lshl_b32 s{STMP}, s{SW1K}, 5
        s_add_u32 s3, s3, s{STMP}
        """)
        a.emit_item((f"buffer_load_dwordx4 a[252:255], v{FLV}, s[32:35], s3 offen", "cpf"))
    o1 = [st1(q, s) for s in range(4) for q in range(4)]
    seq = (wopf + o1) if opt.get("wo_first", True) else (o1[:8] + wopf + o1[8:])
    NVL = bin(opt.get("mv1", 0)).count("1"); NKL = bin(opt.get("mk1", 0x0555)).count("1")
    assert NVL <= 4 and NKL <= 6
    vp = []
    for i in range(NVL):
        pre, ins, post = piece("v")
        vp.append(([f"s_add_u32 s47, s47, 4096"] if i else []) + pre + [(ins, "v31")])
    items = vp + [[x] for x in seq]
    def take(n):
        r = [y for x in items[:n] for y in x]; del items[:n]; return r
    def t13(G1, G2, G3, G4):
        place(G1, take(3), [5, 13, 25]); place(G2, take(4), [5, 13, 21, 29]); place(G3, take(3), [1, 13, 25]); place(G4, take(3), [5, 17, 33])
        return 10
    def t14(G1, G2, G3, G4):
        place(G1, take(3), [1, 13, 25]); place(G2, take(5), [1, 9, 17, 25, 33]); place(G3, take(3), [1, 13, 25])
        n = min(2, len(items))
        place(G4, d_ops(0) + d_ops(1) + d_ops(2) + take(n), [3, 5, 9, 13, 17, 19, 29, 33][:6+n])
        return 24 - NVL
    trip(t13, True)
    trip(t14)
    stamp()
    def h30(G):
        n = len(items)
        place(G, d_ops(3) + d_ops(4) + take(n), [9, 12, 16, 19, 25, 32][:4+n])
    def h31(G): pass
    drain(True, h30, h31)
    a("K1_SLOW_RET2:")
    stamp()
    a(f"""
    s_load_dwordx2 s[36:37], s[0:1], 80
    s_lshl_b32 s{STMP}, s{SP}, 10
    s_sub_u32 s{SRO}, s{SO}, s{STMP}
    s_subb_u32 s{SRO+1}, s{SO+1}, 0
    s_add_u32 s{SRO+2}, s{SO+2}, s{STMP}
    s_lshr_b32 s3, s{SP}, 1
    s_add_u32 s{SF2}, s3, s{SFO}
    s_mov_b32 s{SEV}, 0
    v_readfirstlane_b32 s{STAG}, v{VTAG}
    v_lshrrev_b32 v{VL4}, 18, v{VLZ}
    v_min_u32 v{VL4}, 12, v{VL4}
    """)
    for q in range(4): a(f"s_add_u32 s{SO2[q]}, s{SOO+q}, 4096")
    a(f"s_waitcnt vmcnt({a.vm_need(['d0','d1'])}) lgkmcnt(0)\ns_barrier")
    for l in range(8):
        for r in a_reads(0, l): a(r)
    def ep(q, s, pk):
        t = O2r(q, s); src = OA(q, 2*s)
        r = [f"v_accvgpr_read_b32 v{t+i}, a{src+i}" for i in range(8)]
        if pk: r += [f"v_pk_mul_f32 {vr(t+2*i,2)}, {vr(t+2*i,2)}, {vr(RCP+2*q,2)}" for i in range(4)]
        else: r += [f"v_mul_f32 v{t+i}, v{t+i}, v{RCP+2*q}" for i in range(8)]
        r += [f"v_cvt_pk_bf16_f32 v{t+p}, v{t+2*p}, v{t+2*p+1}" for p in range(4)]
        return r
    NPRE = opt.get("ep_pre", 4)
    grp = [(q, s) for s in range(4) for q in range(4)]
    for q, s in grp[:NPRE]:
        for x in ep(q, s, True): a(x)
    eps = [(s, ep(q, s, False)) for q, s in grp[NPRE:]]
    setup = f"""s_and_b32 s35, s2, 3
    s_lshl_b32 s{STMP}, s35, 15
    s_sub_u32 s{SE}, s{SO}, s{STMP}
    s_subb_u32 s{SE+1}, s{SO+1}, 0
    s_add_u32 s{SE+2}, s{SO+2}, s{STMP}
    s_lshl_b32 s3, s{SBR}, 3
    s_add_u32 s3, s3, s{SB_}
    s_lshl_b32 s3, s3, 5
    s_add_u32 s3, s3, s{SP}
    s_lshl_b32 s{SXF}, s3, 8
    s_add_u32 s{SXF}, s{SXF}, 32768
    s_lshr_b32 s3, s{SW1K}, 3
    s_add_u32 s{SXF}, s{SXF}, s3
    s_lshl_b32 s3, s{SBR}, 10
    s_lshl_b32 s{STMP}, s{SP}, 5
    s_add_u32 s3, s3, s{STMP}
    s_lshl_b32 s{STMP}, s35, 6
    s_add_u32 s3, s3, s{STMP}
    s_sub_u32 s{SD+2}, {240*2048}, s3
    s_mul_i32 s{STMP}, s{SB_}, {240*2048}
    s_add_u32 s3, s3, s{STMP}
    s_add_u32 s{SD}, s36, s3
    s_addc_u32 s{SD+1}, s37, 0"""
    a(setup)
    nstamp[0] = 0
    stamp()
    a("s_waitcnt lgkmcnt(0)")
    plan = {k: [] for k in range(32)}
    for k in range(0, 27): plan[k] = d_ops(k+5)
    PUB = {1: opt.get("pub1", 0), 2: opt.get("pub2", 11), 3: opt.get("pub3", 18), 4: 21}
    POL = {1: opt.get("pol1", 2), 2: opt.get("pol2", 14), 3: opt.get("pol3", 20), 4: 28}
    o2 = [st2(q, s) for s in range(4) for q in range(4)]
    S2 = opt.get("o2_first", 0)
    LB = opt.get("lb", 4)
    for kb in range(8, 32):
        f, k0 = (1, 8) if kb < 20 else ((2, 20) if kb < 26 else (3, 26))
        at = max(kb - LB, POL[f] + 2 + (kb - k0) // 2)
        assert at < kb
        assert kb >= 16 or at >= 4 + ((kb & 7) >> 1) - (NPRE // 4 > ((kb & 7) >> 1)) * 9, (kb, at)
        plan[at] += b_ops(kb)
    for i, x in enumerate(o2): plan[S2 + i].append(x)
    for f in POL: plan[POL[f]].insert(0, (f"buffer_load_dword v{FLV}, v{VL4}, {sr(SX,4)}, s{SFO} offen offset:{16*(f-1)} sc1", f"f{f}"))
    chk = f"v_cmp_ne_u32 vcc, s{STAG}, v{FLV}"
    for k in range(32):
        need = []
        if k >= 8: need.append(f"b{k}")
        if k & 1: need += [f"d{k+1}", f"d{k+2}"]
        for f in PUB:
            if k == PUB[f]: need.append(f"o{f}"); assert not any(isinstance(x, tuple) and x[1] == f"o{f}" for kk in range(k, 32) for x in plan[kk])
        if any(t in a.vm for t in need): a(f"s_waitcnt vmcnt({a.vm_need(need)})")
        if k & 1 and k < 31: a("s_barrier")
        for f in PUB:
            if k == PUB[f]: a.emit_item((f"buffer_store_dword v{VTAG}, v{VLZ}, {sr(SX,4)}, s{SF2} offen offset:{16*(f-1)} sc1", "p"))
        ls = list(range(8)) if k < 32 - R else list(range(2, 8))
        m = [f"{MF} {vr(ACC(q,l),4)}, {ar(AF(k,l),4)}, {BF(k,q)}, {vr(ACC(q,l),4) if k else '0'}" for l in ls for q in range(4)]
        G = Sched(m); n = len(m)
        if k < 31:
            extra = [] if len(ls) == 8 else a_reads(k+1, 0) + a_reads(k+1, 1)
            for j, x in enumerate(extra): G.put(j, x)
            for i, l in enumerate(ls):
                rd = a_reads(k+1, l)
                if i < len(ls) - 1: G.put(4*i + 4, rd[0]); G.put(4*i + 5, rd[1])
                else: G.tail(n - 1, rd)
        for i in range(len(ls)): G.put(4*i + 3, f"s_waitcnt lgkmcnt({6 if k < 31 else max(0, 8 - 2*i)})")
        nv = sum(isinstance(x, tuple) for x in plan[k])
        slots = [x for x in range(3, n) if x % 4 in (2, 3)]
        if nv > len(slots): slots = list(range(3, n))
        if nv: slots = [slots[(i * len(slots)) // nv] for i in range(nv)]
        place(G, plan[k], slots)
        if S2 <= k < S2 + 16: assert 16 - len(eps) > k - S2, (k, len(eps))
        if eps:
            flat = [x for _, e in eps for x in e]
            G.fill(flat, 0, n)
            left = G.post; G.post = []
            used = len(flat) - len(left)
            new = []
            for s_, e in eps:
                if used >= len(e): used -= len(e); continue
                e = e[used:]; used = 0
                if s_ <= k + 1 - 4: G.post += e
                else: new.append((s_, e))
            eps = new
        G.emit(a)
        for f in POL:
            if k == POL[f] + 1:
                a(f"s_waitcnt vmcnt({a.vm_need('f%d' % f)})\n{chk}\ns_cmp_eq_u32 vcc_lo, 0\ns_cbranch_scc0 K1_SPIN{f}\nK1_CHK{f}_OK:")
        if opt.get("op_fine"):
            if k in opt["op_fine"]:
                a(f"s_memtime s[{64+2*(1+opt['op_fine'].index(k))}:{65+2*(1+opt['op_fine'].index(k))}]\ns_waitcnt lgkmcnt(0)")
        elif k == 7 or k == 31: stamp(); (a("s_waitcnt lgkmcnt(0)") if g["stamps"] else None)
    m = [f"{MF} {vr(ACC(q,l),4)}, {ar(AF(k,l),4)}, {BF(k,q)}, {vr(ACC(q,l),4)}" for k in range(32-R, 32) for l in range(2) for q in range(4)]
    G = Sched(m)
    snd = []
    for j in range(1, 4):
        for q in range(4):
            r = 32*j + 8*q
            snd += [f"v_cvt_pk_bf16_f32 v{r+p}, v{r+2*p}, v{r+2*p+1}" for p in range(4)]
            snd.append((f"buffer_store_dwordx4 {vr(r,4)}, v{OST}, {sr(SO,4)}, s{SOO+q} offen offset:{j*1024} sc1", f"x{j}"))
    gl = G.fill(snd, 0, len(m))
    sal = []
    for j in range(4): sal += [f"s_xor_b32 s3, s35, {j}", f"s_lshl_b32 s{32+j if j < 3 else 36}, s3, 15" if j else "s_nop 0", "s_lshl_b32 s3, s3, 9", f"s_add_u32 s{SB4[j]}, s3, s{SXF}"]
    sal += [f"s_mov_b32 s{SEV}, 0"]
    G.fill(sal, gl + 1, len(m), maxper=1)
    G.emit(a)
    SXR = {1: 33, 2: 34, 3: 36}
    for j in range(1, 4):
        a(f"s_waitcnt vmcnt({a.vm_need('x%d' % j)})")
        a.emit_item((f"buffer_store_dword v{VTAG}, v{VLZ}, {sr(SX,4)}, s{SB4[j]} offen offset:{4*j} sc1", "p"))
    for q in range(1, 4): a(f"v_add_u32 v{128+q}, {q*131072}, v{OST}")
    for q in range(4): a(f"s_mov_b32 s{SOO+q}, {q*32768}")
    a(f"""
    K1_POLLX:
    buffer_load_dword v{FLV}, v{VL4}, {sr(SX,4)}, s{SB4[0]} offen sc1
    s_add_u32 s{SEV}, s{SEV}, 1
    s_waitcnt vmcnt(0)
    {chk}
    s_cmp_gt_u32 s{SEV}, 0x20000
    s_cbranch_scc1 K1_GOX
    s_and_b32 s3, vcc_lo, 14
    s_cbranch_scc1 K1_POLLX
    K1_GOX:
    """)
    if not opt.get("op_fine"): stamp()
    for q in range(4):
        for j in range(1, 4):
            a(f"buffer_load_dwordx4 {vr(32*j+8*q,4)}, v{128+q if q else OST}, {sr(SE,4)}, s{SXR[j]} offen offset:{j*1024} sc1")
    a(f"s_mov_b32 s3, 0xffff0000")
    for q in range(4):
        a(f"s_waitcnt vmcnt({3*(3-q) + 2*q})")
        for j in range(1, 4):
            r = 32*j + 8*q
            for p in (3, 2, 1, 0):
                a(f"v_and_b32 v{r+2*p+1}, s3, v{r+p}")
                a(f"v_lshlrev_b32 v{r+2*p}, 16, v{r+p}")
            for p in range(4): a(f"v_pk_add_f32 {vr(8*q+2*p,2)}, {vr(8*q+2*p,2)}, {vr(r+2*p,2)}")
        for l in range(2):
            r = 8*q + 4*l
            a(f"v_cvt_pk_bf16_f32 v{r}, v{r}, v{r+1}")
            a(f"v_cvt_pk_bf16_f32 v{r+1}, v{r+2}, v{r+3}")
            a(f"buffer_store_dwordx2 {vr(r,2)}, v{OUTV}, {sr(SD,4)}, s{SOO+q} offen offset:{l*32}")
    if g["stamps"] and not opt.get("dbg_span"):
        a("s_waitcnt vmcnt(0)")
        a(f"s_memtime s[4:5]\ns_memrealtime s[6:7]\ns_waitcnt lgkmcnt(0)")
        nstamp[0] = 16
        dump_stamps(1, 224)
        a("s_waitcnt vmcnt(0)")
        for j in range(4): a(f"s_mov_b32 s{64+j}, s{4+j}")
        nstamp[0] = 2
        dump_stamps(2, 224)
    if opt.get("dbg_span"):
        a("s_waitcnt vmcnt(0)\ns_memrealtime s[6:7]\ns_load_dwordx2 s[8:9], s[0:1], 88\ns_waitcnt lgkmcnt(0)\ns_mov_b32 s10, 64\ns_mov_b32 s11, 0x20000")
        a("s_sub_u32 s6, s6, s96\ns_lshl_b32 s6, s6, 16\ns_sub_u32 s7, s90, s96\ns_or_b32 s6, s6, s7")
        a("s_sub_u32 s4, s82, s96\ns_lshl_b32 s4, s4, 16\ns_sub_u32 s7, s98, s96\ns_or_b32 s4, s4, s7")
        a(f"v_mov_b32 v0, s6\nv_mov_b32 v1, s4\ns_lshl_b32 s3, s2, 3\ns_add_u32 s3, s3, s{SW1K}\ns_cmp_eq_u32 s3, 0\ns_cselect_b32 s3, 4096, s3")
        a(f"buffer_store_dwordx2 v[0:1], v{VLZ}, s[8:11], s3 offen")
    a("s_endpgm")
    for f in POL:
        a(f"""
        K1_SPIN{f}:
        s_add_u32 s{SEV}, s{SEV}, 1
        s_cmp_gt_u32 s{SEV}, 0x20000
        s_cbranch_scc1 K1_CHK{f}_OK
        buffer_load_dword v{FLV}, v{VL4}, {sr(SX,4)}, s{SFO} offen offset:{16*(f-1)} sc1
        s_waitcnt vmcnt(0)
        {chk}
        s_cmp_eq_u32 vcc_lo, 0
        s_cbranch_scc0 K1_SPIN{f}
        s_branch K1_CHK{f}_OK
        """)
```

```python
from asmlib import *
import struct

MF = "v_mfma_f32_16x16x32_bf16"
MF32 = "v_mfma_f32_32x32x16_bf16"
def QACC(qt, s, y): return 32*qt + (2*s+y)*4
def S(b, qt, kt=0): return 32*qt + 8*b + 4*kt
def P(b, qt): return 32*qt + 16 + 4*b
def NEGM(qt): return 32*qt + 24
def TMPQ(qt): return 32*qt + 28
def QF(qt, s): return 128 + (qt*4+s)*4
KRD, VRD, KDM, VDM, XDM, WDM, XRD, WRD, OST, QST, LN16 = 192, 196, 204, 208, 210, 214, 209, 217, 221, 222, 223
XRD2 = 216
Q2V = 224
T0 = 224
RCP = 210
def OA(qt, dt): return (qt*8+dt)*4
def LA(qt): return 128 + qt*4
KF, VF, XF = 144, 176, 208
WSET = [144, 176]
XSET = [208, 224]
ONES, ZERO = 240, 244
def Q2ACC(qt, s, y):
    return ar(OA(qt, 2*s+y), 4) if qt < 2 else vr(128 + (qt-2)*32 + (2*s+y)*4, 4)
SK, SV, SX, SW, SO, SQ = 4, 8, 12, 16, 20, 24
SPTR, SWS = 28, 38
SW4K, SR, SB_, SH, SBR = 40, 41, 42, 43, 44
SCNT, SKO, SVO, SM0K, SM0V, SDK, SDV, SA_, SBB, SN = 45, 46, 47, 48, 49, 50, 51, 52, 53, 54
SOO = 55
STMP, SWW, SBIAS = 59, 60, 61
SC = 62
SW1K = 100
SVB = 43
SFO = 60
SROT, SKL, SVL, ST2, SEV = 101, 28, 29, 30, 31
SXO, SWO0, SWO1, SW8K = 46, 47, 48, 49
STS = 64
VRING, WREG, KRING = 0, 65536, 98304
STASH = 65536
WHALF = 8224
def xslot(u): return (u & 1) * 32768
def wslot(st, hd): return (((3 - st) & 3) * 2 + hd) * WHALF
def kslot(t): return KRING + ((3 - t) & 3) * 16384
def vslot(t): return VRING + (t & 3) * 16384

EXOFF, FLAGOFF = 0x2000000, 0x3A00000
WD2, OUTV, VLZ, VTAG = 205, 207, 218, 219
FLG = 124
SDMP = 96
CSCALE = struct.unpack("<I", struct.pack("<f", 1.4426950408889634 * 128 ** -0.5))[0]

def gen_k1(a, name, opt):
    stamps = opt.get("stamps", False)
    KVNT = opt.get("kv_pol", " nt")
    XWP = opt.get("xw_pol", " nt")
    nstamp = [0]
    fine = opt.get("fine", False)
    def fstamp():
        if fine:
            a(f"s_memtime {sr(STS + 2*nstamp[0], 2)}")
            nstamp[0] += 1
    def stamp():
        if opt.get("qfine"):
            if nstamp[0] < 3: a(f"s_memtime s[{90+2*nstamp[0]}:{91+2*nstamp[0]}]"); nstamp[0] += 1
            return
        if fine:
            if nstamp[0] < 17: fstamp()
        elif stamps:
            a(f"s_memtime {sr(STS + 2*nstamp[0], 2)}")
            a(f"s_memrealtime {sr(STS + 2*nstamp[0] + 2, 2)}")
            nstamp[0] += 2
    a(f".globl {name}\n.p2align 8\n.type {name},@function\n{name}:")
    a(f"""
    s_cmp_ge_u32 s2, 256
    s_cbranch_scc1 K1_END
    s_bfe_u32 s{SBR}, s2, 0x10002
    s_mul_i32 s3, s{SBR}, 40
    s_load_dwordx8 {sr(SPTR,8)}, s[0:1], s3
    s_add_u32 s3, s3, 32
    s_load_dwordx2 {sr(SPTR+8,2)}, s[0:1], s3
    s_load_dwordx2 {sr(SWS,2)}, s[0:1], 96
    s_getpc_b64 {sr(SQ,2)}
    K1_PC:
    """)
    stamp()
    W, LN = T0, T0 + 1
    t2, t3, t4, t5, t6, t7, t8, t9 = range(T0 + 2, T0 + 10)
    ROTINIT = (f"s_lshr_b32 s{SROT}, s2, 3\ns_add_u32 s{SROT}, s{SROT}, s2\ns_and_b32 s{SROT}, s{SROT}, 15\ns_lshl_b32 s{SROT}, s{SROT}, 14"
               if opt.get("rot", False) else f"s_mov_b32 s{SROT}, 0")
    TD = T0 + 12
    a(f"""
    v_lshrrev_b32 v{W}, 6, v0
    v_and_b32 v{LN}, 63, v0
    v_readfirstlane_b32 s3, v{W}
    v_lshlrev_b32 v{LN16}, 4, v{LN}
    s_lshl_b32 s{SW4K}, s3, 12
    s_lshl_b32 s{SW1K}, s3, 10
    s_lshl_b32 s{SW8K}, s3, 13
    s_mul_i32 s{SWW}, s3, 2056
    s_cmp_eq_u32 s3, 3
    s_cselect_b32 s{SBIAS}, 0xf149f2ca, 0
    s_mov_b32 s{SR}, 0
    s_mov_b32 s{SC}, 0x{CSCALE:08x}
    s_mov_b32 s{SC+1}, 0x{CSCALE:08x}
    s_lshr_b32 s{SB_}, s2, 5
    s_and_b32 s{STMP}, s2, 3
    s_lshl_b32 s{SH}, s{STMP}, 2
    s_bfe_u32 s{STMP}, s2, 0x20003
    s_add_u32 s{SH}, s{SH}, s{STMP}
    s_lshl_b32 s{SH}, s{SH}, 1
    {ROTINIT}
    s_mov_b32 s{SOO}, 0
    s_mov_b32 s{SOO+1}, 131072
    s_mov_b32 s{SOO+2}, 262144
    s_mov_b32 s{SOO+3}, 393216
    """)
    if opt.get("code_pf", True):
        a(f"""
        s_mov_b32 s{SQ+2}, CODE_BYTES
        s_mov_b32 s{SQ+3}, 0x20000
        s_lshr_b32 s3, s2, 3
        s_lshl_b32 s3, s3, 10
        v_lshl_add_u32 v{t2}, v{W}, 15, v{LN16}
        """)
        a.emit_item((f"buffer_load_dwordx4 {vr(TD,4)}, v{t2}, {sr(SQ,4)}, s3 offen", "touch"))
    a(f"""
    v_lshrrev_b32 v{t2}, 3, v{LN}
    v_lshl_add_u32 v{t2}, v{W}, 6, v{t2}
    v_lshlrev_b32 v{t2}, 10, v{t2}
    v_lshrrev_b32 v{t3}, 4, v{LN}
    v_and_b32 v{t5}, 7, v{LN}
    v_xor_b32 v{t4}, v{t3}, v{t5}
    v_lshl_add_u32 v{XDM}, v{t4}, 4, v{t2}
    v_xor_b32 v{XDM+1}, 64, v{XDM}
    v_add_u32 v{XDM+1}, {7*1024}, v{XDM+1}
    v_add_u32 v{XDM+2}, {14*1024}, v{XDM}
    v_add_u32 v{XDM+3}, {14*1024}, v{XDM+1}
    """)
    a(f"""
    v_and_b32 v{t2}, 15, v{LN}
    v_lshlrev_b32 v{t4}, 2, v{t3}
    v_xor_b32 v{t4}, v{t4}, v{t2}
    v_lshlrev_b32 v{t4}, 4, v{t4}
    v_lshl_add_u32 v{t5}, v{W}, 3, v{t3}
    v_lshl_add_u32 v{WDM}, v{t5}, 13, v{t4}
    v_add_u32 v{WDM+1}, {4*8192-1024}, v{WDM}
    s_mov_b32 s{SXO}, 0
    s_mov_b32 s{SWO0}, 0
    s_mov_b32 s{SWO1}, 256
    s_waitcnt lgkmcnt(0)
    """)
    fstamp()
    a(f"""
    s_mul_i32 s3, s{SB_}, 245760
    s_add_u32 s{SX}, s{SPTR}, s3
    s_addc_u32 s{SX+1}, s{SPTR+1}, 0
    s_mov_b32 s{SX+2}, {opt.get('exp_rows', 240)*1024}
    s_mov_b32 s{SX+3}, 0x20000
    s_lshl_b32 s3, s{SH}, 8
    s_add_u32 s{SW}, s{SPTR+6}, s3
    s_addc_u32 s{SW+1}, s{SPTR+7}, 0
    s_sub_u32 s{SW+2}, 4194304, s3
    s_mov_b32 s{SW+3}, 0x20000
    """)
    def w_dma(st):
        r = []
        for hd, so in ((1, SWO1), (0, SWO0)):
            r += [f"s_add_u32 m0, s{SWW}, {WREG + wslot(st, hd)}"]
            r += [(f"buffer_load_dwordx4 v{WDM+i}, {sr(SW,4)}, s{so} offen offset:{1024*i}{XWP} lds", f"w{st}") for i in range(2)]
            r += [f"s_add_u32 s{so}, s{so}, 262144"]
        return r
    def x_dma(u):
        r = []
        for hf in range(2):
            r += [f"s_add_u32 m0, s{SW8K}, {xslot(u) + hf*4096}"]
            r += [(f"buffer_load_dwordx4 v{XDM+i}, {sr(SX,4)}, s{SXO} offen offset:{1024*i}{XWP} lds", f"x{u}") for i in range(4)]
            r += [f"s_add_u32 s{SXO}, s{SXO}, 32768" if hf == 0 else f"s_sub_u32 s{SXO}, s{SXO}, {32768-128}"]
        return r
    CONTIG = opt.get("contig", True)
    ROT = opt.get("rot", False)
    def rot_calc(dst, lin):
        if isinstance(lin, int):
            return [f"s_add_u32 s{dst}, s{SROT}, {lin}", f"s_and_b32 s{dst}, s{dst}, 0x3ffff"]
        return [f"s_add_u32 s{dst}, s{lin[0]}, s{SROT}", f"s_and_b32 s{dst}, s{dst}, 0x3ffff", f"s_and_b32 s{ST2}, s{lin[0]}, 0xfffc0000",
                f"s_or_b32 s{dst}, s{dst}, s{ST2}", f"s_add_u32 s{lin[0]}, s{lin[0]}, 16384"]
    def kv_dma(kind, tile):
        base = kslot(tile) if kind == "k" else vslot(tile)
        srd = SK if kind == "k" else SV
        if CONTIG:
            r = []
            for i in range(4):
                r += (rot_calc(3, tile*16384) if i == 0 else ["s_add_u32 s3, s3, 4096"])
                r += [f"s_add_u32 m0, s{SW1K}, {base + 4096*i}",
                      (f"buffer_load_dwordx4 v{KDM if kind == 'k' else VDM}, {sr(srd,4)}, s3 offen{KVNT} lds", f"{kind}{tile}")]
            return r
        r = [f"s_add_u32 m0, s{SW4K}, {base}", f"s_mov_b32 s3, {tile*16384}"]
        for i in range(4):
            vo = KDM + i if kind == "k" else VDM + (i & 1)
            r.append((f"buffer_load_dwordx4 v{vo}, {sr(srd,4)}, s3 offen offset:{1024*i}{KVNT} lds", f"{kind}{tile}"))
        return r
    for it in w_dma(0) + x_dma(0): a.emit_item(it)
    a(f"""
    s_lshl_b32 s3, s{SB_}, 5
    s_add_u32 s3, s3, s{SH}
    s_lshl_b32 s3, s3, 18
    s_add_u32 s{SK}, s{SPTR+2}, s3
    s_addc_u32 s{SK+1}, s{SPTR+3}, 0
    s_mov_b32 s{SK+2}, 524288
    s_mov_b32 s{SK+3}, 0x20000
    s_add_u32 s{SV}, s{SPTR+4}, s3
    s_addc_u32 s{SV+1}, s{SPTR+5}, 0
    s_mov_b32 s{SV+2}, 524288
    s_mov_b32 s{SV+3}, 0x20000
    s_mul_i32 s3, s{SBR}, 120
    s_mul_i32 s{STMP}, s{SB_}, 15
    s_add_u32 s3, s3, s{STMP}
    s_lshl_b32 s3, s3, 17
    s_lshl_b32 s{STMP}, s{SH}, 12
    s_add_u32 s3, s3, s{STMP}
    s_add_u32 s{SO}, s{SWS}, s3
    s_addc_u32 s{SO+1}, s{SWS+1}, 0
    s_sub_u32 s{SO+2}, {15*131072}, s{STMP}
    s_mov_b32 s{SO+3}, 0x20000
    s_and_b32 s3, s2, 3
    s_lshl_b32 s3, s3, 5
    s_lshr_b32 s{STMP}, s2, 3
    s_add_u32 s3, s3, s{STMP}
    s_lshl_b32 s3, s3, 15
    s_add_u32 s{SQ}, s{SPTR+8}, s3
    s_addc_u32 s{SQ+1}, s{SPTR+9}, 0
    s_mov_b32 s{SQ+2}, 32768
    s_mov_b32 s{SQ+3}, 0x20000
    """)
    if opt.get("tlb", True):
        a(f"v_lshlrev_b32 v{t6}, 17, v{W}")
        a.emit_item((f"buffer_load_dword v{TD+4}, v{t6}, {sr(SK,4)}, 0 offen nt", "touch"))
        a.emit_item((f"buffer_load_dword v{TD+5}, v{t6}, {sr(SV,4)}, 0 offen nt", "touch"))
        a(f"v_lshlrev_b32 v{t6}, 20, v{W}")
        a(f"v_add_u32 v{t6}, 0xfe000, v{t6}")
        a.emit_item((f"buffer_load_dword v{TD+7}, v{t6}, {sr(SW,4)}, 0 offen", "touch"))
    fstamp()
    if CONTIG:
        a(f"""
        v_lshl_add_u32 v{t6}, v{W}, 2, v{t3}
        v_lshlrev_b32 v{t5}, 8, v{t6}
        v_xor_b32 v{t7}, v{t6}, v{t2}
        v_lshl_add_u32 v{KDM}, v{t7}, 4, v{t5}
        v_and_b32 v{t6}, 7, v{t6}
        v_lshlrev_b32 v{t6}, 1, v{t6}
        v_xor_b32 v{t7}, v{t6}, v{t2}
        v_lshl_add_u32 v{VDM}, v{t7}, 4, v{t5}
        """)
    else:
        a(f"""
        v_lshlrev_b32 v{t5}, 8, v{t3}
        v_lshl_add_u32 v{t5}, v{W}, 12, v{t5}
        """)
        for i in range(4):
            a(f"v_add_u32 v{t6}, {4*i}, v{t3}")
            a(f"v_xor_b32 v{t7}, v{t6}, v{t2}")
            a(f"v_lshl_add_u32 v{KDM+i}, v{t7}, 4, v{t5}")
            if i < 2:
                a(f"v_lshlrev_b32 v{t6}, 1, v{t6}")
                a(f"v_xor_b32 v{t7}, v{t6}, v{t2}")
                a(f"v_lshl_add_u32 v{VDM+i}, v{t7}, 4, v{t5}")
    a(f"v_lshlrev_b32 v{t5}, 8, v{t2}\nv_add_u32 v{t5}, {kslot(0)}, v{t5}")
    for s in range(4):
        a(f"v_add_u32 v{t6}, {4*s}, v{t3}")
        a(f"v_xor_b32 v{t6}, v{t6}, v{t2}")
        a(f"v_lshl_add_u32 v{KRD+s}, v{t6}, 4, v{t5}")
    a(f"""
    v_lshrrev_b32 v{t4}, 1, v{t2}
    v_xor_b32 v{t5}, v{t4}, v{t3}
    v_lshlrev_b32 v{t5}, 4, v{t5}
    v_lshl_add_u32 v{t5}, v{t2}, 7, v{t5}
    v_lshl_add_u32 v{XRD}, v{W}, 13, v{t5}
    v_xor_b32 v{XRD2}, 64, v{XRD}
    v_lshrrev_b32 v{t4}, 2, v{t2}
    """)
    a(f"""
    v_and_b32 v{t5}, 3, v{LN}
    v_lshl_add_u32 v{t6}, v{t3}, 2, v{t4}
    v_and_b32 v{t7}, 7, v{t6}
    v_lshlrev_b32 v{t6}, 8, v{t6}
    v_lshl_add_u32 v{t6}, v{t5}, 3, v{t6}
    """)
    for dt in range(8):
        a(f"v_xor_b32 v{t8}, {dt}, v{t7}")
        a(f"v_lshl_add_u32 v{VRD+dt}, v{t8}, 5, v{t6}")
    a(f"""
    v_mul_u32_u24 v{t6}, 2056, v{t3}
    v_lshl_add_u32 v{t6}, v{t4}, 8, v{t6}
    v_lshl_add_u32 v{t6}, v{t5}, 4, v{t6}
    v_add_u32 v{t6}, {WREG}, v{t6}
    """)
    for s in range(4):
        a(f"v_xor_b32 v{t8}, {s}, v{t4}")
        a(f"v_lshl_add_u32 v{WRD+s}, v{t8}, 6, v{t6}")
    a(f"""
    v_lshl_add_u32 v{OST}, v{W}, 19, v{LN16}
    v_lshl_add_u32 v{LN16}, v{W}, 13, v{LN16}
    v_add_u32 v{QST}, {STASH}, v{LN16}
    v_cmp_eq_u32 vcc, 0, v{t5}
    v_mov_b32 v{t6}, 0x3f803f80
    s_nop 0
    v_cndmask_b32 v{t6}, 0, v{t6}, vcc
    """)
    for i in range(4):
        a(f"v_accvgpr_write_b32 a{ONES+i}, v{t6}")
        a(f"v_accvgpr_write_b32 a{ZERO+i}, 0")
    Z = ar(ZERO, 4)
    for i in range(12): a(f"{MF32} {vr(16*i,16)}, {Z}, {Z}, 0")
    for i in range(4): a(f"{MF32} {ar(16*i,16)}, {Z}, {Z}, 0")

    def w_reads(st, hd, wset):
        return [f"ds_read_b64_tr_b16 {ar(WSET[wset]+(2*s+y)*4+aa*2,2)}, v{WRD+s} offset:{wslot(st,hd) + aa*1024 + 8*y}"
                for s in range(4) for y in range(2) for aa in range(2)]
    def x_reads(st):
        return [f"ds_read_b128 {ar(XSET[st&1]+qt*4,4)}, v{XRD2 if st & 1 else XRD} offset:{xslot(st>>1) + qt*2048}" for qt in range(4)]
    def k_reads(half, dst=KF):
        return [f"ds_read_b128 {ar(dst+(kt*4+s)*4,4)}, v{KRD+s} offset:{(half*2+kt)*4096}" for s in range(4) for kt in range(2)]
    def v_reads(half, dst=VF):
        return [f"ds_read_b64_tr_b16 {ar(dst+dt*4+aa*2,2)}, v{VRD+dt} offset:{half*8192 + aa*4096}" for dt in range(8) for aa in range(2)]
    def qk_mfmas(sb, c0, src=KF, qmajor=False):
        idx = [(s, kt, qt) for s in range(4) for kt in range(2) for qt in range(4)]
        if qmajor: idx = [(s, kt, qt) for qt in range(4) for s in range(4) for kt in range(2)]
        m = []
        for s, kt, qt in idx:
            d = vr(S(sb, qt, kt), 4)
            c = d if s else ("0" if c0 else vr(NEGM(qt), 4))
            m.append(f"{MF} {d}, {ar(src+(kt*4+s)*4,4)}, {vr(QF(qt,s),4)}, {c}")
        return m
    def pv_mfmas(pb, src=VF, qmajor=False):
        def pv(dt, qt): d = ar(OA(qt, dt), 4); return f"{MF} {d}, {ar(src+dt*4,4)}, {vr(P(pb,qt),4)}, {d}"
        def ls(qt): d = ar(LA(qt), 4); return f"{MF} {d}, {ar(ONES,4)}, {vr(P(pb,qt),4)}, {d}"
        if qmajor: return [ls(qt) for qt in range(4)] + [pv(dt, qt) for qt in range(4) for dt in range(8)]
        return [pv(dt, qt) for dt in range(8) for qt in range(4)] + [ls(qt) for qt in range(4)]
    def sm_E(sb, e): r = S(sb, e // 8) + e % 8; return f"v_exp_f32 v{r}, v{r}"
    def sm_C(sb, p): r = S(sb, p // 4) + 2 * (p % 4); return f"v_cvt_pk_bf16_f32 v{P(sb, p//4) + p%4}, v{r}, v{r+1}"
    def sm_place(G1, G2, sb):
        n1 = len(G1.m)
        def put(g, it): (G1.put(g, it) if g < n1 else G2.put(g - n1, it))
        for i in range(32): put(2*i, sm_E(sb, i))
        for p in range(16): put(4*p+3, sm_C(sb, p))
    def sm_stream(sb):
        r = []
        for p in range(16):
            r += [sm_E(sb, 2*p), sm_E(sb, 2*p+1)]
            if p: r.append(sm_C(sb, p-1))
        r.append(sm_C(sb, 15))
        return r
    def dma_at(G, g, it):
        G.put(g, it); G.cap[g] = 0
    def spaced(dm, first, stride):
        out = []; nd = 0
        for it in dm:
            if isinstance(it, tuple): out.append({"i": it, "at": first + nd * stride}); nd += 1
            else: out.append(it)
        return out
    SKB, STM, SMK, SMV, SEF, SINC = SM0K, SM0V, SKL, SVL, ST2, SROT
    def piece(kind, skip=False):
        srd, so = (SK, SKO) if kind == "k" else (SV, SVO)
        if kind == "k": pre = [f"s_xor_b32 s{STM}, s{so}, 0xc000", f"s_and_b32 s{STM}, s{STM}, 0xf000", f"s_add_u32 m0, s{STM}, s{SKB}"]
        else: pre = [f"s_and_b32 s{STM}, s{so}, 0xf000", f"s_add_u32 m0, s{STM}, s{SVB}"]
        if skip:
            pre += [f"s_bitcmp1_b32 s{SMK if kind == 'k' else SMV}, s{SCNT}", f"s_cselect_b32 s{SEF}, 0x40000000, s{so}", f"s_cselect_b32 s{SINC}, 0, 4096"]
        ins = f"buffer_load_dwordx4 v{KDM if kind == 'k' else VDM}, {sr(srd,4)}, s{SEF if skip else so} offen{KVNT} lds"
        post = [f"s_add_u32 s{so}, s{so}, " + (f"s{SINC}" if skip else "4096")]
        return pre, ins, post
    def piece_at(G, g, kind, skip=False):
        pre, ins, post = piece(kind, skip)
        for j, p in enumerate(pre):
            assert not G.S[g - len(pre) + j], (g, j)
            G.put(g - len(pre) + j, p)
        if not opt.get("no_dma"): dma_at(G, g, ins)
        G.put(g + 1, post[0])
    def piece_now(kind):
        pre, ins, post = piece(kind)
        return pre + ["s_nop 0", ins] + post
    def pkmul(r, s): return f"v_pk_mul_f32 {vr(r,2)}, {vr(r,2)}, {s}"

    for it in w_dma(1): a.emit_item(it)
    fstamp()
    a(f"s_waitcnt vmcnt({a.vm_need(['w0','x0'])})")
    a("s_barrier")
    for r in x_reads(0) + w_reads(0, 1, 0): a(r)
    a(f"s_mov_b32 s{SCNT}, 0")
    stamp()
    def half_step(k, st, hd, nxt, wait, dm, extra=None, order=None):
        a(wait)
        if opt.get("qfine") and k < 8 and k % 2 == 1:
            a("s_memtime s[88:89]\ns_waitcnt lgkmcnt(0)")
            for j in range(12): a(f"s_mov_b32 s{64+2*j}, s{66+2*j}")
        if k > 24: fstamp()
        idx = [(s, y, qt) for s in range(4) for y in range(2) for qt in range(4)]
        if order: idx = [(s, y, qt) for qt in order for s in range(4) for y in range(2)]
        m = []
        for s, y, qt in idx:
            d = vr(QACC(qt, s, y), 4) if hd == 0 else Q2ACC(qt, s, y)
            m.append(f"{MF} {d}, {ar(WSET[k&1]+(2*s+y)*4,4)}, {ar(XSET[st&1]+qt*4,4)}, {d}")
        G = Sched(m)
        if nxt is None: rd = k_reads(0)
        else: rd = (x_reads(nxt[0]) if nxt[1] == 1 else []) + w_reads(nxt[0], nxt[1], (k+1) & 1)
        G.fill(rd, 0, 26, maxper=1)
        nd = sum(isinstance(x, tuple) for x in dm)
        G.fill(spaced(dm, 1 if nd > 8 else 2, {16: 2, 8: 4}.get(nd, 7)), 0, 32, maxper=(2 if nd > 8 else 1))
        post = G.post; G.post = []
        left = None
        if extra:
            G.fill(extra[0], extra[1], 32)
            left = G.post; G.post = []
        G.post = post
        G.emit(a)
        return left
    NPF = opt.get("l2pf", 0)
    SPF = 50
    PFS = opt.get("l2pf_stride", 16384)
    def pf_dma():
        r = []
        for i in range(NPF):
            kind = "k" if (i & 1) == 0 or not opt.get("l2pf_v") else "v"
            r += [(f"buffer_load_dwordx4 {vr(Q2V + 4*(i%4),4)}, v{KDM if kind == 'k' else VDM}, {sr(SK if kind == 'k' else SV,4)}, s{SPF} offen{opt.get('l2pf_pol','')}", "pf")]
            if kind == "v" or not opt.get("l2pf_v"): r += [f"s_add_u32 s{SPF}, s{SPF}, {PFS}"]
        return r
    a(f"s_mov_b32 s{SPF}, {opt.get('l2pf_first', 4)*16384}")
    half_step(0, 0, 1, (0, 0), "s_waitcnt lgkmcnt(0)", w_dma(2) + x_dma(1) + w_dma(3))
    for it in pf_dma(): a.emit_item(it)
    a(f"s_waitcnt vmcnt({16+NPF}) lgkmcnt(0)")
    a("s_branch K1_QENTRY")
    a(".p2align 6\nK1_QLOOP:")
    for st in range(4):
        half_step(2*st, st, 1, (st, 0), "s_waitcnt lgkmcnt(0)", x_dma((st+3)//2) if st & 1 else pf_dma())
        dm = w_dma(st + 4)
        if st == 3: dm += [f"s_add_u32 s{SCNT}, s{SCNT}, 1", f"s_cmp_lt_u32 s{SCNT}, 3"]
        n = 16 + (NPF if st & 1 else 2*NPF)
        half_step(2*st+1, st, 0, (st+1, 1), f"s_waitcnt vmcnt({n}) lgkmcnt(0)\n" + ("K1_QENTRY:\n" if st == 0 else "") + "s_barrier", dm)
    a("s_cbranch_scc1 K1_QLOOP")
    stamp()
    a.vm = ["w13"]*4 + ["pf"]*NPF + ["w14"]*4 + ["x7"]*8 + ["w15"]*4
    finv = []
    for qt in (2, 3):
        for s in range(4):
            b = 128 + (qt-2)*32 + s*8
            finv += [f"v_mul_f32 v{b+i}, s{SC}, v{b+i}" for i in range(8)]
            finv += [f"v_cvt_pk_bf16_f32 v{Q2V+((qt-2)*4+s)*4+p}, v{b+2*p}, v{b+2*p+1}" for p in range(4)]
    def bar(tag): return f"s_waitcnt vmcnt({a.vm_need(tag)}) lgkmcnt(0)\ns_barrier"
    L0 = "s_waitcnt lgkmcnt(0)"
    wopf = [f"s_mov_b32 s{STMP}, 4096"] + [(f"buffer_load_dwordx4 a[248:251], v{LN16}, {sr(SQ,4)}, {'0' if j < 4 else 's%d' % STMP} offen offset:{(j%4)*1024}", "wo") for j in range(8)]
    WPA = opt.get("wopf_at", 0)
    half_step(24, 12, 1, (12, 0), L0, kv_dma("k", 0) if WPA != 24 else wopf)
    half_step(25, 12, 0, (13, 1), bar("w13"), wopf if WPA == 25 else (kv_dma("k", 0) if WPA == 24 else []))
    half_step(26, 13, 1, (13, 0), L0, kv_dma("k", 1))
    half_step(27, 13, 0, (14, 1), bar(["w14", "x7"]), [])
    half_step(28, 14, 1, (15, 1), bar("w15"), kv_dma("v", 0))
    left = half_step(29, 15, 1, (14, 0), L0, kv_dma("k", 2), extra=(finv, 20), order=(2, 3, 0, 1))
    left = half_step(30, 14, 0, (15, 0), L0, kv_dma("v", 1), extra=(left, 0))
    fina = []
    for qt in (0, 1):
        for s in range(4):
            tb = 128 + ((qt*4+s) % 4) * 16
            src = OA(qt, 2*s)
            fina += [f"v_accvgpr_read_b32 v{tb+i}, a{src+i}" for i in range(8)]
            fina += [f"v_mul_f32 v{tb+i}, s{SC}, v{tb+i}" for i in range(8)]
            fina += [f"v_cvt_pk_bf16_f32 v{tb+8+p}, v{tb+2*p}, v{tb+2*p+1}" for p in range(4)]
            fina.append(f"ds_write_b128 v{QST}, {vr(tb+8,4)} offset:{(qt*4+s)*1024}")
    left = half_step(31, 15, 0, None, bar("k0"), kv_dma("v", 2), extra=(left + fina, 0), order=(0, 1, 2, 3))
    stamp()
    i = 0
    while i < len(left):
        x = left[i]
        if x.startswith("v_mul_f32") and i + 1 < len(left) and left[i+1].startswith("v_mul_f32"):
            r = int(x.split()[1][1:-1])
            if r % 2 == 0:
                a(pkmul(r, sr(SC, 2))); i += 2; continue
        a(x); i += 1
    for qt in range(4):
        for s in range(4):
            b = QACC(qt, s, 0)
            for i in range(4): a(pkmul(b+2*i, sr(SC, 2)))
        if qt == 0: a("s_waitcnt lgkmcnt(0)")
        for s in range(4):
            b = QACC(qt, s, 0)
            for p in range(4): a(f"v_cvt_pk_bf16_f32 v{QF(qt,s)+p}, v{b+2*p}, v{b+2*p+1}")
    a(f"""
    s_mov_b32 s{SKO}, {3*16384}
    s_mov_b32 s{SVO}, {3*16384}
    s_mov_b32 s{SEV}, 15
    s_mov_b32 s{SVB}, s{SW1K}
    s_add_u32 s{SKB}, s{SW1K}, {KRING}
    s_mov_b32 s{SMK}, {opt.get('mk0', 0x5555)}
    s_mov_b32 s{SMV}, {opt.get('mv0', 0x4444)}
    """)
    if opt.get("trip_ts"):
        a("s_mov_b32 s34, 0\ns_mov_b32 s32, 0\nv_mbcnt_lo_u32_b32 v205, -1, 0\nv_mbcnt_hi_u32_b32 v205, -1, v205\nv_mov_b32 v207, 0")
    u0, u1, u2, u3 = 210, 211, 212, 213
    a(f"""
    s_load_dwordx2 s[32:33], s[0:1], 88
    s_memrealtime s[34:35]
    s_and_b32 s3, s2, 3
    s_lshl_b32 s3, s3, 20
    s_bfe_u32 s{STMP}, s2, 0x20003
    s_lshl_b32 s{STMP}, s{STMP}, 8
    s_add_u32 s3, s3, s{STMP}
    s_add_u32 s{SW}, s{SPTR+8}, s3
    s_addc_u32 s{SW+1}, s{SPTR+9}, 0
    s_sub_u32 s{SW+2}, 1048576, s{STMP}
    v_mbcnt_lo_u32_b32 v{u0}, -1, 0
    v_mbcnt_hi_u32_b32 v{u0}, -1, v{u0}
    v_lshlrev_b32 v{VLZ}, 20, v{u0}
    v_lshrrev_b32 v{u1}, 4, v{u0}
    v_and_b32 v{u0}, 15, v{u0}
    v_lshlrev_b32 v{u2}, 1, v{u1}
    v_xor_b32 v{u2}, v{u2}, v{u0}
    s_and_b32 s3, s2, 3
    s_lshl_b32 s3, s3, 2
    v_xor_b32 v{u2}, s3, v{u2}
    v_lshlrev_b32 v{u2}, 4, v{u2}
    v_lshl_add_u32 v{u2}, v{u1}, 10, v{u2}
    s_lshl_b32 s3, s{SW1K}, 3
    v_add_u32 v{WD2}, s3, v{u2}
    v_xor_b32 v{WD2+1}, 128, v{WD2}
    v_add_u32 v{WD2+1}, 3072, v{WD2+1}
    v_lshlrev_b32 v{u2}, 11, v{u0}
    v_and_b32 v{u3}, 1, v{u1}
    v_lshl_add_u32 v{u2}, v{u3}, 5, v{u2}
    v_lshrrev_b32 v{u3}, 1, v{u1}
    v_lshl_add_u32 v{u2}, v{u3}, 4, v{u2}
    s_lshl_b32 s3, s{SW1K}, 7
    v_add_u32 v{OUTV}, s3, v{u2}
    s_waitcnt lgkmcnt(0)
    s_mov_b32 s{SX}, s32
    s_mov_b32 s{SX+1}, s33
    s_mov_b32 s{SX+2}, 4
    s_andn2_b32 s3, s34, 30
    s_or_b32 s3, s3, 1
    v_mov_b32 v{u2}, s3
    v_mov_b32 v{u3}, 0
    """)
    a.emit_item((f"buffer_atomic_cmpswap {vr(u2,2)}, v{VLZ}, {sr(SX,4)}, s{SW1K} offen sc1", "nonce"))
    pro_vm = list(a.vm)
    a("K1_PRO:")
    stamp()
    a("s_waitcnt lgkmcnt(0)")
    zm = [f"{MF32} {ar(16*i,16)}, {Z}, {Z}, 0" for i in range(9)]
    G = Sched(qk_mfmas(0, True, KF, True) + zm + qk_mfmas(1, False, VF, True))
    for gp in (9, 27, 44, 62): piece_at(G, gp, "k")
    G.fill(k_reads(1, VF), 0, 16, maxper=1)
    G.tail(40, "s_waitcnt lgkmcnt(0)")
    mx = []
    for qt in range(4):
        s0 = S(0, qt); m_ = TMPQ(qt); t_ = m_ + 1; ng = NEGM(qt)
        bias = f"s{SBIAS}" if qt == 3 else "0"
        ch = [f"v_max3_f32 v{m_}, v{s0}, v{s0+1}, v{s0+2}", f"v_max3_f32 v{t_}, v{s0+3}, v{s0+4}, v{s0+5}",
              f"v_max3_f32 v{m_}, v{m_}, v{s0+6}, v{s0+7}", f"v_max_f32 v{m_}, v{m_}, v{t_}", f"v_mov_b32 v{t_}, v{m_}",
              {"i": f"v_permlane16_swap_b32 v{m_}, v{t_}", "new": True}, f"v_max_f32 v{m_}, v{m_}, v{t_}", f"v_mov_b32 v{t_}, v{m_}",
              {"i": f"v_permlane32_swap_b32 v{m_}, v{t_}", "new": True}, f"v_max_f32 v{m_}, v{m_}, v{t_}",
              f"v_sub_f32 v{ng}, {bias}, v{m_}"] + [f"v_mov_b32 v{ng+i}, v{ng}" for i in range(1, 4)] + \
             [f"v_add_f32 v{s0+i}, v{s0+i}, v{ng}" for i in range(8)]
        ch[0] = {"i": ch[0], "at": 8*qt + 11}
        mx += ch
    g = G.fill(mx, 0, len(G.m))
    assert not G.post, len(G.post)
    for qt in range(4):
        gg = [i for i, v in enumerate(G.V) if f"v_mov_b32 v{NEGM(qt)+3}, v{NEGM(qt)}" in v][0]
        assert gg < 41 + 8*qt - 1, (qt, gg)
    G.fill(sm_stream(0), g, len(G.m))
    tailv = G.post; G.post = []
    G.emit(a)
    a.vm = list(pro_vm)
    for s in range(4): a(f"v_subrev_u32 v{KRD+s}, 16384, v{KRD+s}")
    a(f"s_waitcnt vmcnt(8) lgkmcnt(0)")
    a("s_barrier")
    kr = k_reads(0)
    for i in range(2):
        pre, ins, post = piece("k")
        for p in pre: a(p)
        for r in kr[4*i:4*i+4]: a(r)
        a(ins)
        for p in post: a(p)
    a(f"""
    s_mov_b32 s{SA_}, {kslot(1) - KRING}
    s_mov_b32 s{SBB}, 0
    s_mov_b32 s{SCNT}, 0
    """)
    for it in tailv: a(it)
    a("s_waitcnt lgkmcnt(0)")
    stamp()
    a(".p2align 6")
    a("K1_LOOP:")
    def trip(last=None, mid=False):
        G1 = Sched(qk_mfmas(0, False)); G2 = Sched(pv_mfmas(0)); G3 = Sched(qk_mfmas(1, False)); G4 = Sched(pv_mfmas(1))
        sm_place(G1, G2, 1); sm_place(G3, G4, 0)
        if last: xw = last(G1, G2, G3, G4)
        else:
            xw = opt.get('xwait', 4)
            piece_at(G4, 9, "k"); piece_at(G4, 25, "k"); piece_at(G1, 9, "k", True); piece_at(G1, 25, "k")
            piece_at(G2, 9, "v"); piece_at(G2, 25, "v"); piece_at(G3, 9, "v", True); piece_at(G3, 25, "v")
        G1.fill(v_reads(0), 0, 30); G1.put(31, "s_waitcnt lgkmcnt(0)")
        G2.fill(k_reads(1), 0, 30, maxper=1)
        G2.put(35, "s_waitcnt lgkmcnt(0)")
        G3.fill(v_reads(1), 0, 30)
        G3.put(31, f"s_waitcnt vmcnt({xw}) lgkmcnt(0)" if not opt.get("no_dma") else "s_waitcnt lgkmcnt(0)")
        G3.tail(31, "s_barrier")
        if last:
            if mid:
                G2.fill([f"v_subrev_u32 v{KRD+s}, 16384, v{KRD+s}" for s in range(4)], 32, 36)
                G4.fill(k_reads(0), 0, 30, maxper=1)
                G4.put(35, "s_waitcnt lgkmcnt(0)")
            G4.fill([f"v_add_u32 v{VRD+dt}, 16384, v{VRD+dt}" for dt in range(8)], 21, 36)
        else:
            sal = [f"s_sub_u32 s{SN}, s{SA_}, 16384", f"s_and_b32 s{SN}, s{SN}, 0xffff", f"s_sub_u32 s{SDK}, s{SN}, s{SA_}", f"s_mov_b32 s{SA_}, s{SN}",
                   f"s_add_u32 s{SN}, s{SBB}, 16384", f"s_and_b32 s{SN}, s{SN}, 0xffff", f"s_sub_u32 s{SDV}, s{SN}, s{SBB}", f"s_mov_b32 s{SBB}, s{SN}",
                   f"s_add_u32 s{SCNT}, s{SCNT}, 1"]
            G2.fill(sal, 12, 22, maxper=1)
            G2.fill([f"v_add_u32 v{KRD+s}, s{SDK}, v{KRD+s}" for s in range(4)], 32, 36)
            G4.fill(k_reads(0), 0, 30, maxper=1)
            G4.fill([f"v_add_u32 v{VRD+dt}, s{SDV}, v{VRD+dt}" for dt in range(8)], 21, 36)
            G4.put(34, f"s_cmp_lt_u32 s{SCNT}, s{SEV}")
            G4.put(35, "s_waitcnt lgkmcnt(0)")
            G4.tail(35, "s_cbranch_scc1 K1_LOOP")
        if opt.get("exp_slow") and not last:
            for G in (G1, G2, G3, G4):
                for j in range(opt["exp_slow"]): G.tail(2 + 6*j, "s_nop 3")
        for G in (G1, G2, G3, G4):
            assert not G.post
            G.emit(a)
    trip()
    a(f"s_cmp_eq_u32 s{SR}, 1\ns_cbranch_scc1 K1_FINAL")
    OSTNT = opt.get("o_store", " sc1"); OSTNT2 = opt.get("o_store2", OSTNT)
    def oepi(qt, final):
        r = []
        for s in range(4):
            tb = [0, 8, 32, 40][s]
            pb = [64, 68, 72, 76][s]
            if not final and qt >= 2: pb = Q2V + ((qt-2)*4+s)*4
            if final: tb = 224 + 8*(s & 1); pb = 240 + 4*s
            src = OA(qt, 2*s)
            r += [f"v_accvgpr_read_b32 v{tb+i}, a{src+i}" for i in range(8)]
            r += [f"v_pk_mul_f32 {vr(tb+2*i,2)}, {vr(tb+2*i,2)}, {vr(RCP+2*qt,2)}" for i in range(4)]
            r += [f"v_cvt_pk_bf16_f32 v{pb+p}, v{tb+2*p}, v{tb+2*p+1}" for p in range(4)]
            if final: r.append(f"buffer_store_dwordx4 {vr(pb,4)}, v{OST}, {sr(SO,4)}, s{SOO+qt} offen offset:{s*1024}{OSTNT2}")
            elif qt < 2: r.append(f"ds_write_b128 v{QST}, {vr(pb,4)} offset:{(qt*4+s)*1024}")
        return r
    nk = 2 - 4 + bin(opt.get('mk0', 0x5555)).count('1'); nv = 4 + bin(opt.get('mv0', 0x4444)).count('1')
    assert nk >= 0
    order = ["k", "k"][:nk]
    while len(order) < nk + nv:
        if order.count("v") < nv: order.append("v")
        if order.count("k") < nk: order.append("k")
    lread = [f"v_accvgpr_read_b32 v{RCP+2*qt}, a{LA(qt)}" for qt in range(4)]
    rest_m = [f"ds_read_b128 {vr(QF(j//4, j%4),4)}, v{QST} offset:{j*1024}" for j in range(8)]
    rcps = [f"v_rcp_f32 v{RCP+2*qt}, v{RCP+2*qt}" for qt in range(4)] + [f"v_mov_b32 v{RCP+2*qt+1}, v{RCP+2*qt}" for qt in range(4)]
    rest_v = [f"v_mov_b32 v{QF(2,0)+i}, v{Q2V+i}" for i in range(32)]
    def drain(final, hook30=None, hook31=None):
        for r in v_reads(0): a(r)
        sm = sm_stream(1)
        for x in sm[:9]: a(x)
        a("s_waitcnt lgkmcnt(0)")
        G = Sched(pv_mfmas(0))
        V2 = KF if final else XF
        G.fill(v_reads(1, V2), 0, 36, maxper=2)
        if final: hook30(G)
        else:
            for j in range(4): piece_at(G, 9 + 8*j, order[j])
        G.fill(sm[9:], 0, 36)
        G.emit(a)
        a("s_waitcnt lgkmcnt(0)")
        G = Sched(pv_mfmas(1, V2, True))
        if final: hook31(G)
        else:
            for j in range(min(3, len(order) - 4)): piece_at(G, 3 + 5*j, order[4+j])
        st1 = [f"v_subrev_u32 v{VRD+dt}, {3*16384}, v{VRD+dt}" for dt in range(8)]
        st1 += [{"i": lread[0], "at": 9}] + lread[1:]
        masks = ["s[32:33]", "s[34:35]", "s[36:37]", "vcc"]
        st1 += [f"v_cmp_nge_f32 {masks[qt]}, s{STMP}, v{RCP+2*qt}" for qt in range(4)]
        G.put(3, f"s_mov_b32 s{STMP}, 0x{opt.get('thresh', 0x53800000):08x}")
        g = G.fill(st1, 0, 16)
        assert not G.post
        G.put(16, "s_or_b64 s[32:33], s[32:33], s[34:35]")
        G.put(17, "s_or_b64 s[36:37], s[36:37], vcc")
        G.put(18, "s_or_b64 s[32:33], s[32:33], s[36:37]")
        G.tail(18, "s_cbranch_scc1 K1_SLOW")
        G.fill(rcps, g + 1, 36)
        if not final:
            G.fill(rest_m, 19, 36)
            G.fill(rest_v, 19, 36)
        G.emit(a)
    def dump_stamps(rnd, vt):
        if opt.get('dbg_span'):
            a('s_waitcnt lgkmcnt(0)\ns_mov_b32 s96, s66\ns_mov_b32 s98, s86')
            return
        if not stamps: return
        if opt.get('qfine'):
            if rnd: return
            nstamp[0] = 16
        a("s_waitcnt lgkmcnt(0)")
        a(f"""
        s_add_u32 s{SDMP}, s{SWS}, 0x4000000
        s_addc_u32 s{SDMP+1}, s{SWS+1}, 0
        s_mov_b32 s{SDMP+2}, 0x100000
        s_mov_b32 s{SDMP+3}, 0x20000
        s_mul_i32 s3, s2, 3
        s_add_u32 s3, s3, {rnd}
        s_lshl_b32 s3, s3, 10
        s_lshr_b32 s{STMP}, s{SW4K}, 4
        s_add_u32 s3, s3, s{STMP}
        v_mov_b32 v{vt}, s3
        """)
        for i in range(0, nstamp[0], 2):
            for j in range(4): a(f"v_mov_b32 v{vt+4+j}, s{STS+2*i+j}")
            a(f"buffer_store_dwordx4 {vr(vt+4,4)}, v{vt}, {sr(SDMP,4)}, 0 offen offset:{8*i}")
            a("s_nop 1")
    nl = nstamp[0]
    stamp()
    drain(False)
    a("K1_SLOW_RET:")
    stamp()
    a("s_waitcnt lgkmcnt(0)")
    F0 = opt.get('flush_at', 11)
    rem = order[7:]
    ep = [x for qt in range(3) for x in oepi(qt, False)] + [f"ds_read_b128 {ar(XF+4*j,4)}, v{QST} offset:{j*1024}" for j in range(8)] + oepi(3, False)
    step = len(ep) // max(len(rem), 1)
    for j, x in enumerate(ep):
        if j % step == 0 and j // step < len(rem):
            for y in piece_now(rem[j // step]): a(y)
        a(x)
    n0 = nstamp[0]
    dump_stamps(0, 96)
    a(f"""
    buffer_load_dword v{VTAG}, v{VLZ}, {sr(SX,4)}, 0 offen sc1
    s_add_u32 s{SX}, s{SWS}, {FLAGOFF}
    s_addc_u32 s{SX+1}, s{SWS+1}, 0
    s_mov_b32 s{SX+2}, 0x40000
    s_lshl_b32 s3, s{SBR}, 3
    s_add_u32 s3, s3, s{SB_}
    s_lshl_b32 s3, s3, 2
    s_and_b32 s{STMP}, s2, 3
    s_add_u32 s3, s3, s{STMP}
    s_lshl_b32 s3, s3, 9
    s_lshr_b32 s{STMP}, s{SW1K}, 3
    s_add_u32 s{SFO}, s3, s{STMP}
    s_mov_b32 s{SR}, 1
    s_mov_b32 s{SEV}, 13
    s_mov_b32 s{SMK}, {opt.get('mk1', 0x0555)}
    s_mov_b32 s{SMV}, {opt.get('mv1', 0)}
    s_branch K1_PRO
    K1_FINAL:
    """)
    stash_rd = []
    nstamp[0] = nl
    import optail
    optail.gen(a, opt, globals(), locals())
    KA, VA, LNv = RCP, RCP + 1, RCP + 2
    SU, SU2, SE_ = 32, 33, 34
    def VFR(dt): return S(1, dt >> 1) + 4 * (dt & 1)
    def kload():
        for kt in range(2):
            for s_ in range(4):
                a(f"buffer_load_dwordx4 {ar(VF+(kt*4+s_)*4,4)}, v{KA}, {sr(SK,4)}, s{SU2 if kt else SU} offen offset:{s_*64}")
    a(f"""
    K1_SLOW:
    s_waitcnt vmcnt(0)
    s_nop 7
    s_nop 7
    v_mbcnt_lo_u32_b32 v{LNv}, -1, 0
    v_mbcnt_hi_u32_b32 v{LNv}, -1, v{LNv}
    v_and_b32 v{VA}, 15, v{LNv}
    v_lshrrev_b32 v{LNv}, 4, v{LNv}
    v_lshlrev_b32 v{KA}, 8, v{VA}
    v_lshl_add_u32 v{KA}, v{LNv}, 4, v{KA}
    v_lshlrev_b32 v{VA}, 1, v{VA}
    v_lshl_add_u32 v{VA}, v{LNv}, 10, v{VA}
    s_lshl_b32 s{SU}, s{SR}, 18
    s_add_u32 s{SE_}, s{SU}, 262144
    """)
    for qt in range(4): a(f"v_mov_b32 v{TMPQ(qt)}, 0xff800000")
    a(f"K1_SL1:\ns_add_u32 s{SU2}, s{SU}, 4096")
    kload()
    a("s_waitcnt vmcnt(0)")
    for m in qk_mfmas(0, True, VF): a(m)
    a("s_nop 7")
    for qt in range(4):
        for i in range(0, 8, 2): a(f"v_max3_f32 v{TMPQ(qt)}, v{TMPQ(qt)}, v{S(0,qt)+i}, v{S(0,qt)+i+1}")
    a(f"s_add_u32 s{SU}, s{SU}, 8192\ns_cmp_lt_u32 s{SU}, s{SE_}\ns_cbranch_scc1 K1_SL1")
    for qt in range(4):
        m_ = TMPQ(qt); t_ = m_ + 1; ng = NEGM(qt)
        bias = f"s{SBIAS}" if qt == 3 else "0"
        for x in [f"v_mov_b32 v{t_}, v{m_}", f"v_permlane16_swap_b32 v{m_}, v{t_}", f"v_max_f32 v{m_}, v{m_}, v{t_}", f"v_mov_b32 v{t_}, v{m_}",
                  f"v_permlane32_swap_b32 v{m_}, v{t_}", f"v_max_f32 v{m_}, v{m_}, v{t_}", f"v_sub_f32 v{ng}, {bias}, v{m_}"] + \
                 [f"v_mov_b32 v{ng+i}, v{ng}" for i in range(1, 4)]: a(x)
    for x in zm: a(x)
    a(f"s_lshl_b32 s{SU}, s{SR}, 18\nK1_SL2:\ns_add_u32 s{SU2}, s{SU}, 4096")
    kload()
    for aa in range(2):
        def HT(dt, jp): n = dt*2 + jp; return P(1, n >> 2) + (n & 3)
        for dt in range(8):
            for j in range(4):
                d = HT(dt, j >> 1) if j & 1 else VFR(dt) + aa*2 + (j >> 1)
                a(f"buffer_load_ushort v{d}, v{VA}, {sr(SV,4)}, s{SU2 if aa else SU} offen offset:{j*256+dt*32}")
        a("s_waitcnt vmcnt(0)")
        for dt in range(8):
            for jp in range(2):
                d = VFR(dt) + aa*2 + jp
                a(f"v_lshl_or_b32 v{d}, v{HT(dt,jp)}, 16, v{d}")
    for m in qk_mfmas(0, False, VF): a(m)
    a("s_nop 7")
    for x in sm_stream(0): a(x)
    a("s_nop 1")
    for dt in range(8):
        for qt in range(4):
            d = ar(OA(qt, dt), 4)
            a(f"{MF} {d}, {vr(VFR(dt),4)}, {vr(P(0,qt),4)}, {d}")
    for qt in range(4):
        d = ar(LA(qt), 4)
        a(f"{MF} {d}, {ar(ONES,4)}, {vr(P(0,qt),4)}, {d}")
    a(f"s_add_u32 s{SU}, s{SU}, 8192\ns_cmp_lt_u32 s{SU}, s{SE_}\ns_cbranch_scc1 K1_SL2")
    a("s_nop 7")
    for x in lread + rcps: a(x)
    a(f"s_cmp_eq_u32 s{SR}, 1\ns_cbranch_scc1 K1_SLOW_RET2")
    for x in rest_m + rest_v: a(x)
    a(f"""
    s_branch K1_SLOW_RET
    K1_END:
    s_endpgm
    """)

def desc(name, vgpr=512, acc=256, sgpr=102):
    return f""".amdhsa_kernel {name}
  .amdhsa_next_free_vgpr {vgpr}
  .amdhsa_next_free_sgpr {sgpr}
  .amdhsa_accum_offset {acc}
  .amdhsa_group_segment_fixed_size 0
  .amdhsa_kernarg_size 104
  .amdhsa_user_sgpr_count 2
  .amdhsa_user_sgpr_kernarg_segment_ptr 1
  .amdhsa_system_sgpr_workgroup_id_x 1
.end_amdhsa_kernel
"""
```

```python
from asmlib import *
def gen(a, opt, G_, L_):
    g = dict(G_); g.update(L_)
    for k in ("MF MF32 SK SV SX SW SO SQ SWS SBR SB_ STMP SW1K SW4K SFO SCNT SOO VRD OST LN16 WD2 OUTV VLZ VTAG KF VF XF Q2V QST RCP ZERO "
              "stamp dump_stamps nstamp Z n0 SEV drain dma_at OA trip piece").split():
        globals()[k] = g[k]
    R = 8
    def ACC(q, l): return ((l >> 1)*4 + q)*8 + (l & 1)*4
    def AF(k, l): return 176 + ((k-(32-R))*2+l)*4 if (k >= 32-R and l < 2) else KF + l*4
    def O1(q, s): return ar(XF+(q*4+s)*4, 4) if q < 2 else vr(Q2V+((q-2)*4+s)*4, 4)
    def O2r(q, s): return 128 + (s*4+q)*4
    def BF(k, q):
        if k < 4: return O1(q, k)
        if k < 8: return vr(O2r(q, k-4), 4)
        return ar(OA(q, k & 7), 4)
    KT = [(0, 0, s) for s in range(4)] + [(0, 1, s) for s in range(4)] + \
         [(x, 0, s) for s in range(4) for x in (1, 2, 3)] + [(x, 1, s) for s in range(4) for x in (1, 2, 3)]
    SRO, SE, SD = SK, SV, SQ
    SB4 = [46, 47, 50, 51]
    SWO, SW2K, STAG, SF2, SXF, SP = 52, 53, 54, 28, 29, 30
    SO2 = [45, 48, 49, 101]
    VL4, FLV = 204, 208
    def ucalc(dst, k, sh):
        x, hd, s = KT[k]
        return [f"s_xor_b32 s{dst}, s{SP}, {x*8 + hd*4 + s}", f"s_lshl_b32 s{dst}, s{dst}, {sh}"]
    def d_ops(k):
        return ucalc(SWO, k, 15) + [f"s_add_u32 m0, s{SW2K}, {(k & 7)*8192}",
             (f"buffer_load_dwordx4 v{WD2}, {sr(SW,4)}, s{SWO} offen lds", f"d{k}"),
             (f"buffer_load_dwordx4 v{WD2+1}, {sr(SW,4)}, s{SWO} offen offset:1024 lds", f"d{k}")]
    def b_ops(k):
        r = ucalc(SB4[0], k, 10)
        for q in range(4):
            if q: r.append(f"s_add_u32 s{SB4[0]}, s{SB4[0]}, 131072")
            r.append((f"buffer_load_dwordx4 {BF(k,q)}, v{OST}, {sr(SRO,4)}, s{SB4[0]} offen sc1", f"b{k}"))
        return r
    def a_reads(k, l):
        return [f"ds_read_b64_tr_b16 {ar(AF(k,l)+aa*2,2)}, v{VRD+l} offset:{(k&7)*8192 + aa*4096}" for aa in range(2)]
    def st1(q, s): return (f"buffer_store_dwordx4 {O1(q,s)}, v{OST}, {sr(SO,4)}, s{SOO+q} offen offset:{s*1024} sc1", "o1")
    def st2(q, s): return (f"buffer_store_dwordx4 {vr(O2r(q,s),4)}, v{OST}, {sr(SO,4)}, s{SO2[q]} offen offset:{s*1024} sc1", "o2" if s < 2 else "o3")
    wopf = [(f"buffer_load_dwordx4 a[248:251], v{LN16}, {sr(SQ,4)}, {'0' if j < 4 else 's%d' % SB4[2]} offen offset:{(j%4)*1024}", "wo") for j in range(8)]
    def place(G, ops, gaps):
        gi = iter(gaps); pend = []; prev = -1
        for x in ops:
            if isinstance(x, tuple):
                gp = next(gi)
                assert gp > prev
                c = [j for j in range(prev + 1, gp) if not G.S[j]] or list(range(prev + 1, gp)) or [gp]
                for i, y in enumerate(pend): G.put(c[max(0, len(c) - len(pend) + i)], y)
                pend = []; prev = gp
                G.put(gp, x); G.cap[gp] = min(G.cap[gp], 0)
            else: pend.append(x)
        assert not pend
    a.vm = ["v31"]*4 + ["kd"]*2
    a(f"""
    s_lshl_b32 s{SW2K}, s{SW1K}, 1
    s_and_b32 s{SP}, s2, 24
    s_mov_b32 s{SB4[2]}, 4096
    """)
    if opt.get("code_pf2", False):
        a(f"""
        s_getpc_b64 s[32:33]
        s_mov_b32 s34, TAIL_BYTES
        s_mov_b32 s35, 0x20000
        s_lshr_b32 s3, s2, 3
        s_lshl_b32 s3, s3, 10
        s_lshl_b32 s{STMP}, s{SW1K}, 9
        v_subrev_u32 v{FLV}, s{STMP}, v{OST}
        s_lshl_b32 s{STMP}, s{SW1K}, 5
        s_add_u32 s3, s3, s{STMP}
        """)
        a.emit_item((f"buffer_load_dwordx4 a[252:255], v{FLV}, s[32:35], s3 offen", "cpf"))
    o1 = [st1(q, s) for s in range(4) for q in range(4)]
    seq = (wopf + o1) if opt.get("wo_first", True) else (o1[:8] + wopf + o1[8:])
    NVL = bin(opt.get("mv1", 0)).count("1"); NKL = bin(opt.get("mk1", 0x0555)).count("1")
    assert NVL <= 4 and NKL <= 6
    vp = []
    for i in range(NVL):
        pre, ins, post = piece("v")
        vp.append(([f"s_add_u32 s47, s47, 4096"] if i else []) + pre + [(ins, "v31")])
    items = vp + [[x] for x in seq]
    def take(n):
        r = [y for x in items[:n] for y in x]; del items[:n]; return r
    def t13(G1, G2, G3, G4):
        place(G1, take(3), [5, 13, 25]); place(G2, take(4), [5, 13, 21, 29]); place(G3, take(3), [1, 13, 25]); place(G4, take(3), [5, 17, 33])
        return 10
    def t14(G1, G2, G3, G4):
        place(G1, take(3), [1, 13, 25]); place(G2, take(5), [1, 9, 17, 25, 33]); place(G3, take(3), [1, 13, 25])
        n = min(2, len(items))
        place(G4, d_ops(0) + d_ops(1) + d_ops(2) + take(n), [3, 5, 9, 13, 17, 19, 29, 33][:6+n])
        return 24 - NVL
    trip(t13, True)
    trip(t14)
    stamp()
    def h30(G):
        n = len(items)
        place(G, d_ops(3) + d_ops(4) + take(n), [9, 12, 16, 19, 25, 32][:4+n])
    def h31(G): pass
    drain(True, h30, h31)
    a("K1_SLOW_RET2:")
    stamp()
    a(f"""
    s_load_dwordx2 s[36:37], s[0:1], 80
    s_lshl_b32 s{STMP}, s{SP}, 10
    s_sub_u32 s{SRO}, s{SO}, s{STMP}
    s_subb_u32 s{SRO+1}, s{SO+1}, 0
    s_add_u32 s{SRO+2}, s{SO+2}, s{STMP}
    s_lshr_b32 s3, s{SP}, 1
    s_add_u32 s{SF2}, s3, s{SFO}
    s_mov_b32 s{SEV}, 0
    v_readfirstlane_b32 s{STAG}, v{VTAG}
    v_lshrrev_b32 v{VL4}, 18, v{VLZ}
    v_min_u32 v{VL4}, 12, v{VL4}
    """)
    for q in range(4): a(f"s_add_u32 s{SO2[q]}, s{SOO+q}, 4096")
    a(f"s_waitcnt vmcnt({a.vm_need(['d0','d1'])}) lgkmcnt(0)\ns_barrier")
    for l in range(8):
        for r in a_reads(0, l): a(r)
    def ep(q, s, pk):
        t = O2r(q, s); src = OA(q, 2*s)
        r = [f"v_accvgpr_read_b32 v{t+i}, a{src+i}" for i in range(8)]
        if pk: r += [f"v_pk_mul_f32 {vr(t+2*i,2)}, {vr(t+2*i,2)}, {vr(RCP+2*q,2)}" for i in range(4)]
        else: r += [f"v_mul_f32 v{t+i}, v{t+i}, v{RCP+2*q}" for i in range(8)]
        r += [f"v_cvt_pk_bf16_f32 v{t+p}, v{t+2*p}, v{t+2*p+1}" for p in range(4)]
        return r
    NPRE = opt.get("ep_pre", 4)
    grp = [(q, s) for s in range(4) for q in range(4)]
    for q, s in grp[:NPRE]:
        for x in ep(q, s, True): a(x)
    eps = [(s, ep(q, s, False)) for q, s in grp[NPRE:]]
    setup = f"""s_and_b32 s35, s2, 3
    s_lshl_b32 s{STMP}, s35, 15
    s_sub_u32 s{SE}, s{SO}, s{STMP}
    s_subb_u32 s{SE+1}, s{SO+1}, 0
    s_add_u32 s{SE+2}, s{SO+2}, s{STMP}
    s_lshl_b32 s3, s{SBR}, 3
    s_add_u32 s3, s3, s{SB_}
    s_lshl_b32 s3, s3, 5
    s_add_u32 s3, s3, s{SP}
    s_lshl_b32 s{SXF}, s3, 8
    s_add_u32 s{SXF}, s{SXF}, 32768
    s_lshr_b32 s3, s{SW1K}, 3
    s_add_u32 s{SXF}, s{SXF}, s3
    s_lshl_b32 s3, s{SBR}, 10
    s_lshl_b32 s{STMP}, s{SP}, 5
    s_add_u32 s3, s3, s{STMP}
    s_lshl_b32 s{STMP}, s35, 6
    s_add_u32 s3, s3, s{STMP}
    s_sub_u32 s{SD+2}, {240*2048}, s3
    s_mul_i32 s{STMP}, s{SB_}, {240*2048}
    s_add_u32 s3, s3, s{STMP}
    s_add_u32 s{SD}, s36, s3
    s_addc_u32 s{SD+1}, s37, 0"""
    a(setup)
    nstamp[0] = 0
    stamp()
    a("s_waitcnt lgkmcnt(0)")
    plan = {k: [] for k in range(32)}
    for k in range(0, 27): plan[k] = d_ops(k+5)
    PUB = {1: opt.get("pub1", 0), 2: opt.get("pub2", 11), 3: opt.get("pub3", 18), 4: 21}
    POL = {1: opt.get("pol1", 2), 2: opt.get("pol2", 14), 3: opt.get("pol3", 20), 4: 28}
    o2 = [st2(q, s) for s in range(4) for q in range(4)]
    S2 = opt.get("o2_first", 0)
    LB = opt.get("lb", 4)
    for kb in range(8, 32):
        f, k0 = (1, 8) if kb < 20 else ((2, 20) if kb < 26 else (3, 26))
        at = max(kb - LB, POL[f] + 2 + (kb - k0) // 2)
        assert at < kb
        assert kb >= 16 or at >= 4 + ((kb & 7) >> 1) - (NPRE // 4 > ((kb & 7) >> 1)) * 9, (kb, at)
        plan[at] += b_ops(kb)
    for i, x in enumerate(o2): plan[S2 + i].append(x)
    for f in POL: plan[POL[f]].insert(0, (f"buffer_load_dword v{FLV}, v{VL4}, {sr(SX,4)}, s{SFO} offen offset:{16*(f-1)} sc1", f"f{f}"))
    chk = f"v_cmp_ne_u32 vcc, s{STAG}, v{FLV}"
    for k in range(32):
        need = []
        if k >= 8: need.append(f"b{k}")
        if k & 1: need += [f"d{k+1}", f"d{k+2}"]
        for f in PUB:
            if k == PUB[f]: need.append(f"o{f}"); assert not any(isinstance(x, tuple) and x[1] == f"o{f}" for kk in range(k, 32) for x in plan[kk])
        if any(t in a.vm for t in need): a(f"s_waitcnt vmcnt({a.vm_need(need)})")
        if k & 1 and k < 31: a("s_barrier")
        for f in PUB:
            if k == PUB[f]: a.emit_item((f"buffer_store_dword v{VTAG}, v{VLZ}, {sr(SX,4)}, s{SF2} offen offset:{16*(f-1)} sc1", "p"))
        ls = list(range(8)) if k < 32 - R else list(range(2, 8))
        m = [f"{MF} {vr(ACC(q,l),4)}, {ar(AF(k,l),4)}, {BF(k,q)}, {vr(ACC(q,l),4) if k else '0'}" for l in ls for q in range(4)]
        G = Sched(m); n = len(m)
        if k < 31:
            extra = [] if len(ls) == 8 else a_reads(k+1, 0) + a_reads(k+1, 1)
            for j, x in enumerate(extra): G.put(j, x)
            for i, l in enumerate(ls):
                rd = a_reads(k+1, l)
                if i < len(ls) - 1: G.put(4*i + 4, rd[0]); G.put(4*i + 5, rd[1])
                else: G.tail(n - 1, rd)
        for i in range(len(ls)): G.put(4*i + 3, f"s_waitcnt lgkmcnt({6 if k < 31 else max(0, 8 - 2*i)})")
        nv = sum(isinstance(x, tuple) for x in plan[k])
        slots = [x for x in range(3, n) if x % 4 in (2, 3)]
        if nv > len(slots): slots = list(range(3, n))
        if nv: slots = [slots[(i * len(slots)) // nv] for i in range(nv)]
        place(G, plan[k], slots)
        if S2 <= k < S2 + 16: assert 16 - len(eps) > k - S2, (k, len(eps))
        if eps:
            flat = [x for _, e in eps for x in e]
            G.fill(flat, 0, n)
            left = G.post; G.post = []
            used = len(flat) - len(left)
            new = []
            for s_, e in eps:
                if used >= len(e): used -= len(e); continue
                e = e[used:]; used = 0
                if s_ <= k + 1 - 4: G.post += e
                else: new.append((s_, e))
            eps = new
        G.emit(a)
        for f in POL:
            if k == POL[f] + 1:
                a(f"s_waitcnt vmcnt({a.vm_need('f%d' % f)})\n{chk}\ns_cmp_eq_u32 vcc_lo, 0\ns_cbranch_scc0 K1_SPIN{f}\nK1_CHK{f}_OK:")
        if opt.get("op_fine"):
            if k in opt["op_fine"]:
                a(f"s_memtime s[{64+2*(1+opt['op_fine'].index(k))}:{65+2*(1+opt['op_fine'].index(k))}]\ns_waitcnt lgkmcnt(0)")
        elif k == 7 or k == 31: stamp(); (a("s_waitcnt lgkmcnt(0)") if g["stamps"] else None)
    m = [f"{MF} {vr(ACC(q,l),4)}, {ar(AF(k,l),4)}, {BF(k,q)}, {vr(ACC(q,l),4)}" for k in range(32-R, 32) for l in range(2) for q in range(4)]
    G = Sched(m)
    snd = []
    for j in range(1, 4):
        for q in range(4):
            r = 32*j + 8*q
            snd += [f"v_cvt_pk_bf16_f32 v{r+p}, v{r+2*p}, v{r+2*p+1}" for p in range(4)]
            snd.append((f"buffer_store_dwordx4 {vr(r,4)}, v{OST}, {sr(SO,4)}, s{SOO+q} offen offset:{j*1024} sc1", f"x{j}"))
    gl = G.fill(snd, 0, len(m))
    sal = []
    for j in range(4): sal += [f"s_xor_b32 s3, s35, {j}", f"s_lshl_b32 s{32+j if j < 3 else 36}, s3, 15" if j else "s_nop 0", "s_lshl_b32 s3, s3, 9", f"s_add_u32 s{SB4[j]}, s3, s{SXF}"]
    sal += [f"s_mov_b32 s{SEV}, 0"]
    G.fill(sal, gl + 1, len(m), maxper=1)
    G.emit(a)
    SXR = {1: 33, 2: 34, 3: 36}
    for j in range(1, 4):
        a(f"s_waitcnt vmcnt({a.vm_need('x%d' % j)})")
        a.emit_item((f"buffer_store_dword v{VTAG}, v{VLZ}, {sr(SX,4)}, s{SB4[j]} offen offset:{4*j} sc1", "p"))
    for q in range(1, 4): a(f"v_add_u32 v{128+q}, {q*131072}, v{OST}")
    for q in range(4): a(f"s_mov_b32 s{SOO+q}, {q*32768}")
    a(f"""
    K1_POLLX:
    buffer_load_dword v{FLV}, v{VL4}, {sr(SX,4)}, s{SB4[0]} offen sc1
    s_add_u32 s{SEV}, s{SEV}, 1
    s_waitcnt vmcnt(0)
    {chk}
    s_cmp_gt_u32 s{SEV}, 0x20000
    s_cbranch_scc1 K1_GOX
    s_and_b32 s3, vcc_lo, 14
    s_cbranch_scc1 K1_POLLX
    K1_GOX:
    """)
    if not opt.get("op_fine"): stamp()
    for q in range(4):
        for j in range(1, 4):
            a(f"buffer_load_dwordx4 {vr(32*j+8*q,4)}, v{128+q if q else OST}, {sr(SE,4)}, s{SXR[j]} offen offset:{j*1024} sc1")
    a(f"s_mov_b32 s3, 0xffff0000")
    for q in range(4):
        a(f"s_waitcnt vmcnt({3*(3-q) + q})")
        for j in range(1, 4):
            r = 32*j + 8*q
            for p in (3, 2, 1, 0):
                a(f"v_and_b32 v{r+2*p+1}, s3, v{r+p}")
                a(f"v_lshlrev_b32 v{r+2*p}, 16, v{r+p}")
            for p in range(4): a(f"v_pk_add_f32 {vr(8*q+2*p,2)}, {vr(8*q+2*p,2)}, {vr(r+2*p,2)}")
        r = 8*q
        for p in range(4): a(f"v_cvt_pk_bf16_f32 v{r+p}, v{r+2*p}, v{r+2*p+1}")
        a(f"v_permlane16_swap_b32 v{r}, v{r+2}\nv_permlane16_swap_b32 v{r+1}, v{r+3}")
        a(f"buffer_store_dwordx4 {vr(r,4)}, v{OUTV}, {sr(SD,4)}, s{SOO+q} offen{opt.get('out_pol', '')}")
    if g["stamps"] and not opt.get("dbg_span"):
        a("s_waitcnt vmcnt(0)")
        a(f"s_memtime s[4:5]\ns_memrealtime s[6:7]\ns_waitcnt lgkmcnt(0)")
        nstamp[0] = 16
        dump_stamps(1, 224)
        a("s_waitcnt vmcnt(0)")
        for j in range(4): a(f"s_mov_b32 s{64+j}, s{4+j}")
        nstamp[0] = 2
        dump_stamps(2, 224)
    if opt.get("dbg_span"):
        a("s_waitcnt vmcnt(0)\ns_memrealtime s[6:7]\ns_load_dwordx2 s[8:9], s[0:1], 88\ns_waitcnt lgkmcnt(0)\ns_mov_b32 s10, 64\ns_mov_b32 s11, 0x20000")
        a("s_sub_u32 s6, s6, s96\ns_lshl_b32 s6, s6, 16\ns_sub_u32 s7, s90, s96\ns_or_b32 s6, s6, s7")
        a("s_sub_u32 s4, s82, s96\ns_lshl_b32 s4, s4, 16\ns_sub_u32 s7, s98, s96\ns_or_b32 s4, s4, s7")
        a(f"v_mov_b32 v0, s6\nv_mov_b32 v1, s4\ns_lshl_b32 s3, s2, 3\ns_add_u32 s3, s3, s{SW1K}\ns_cmp_eq_u32 s3, 0\ns_cselect_b32 s3, 4096, s3")
        a(f"buffer_store_dwordx2 v[0:1], v{VLZ}, s[8:11], s3 offen")
    a("s_endpgm")
    for f in POL:
        a(f"""
        K1_SPIN{f}:
        s_add_u32 s{SEV}, s{SEV}, 1
        s_cmp_gt_u32 s{SEV}, 0x20000
        s_cbranch_scc1 K1_CHK{f}_OK
        buffer_load_dword v{FLV}, v{VL4}, {sr(SX,4)}, s{SFO} offen offset:{16*(f-1)} sc1
        s_waitcnt vmcnt(0)
        {chk}
        s_cmp_eq_u32 vcc_lo, 0
        s_cbranch_scc0 K1_SPIN{f}
        s_branch K1_CHK{f}_OK
        """)
```

```python
from asmlib import *
import struct

MF = "v_mfma_f32_16x16x32_bf16"
MF32 = "v_mfma_f32_32x32x16_bf16"
def QACC(qt, s, y): return 32*qt + (2*s+y)*4
def S(b, qt, kt=0): return 32*qt + 8*b + 4*kt
def P(b, qt): return 32*qt + 16 + 4*b
def NEGM(qt): return 32*qt + 24
def TMPQ(qt): return 32*qt + 28
def QF(qt, s): return 128 + (qt*4+s)*4
KRD, VRD, KDM, VDM, XDM, WDM, XRD, WRD, OST, QST, LN16 = 192, 196, 204, 208, 210, 214, 209, 217, 221, 222, 223
XRD2 = 216
Q2V = 224
T0 = 224
RCP = 210
def OA(qt, dt): return (qt*8+dt)*4
def LA(qt): return 128 + qt*4
KF, VF, XF = 144, 176, 208
WSET = [144, 176]
XSET = [208, 224]
ONES, ZERO = 240, 244
def Q2ACC(qt, s, y):
    return ar(OA(qt, 2*s+y), 4) if qt < 2 else vr(128 + (qt-2)*32 + (2*s+y)*4, 4)
SK, SV, SX, SW, SO, SQ = 4, 8, 12, 16, 20, 24
SPTR, SWS = 28, 38
SW4K, SR, SB_, SH, SBR = 40, 41, 42, 43, 44
SCNT, SKO, SVO, SM0K, SM0V, SDK, SDV, SA_, SBB, SN = 45, 46, 47, 48, 49, 50, 51, 52, 53, 54
SOO = 55
STMP, SWW, SBIAS = 59, 60, 61
SC = 62
SW1K = 100
SVB = 43
SFO = 60
SROT, SKL, SVL, ST2, SEV = 101, 28, 29, 30, 31
SXO, SWO0, SWO1, SW8K = 46, 47, 48, 49
STS = 64
VRING, WREG, KRING = 0, 65536, 98304
STASH = 65536
WHALF = 8224
def xslot(u): return (u & 1) * 32768
def wslot(st, hd): return (((3 - st) & 3) * 2 + hd) * WHALF
def kslot(t): return KRING + ((3 - t) & 3) * 16384
def vslot(t): return VRING + (t & 3) * 16384

EXOFF, FLAGOFF = 0x2000000, 0x3A00000
WD2, OUTV, VLZ, VTAG = 205, 207, 218, 219
FLG = 124
SDMP = 96
CSCALE = struct.unpack("<I", struct.pack("<f", 1.4426950408889634 * 128 ** -0.5))[0]

def gen_k1(a, name, opt):
    stamps = opt.get("stamps", False)
    KVNT = opt.get("kv_pol", " nt")
    XWP = opt.get("xw_pol", " nt")
    nstamp = [0]
    fine = opt.get("fine", False)
    def fstamp():
        if fine:
            a(f"s_memtime {sr(STS + 2*nstamp[0], 2)}")
            nstamp[0] += 1
    def stamp():
        if opt.get("qfine"):
            if nstamp[0] < 3: a(f"s_memtime s[{90+2*nstamp[0]}:{91+2*nstamp[0]}]"); nstamp[0] += 1
            return
        if fine:
            if nstamp[0] < 17: fstamp()
        elif stamps:
            a(f"s_memtime {sr(STS + 2*nstamp[0], 2)}")
            a(f"s_memrealtime {sr(STS + 2*nstamp[0] + 2, 2)}")
            nstamp[0] += 2
    r_ = opt.get("perm", 0)
    PERM = f"s_lshl_b32 s3, s2, {r_}\ns_lshr_b32 s2, s2, {8-r_}\ns_or_b32 s2, s2, s3\ns_and_b32 s2, s2, 255" if r_ else ""
    a(f".globl {name}\n.p2align 8\n.type {name},@function\n{name}:")
    a(f"""
    s_cmp_ge_u32 s2, 256
    s_cbranch_scc1 K1_END
    {PERM}
    s_bfe_u32 s{SBR}, s2, 0x10002
    s_mul_i32 s3, s{SBR}, 40
    s_load_dwordx8 {sr(SPTR,8)}, s[0:1], s3
    s_add_u32 s3, s3, 32
    s_load_dwordx2 {sr(SPTR+8,2)}, s[0:1], s3
    s_load_dwordx2 {sr(SWS,2)}, s[0:1], 96
    s_getpc_b64 {sr(SQ,2)}
    K1_PC:
    """)
    stamp()
    W, LN = T0, T0 + 1
    t2, t3, t4, t5, t6, t7, t8, t9 = range(T0 + 2, T0 + 10)
    ROTINIT = (f"s_lshr_b32 s{SROT}, s2, 3\ns_add_u32 s{SROT}, s{SROT}, s2\ns_and_b32 s{SROT}, s{SROT}, 15\ns_lshl_b32 s{SROT}, s{SROT}, 14"
               if opt.get("rot", False) else f"s_mov_b32 s{SROT}, 0")
    TD = T0 + 12
    a(f"""
    v_lshrrev_b32 v{W}, 6, v0
    v_and_b32 v{LN}, 63, v0
    v_readfirstlane_b32 s3, v{W}
    v_lshlrev_b32 v{LN16}, 4, v{LN}
    s_lshl_b32 s{SW4K}, s3, 12
    s_lshl_b32 s{SW1K}, s3, 10
    s_lshl_b32 s{SW8K}, s3, 13
    s_mul_i32 s{SWW}, s3, 2056
    s_cmp_eq_u32 s3, 3
    s_cselect_b32 s{SBIAS}, 0xf149f2ca, 0
    s_mov_b32 s{SR}, 0
    s_mov_b32 s{SC}, 0x{CSCALE:08x}
    s_mov_b32 s{SC+1}, 0x{CSCALE:08x}
    s_lshr_b32 s{SB_}, s2, 5
    s_and_b32 s{STMP}, s2, 3
    s_lshl_b32 s{SH}, s{STMP}, 2
    s_bfe_u32 s{STMP}, s2, 0x20003
    s_add_u32 s{SH}, s{SH}, s{STMP}
    s_lshl_b32 s{SH}, s{SH}, 1
    {ROTINIT}
    s_mov_b32 s{SOO}, 0
    s_mov_b32 s{SOO+1}, 131072
    s_mov_b32 s{SOO+2}, 262144
    s_mov_b32 s{SOO+3}, 393216
    """)
    if opt.get("code_pf", True):
        a(f"""
        s_mov_b32 s{SQ+2}, CODE_BYTES
        s_mov_b32 s{SQ+3}, 0x20000
        s_lshr_b32 s3, s2, 3
        s_lshl_b32 s3, s3, 10
        v_lshl_add_u32 v{t2}, v{W}, 15, v{LN16}
        """)
        a.emit_item((f"buffer_load_dwordx4 {vr(TD,4)}, v{t2}, {sr(SQ,4)}, s3 offen", "touch"))
    a(f"""
    v_lshrrev_b32 v{t2}, 3, v{LN}
    v_lshl_add_u32 v{t2}, v{W}, 6, v{t2}
    v_lshlrev_b32 v{t2}, 10, v{t2}
    v_lshrrev_b32 v{t3}, 4, v{LN}
    v_and_b32 v{t5}, 7, v{LN}
    v_xor_b32 v{t4}, v{t3}, v{t5}
    v_lshl_add_u32 v{XDM}, v{t4}, 4, v{t2}
    v_xor_b32 v{XDM+1}, 64, v{XDM}
    v_add_u32 v{XDM+1}, {7*1024}, v{XDM+1}
    v_add_u32 v{XDM+2}, {14*1024}, v{XDM}
    v_add_u32 v{XDM+3}, {14*1024}, v{XDM+1}
    """)
    a(f"""
    v_and_b32 v{t2}, 15, v{LN}
    v_lshlrev_b32 v{t4}, 2, v{t3}
    v_xor_b32 v{t4}, v{t4}, v{t2}
    v_lshlrev_b32 v{t4}, 4, v{t4}
    v_lshl_add_u32 v{t5}, v{W}, 3, v{t3}
    v_lshl_add_u32 v{WDM}, v{t5}, 13, v{t4}
    v_add_u32 v{WDM+1}, {4*8192-1024}, v{WDM}
    s_mov_b32 s{SXO}, 0
    s_mov_b32 s{SWO0}, 0
    s_mov_b32 s{SWO1}, 256
    s_waitcnt lgkmcnt(0)
    """)
    fstamp()
    a(f"""
    s_mul_i32 s3, s{SB_}, 245760
    s_add_u32 s{SX}, s{SPTR}, s3
    s_addc_u32 s{SX+1}, s{SPTR+1}, 0
    s_mov_b32 s{SX+2}, {opt.get('exp_rows', 240)*1024}
    s_mov_b32 s{SX+3}, 0x20000
    s_lshl_b32 s3, s{SH}, 8
    s_add_u32 s{SW}, s{SPTR+6}, s3
    s_addc_u32 s{SW+1}, s{SPTR+7}, 0
    s_sub_u32 s{SW+2}, 4194304, s3
    s_mov_b32 s{SW+3}, 0x20000
    """)
    def w_dma(st):
        r = []
        for hd, so in ((1, SWO1), (0, SWO0)):
            r += [f"s_add_u32 m0, s{SWW}, {WREG + wslot(st, hd)}"]
            r += [(f"buffer_load_dwordx4 v{WDM+i}, {sr(SW,4)}, s{so} offen offset:{1024*i}{XWP} lds", f"w{st}") for i in range(2)]
            r += [f"s_add_u32 s{so}, s{so}, 262144"]
        return r
    def x_dma(u):
        r = []
        for hf in range(2):
            r += [f"s_add_u32 m0, s{SW8K}, {xslot(u) + hf*4096}"]
            r += [(f"buffer_load_dwordx4 v{XDM+i}, {sr(SX,4)}, s{SXO} offen offset:{1024*i}{XWP} lds", f"x{u}") for i in range(4)]
            r += [f"s_add_u32 s{SXO}, s{SXO}, 32768" if hf == 0 else f"s_sub_u32 s{SXO}, s{SXO}, {32768-128}"]
        return r
    CONTIG = opt.get("contig", True)
    ROT = opt.get("rot", False)
    def rot_calc(dst, lin):
        if isinstance(lin, int):
            return [f"s_add_u32 s{dst}, s{SROT}, {lin}", f"s_and_b32 s{dst}, s{dst}, 0x3ffff"]
        return [f"s_add_u32 s{dst}, s{lin[0]}, s{SROT}", f"s_and_b32 s{dst}, s{dst}, 0x3ffff", f"s_and_b32 s{ST2}, s{lin[0]}, 0xfffc0000",
                f"s_or_b32 s{dst}, s{dst}, s{ST2}", f"s_add_u32 s{lin[0]}, s{lin[0]}, 16384"]
    def kv_dma(kind, tile):
        base = kslot(tile) if kind == "k" else vslot(tile)
        srd = SK if kind == "k" else SV
        if CONTIG:
            r = []
            for i in range(4):
                r += (rot_calc(3, tile*16384) if i == 0 else ["s_add_u32 s3, s3, 4096"])
                r += [f"s_add_u32 m0, s{SW1K}, {base + 4096*i}",
                      (f"buffer_load_dwordx4 v{KDM if kind == 'k' else VDM}, {sr(srd,4)}, s3 offen{KVNT} lds", f"{kind}{tile}")]
            return r
        r = [f"s_add_u32 m0, s{SW4K}, {base}", f"s_mov_b32 s3, {tile*16384}"]
        for i in range(4):
            vo = KDM + i if kind == "k" else VDM + (i & 1)
            r.append((f"buffer_load_dwordx4 v{vo}, {sr(srd,4)}, s3 offen offset:{1024*i}{KVNT} lds", f"{kind}{tile}"))
        return r
    w0 = w_dma(0); x0 = x_dma(0)
    if opt.get("start2", False):
        first = w0[:4] + x0[:1 + opt.get("start_nx", 3)]; later = x0[1 + opt.get("start_nx", 3):] + w0[4:]
    else: first = w0 + x0; later = []
    for it in first: a.emit_item(it)
    a(f"""
    s_lshl_b32 s3, s{SB_}, 5
    s_add_u32 s3, s3, s{SH}
    s_lshl_b32 s3, s3, 18
    s_add_u32 s{SK}, s{SPTR+2}, s3
    s_addc_u32 s{SK+1}, s{SPTR+3}, 0
    s_mov_b32 s{SK+2}, 524288
    s_mov_b32 s{SK+3}, 0x20000
    s_add_u32 s{SV}, s{SPTR+4}, s3
    s_addc_u32 s{SV+1}, s{SPTR+5}, 0
    s_mov_b32 s{SV+2}, 524288
    s_mov_b32 s{SV+3}, 0x20000
    s_mul_i32 s3, s{SBR}, 120
    s_mul_i32 s{STMP}, s{SB_}, 15
    s_add_u32 s3, s3, s{STMP}
    s_lshl_b32 s3, s3, 17
    s_lshl_b32 s{STMP}, s{SH}, 12
    s_add_u32 s3, s3, s{STMP}
    s_add_u32 s{SO}, s{SWS}, s3
    s_addc_u32 s{SO+1}, s{SWS+1}, 0
    s_sub_u32 s{SO+2}, {15*131072}, s{STMP}
    s_mov_b32 s{SO+3}, 0x20000
    s_and_b32 s3, s2, 3
    s_lshl_b32 s3, s3, 5
    s_lshr_b32 s{STMP}, s2, 3
    s_add_u32 s3, s3, s{STMP}
    s_lshl_b32 s3, s3, 15
    s_add_u32 s{SQ}, s{SPTR+8}, s3
    s_addc_u32 s{SQ+1}, s{SPTR+9}, 0
    s_mov_b32 s{SQ+2}, 32768
    s_mov_b32 s{SQ+3}, 0x20000
    """)
    def touches():
        if opt.get("tlb", True):
            a(f"v_lshlrev_b32 v{t6}, 17, v{W}")
            a.emit_item((f"buffer_load_dword v{TD+4}, v{t6}, {sr(SK,4)}, 0 offen nt", "touch"))
            a.emit_item((f"buffer_load_dword v{TD+5}, v{t6}, {sr(SV,4)}, 0 offen nt", "touch"))
            a(f"v_lshlrev_b32 v{t6}, 20, v{W}")
            a(f"v_add_u32 v{t6}, 0xfe000, v{t6}")
            a.emit_item((f"buffer_load_dword v{TD+7}, v{t6}, {sr(SW,4)}, 0 offen", "touch"))
    if not opt.get("start2", False): touches()
    fstamp()
    if CONTIG:
        a(f"""
        v_lshl_add_u32 v{t6}, v{W}, 2, v{t3}
        v_lshlrev_b32 v{t5}, 8, v{t6}
        v_xor_b32 v{t7}, v{t6}, v{t2}
        v_lshl_add_u32 v{KDM}, v{t7}, 4, v{t5}
        v_and_b32 v{t6}, 7, v{t6}
        v_lshlrev_b32 v{t6}, 1, v{t6}
        v_xor_b32 v{t7}, v{t6}, v{t2}
        v_lshl_add_u32 v{VDM}, v{t7}, 4, v{t5}
        """)
    else:
        a(f"""
        v_lshlrev_b32 v{t5}, 8, v{t3}
        v_lshl_add_u32 v{t5}, v{W}, 12, v{t5}
        """)
        for i in range(4):
            a(f"v_add_u32 v{t6}, {4*i}, v{t3}")
            a(f"v_xor_b32 v{t7}, v{t6}, v{t2}")
            a(f"v_lshl_add_u32 v{KDM+i}, v{t7}, 4, v{t5}")
            if i < 2:
                a(f"v_lshlrev_b32 v{t6}, 1, v{t6}")
                a(f"v_xor_b32 v{t7}, v{t6}, v{t2}")
                a(f"v_lshl_add_u32 v{VDM+i}, v{t7}, 4, v{t5}")
    a(f"v_lshlrev_b32 v{t5}, 8, v{t2}\nv_add_u32 v{t5}, {kslot(0)}, v{t5}")
    for s in range(4):
        a(f"v_add_u32 v{t6}, {4*s}, v{t3}")
        a(f"v_xor_b32 v{t6}, v{t6}, v{t2}")
        a(f"v_lshl_add_u32 v{KRD+s}, v{t6}, 4, v{t5}")
    a(f"""
    v_lshrrev_b32 v{t4}, 1, v{t2}
    v_xor_b32 v{t5}, v{t4}, v{t3}
    v_lshlrev_b32 v{t5}, 4, v{t5}
    v_lshl_add_u32 v{t5}, v{t2}, 7, v{t5}
    v_lshl_add_u32 v{XRD}, v{W}, 13, v{t5}
    v_xor_b32 v{XRD2}, 64, v{XRD}
    v_lshrrev_b32 v{t4}, 2, v{t2}
    """)
    a(f"""
    v_and_b32 v{t5}, 3, v{LN}
    v_lshl_add_u32 v{t6}, v{t3}, 2, v{t4}
    v_and_b32 v{t7}, 7, v{t6}
    v_lshlrev_b32 v{t6}, 8, v{t6}
    v_lshl_add_u32 v{t6}, v{t5}, 3, v{t6}
    """)
    for dt in range(8):
        a(f"v_xor_b32 v{t8}, {dt}, v{t7}")
        a(f"v_lshl_add_u32 v{VRD+dt}, v{t8}, 5, v{t6}")
    a(f"""
    v_mul_u32_u24 v{t6}, 2056, v{t3}
    v_lshl_add_u32 v{t6}, v{t4}, 8, v{t6}
    v_lshl_add_u32 v{t6}, v{t5}, 4, v{t6}
    v_add_u32 v{t6}, {WREG}, v{t6}
    """)
    for s in range(4):
        a(f"v_xor_b32 v{t8}, {s}, v{t4}")
        a(f"v_lshl_add_u32 v{WRD+s}, v{t8}, 6, v{t6}")
    a(f"""
    v_lshl_add_u32 v{OST}, v{W}, 19, v{LN16}
    v_lshl_add_u32 v{LN16}, v{W}, 13, v{LN16}
    v_add_u32 v{QST}, {STASH}, v{LN16}
    v_cmp_eq_u32 vcc, 0, v{t5}
    v_mov_b32 v{t6}, 0x3f803f80
    s_nop 0
    v_cndmask_b32 v{t6}, 0, v{t6}, vcc
    """)
    for i in range(4):
        a(f"v_accvgpr_write_b32 a{ONES+i}, v{t6}")
        a(f"v_accvgpr_write_b32 a{ZERO+i}, 0")
    Z = ar(ZERO, 4)
    for i in range(12): a(f"{MF32} {vr(16*i,16)}, {Z}, {Z}, 0")
    for i in range(4): a(f"{MF32} {ar(16*i,16)}, {Z}, {Z}, 0")

    def w_reads(st, hd, wset):
        return [f"ds_read_b64_tr_b16 {ar(WSET[wset]+(2*s+y)*4+aa*2,2)}, v{WRD+s} offset:{wslot(st,hd) + aa*1024 + 8*y}"
                for s in range(4) for y in range(2) for aa in range(2)]
    def x_reads(st):
        return [f"ds_read_b128 {ar(XSET[st&1]+qt*4,4)}, v{XRD2 if st & 1 else XRD} offset:{xslot(st>>1) + qt*2048}" for qt in range(4)]
    def k_reads(half, dst=KF):
        return [f"ds_read_b128 {ar(dst+(kt*4+s)*4,4)}, v{KRD+s} offset:{(half*2+kt)*4096}" for s in range(4) for kt in range(2)]
    def v_reads(half, dst=VF):
        return [f"ds_read_b64_tr_b16 {ar(dst+dt*4+aa*2,2)}, v{VRD+dt} offset:{half*8192 + aa*4096}" for dt in range(8) for aa in range(2)]
    def qk_mfmas(sb, c0, src=KF, qmajor=False):
        idx = [(s, kt, qt) for s in range(4) for kt in range(2) for qt in range(4)]
        if qmajor: idx = [(s, kt, qt) for qt in range(4) for s in range(4) for kt in range(2)]
        elif opt.get("chain"): idx = [(s, kt, qt) for qt in range(4) for kt in range(2) for s in range(4)]
        m = []
        for s, kt, qt in idx:
            d = vr(S(sb, qt, kt), 4)
            c = d if s else ("0" if c0 else vr(NEGM(qt), 4))
            m.append(f"{MF} {d}, {ar(src+(kt*4+s)*4,4)}, {vr(QF(qt,s),4)}, {c}")
        return m
    def pv_mfmas(pb, src=VF, qmajor=False):
        def pv(dt, qt): d = ar(OA(qt, dt), 4); return f"{MF} {d}, {ar(src+dt*4,4)}, {vr(P(pb,qt),4)}, {d}"
        def ls(qt): d = ar(LA(qt), 4); return f"{MF} {d}, {ar(ONES,4)}, {vr(P(pb,qt),4)}, {d}"
        if qmajor: return [ls(qt) for qt in range(4)] + [pv(dt, qt) for qt in range(4) for dt in range(8)]
        if opt.get("pvq"): return [x for qt in range(4) for x in [pv(dt, qt) for dt in range(8)] + [ls(qt)]]
        return [pv(dt, qt) for dt in range(8) for qt in range(4)] + [ls(qt) for qt in range(4)]
    def sm_E(sb, e): r = S(sb, e // 8) + e % 8; return f"v_exp_f32 v{r}, v{r}"
    def sm_C(sb, p): r = S(sb, p // 4) + 2 * (p % 4); return f"v_cvt_pk_bf16_f32 v{P(sb, p//4) + p%4}, v{r}, v{r+1}"
    def sm_place(G1, G2, sb):
        n1 = len(G1.m)
        def put(g, it): (G1.put(g, it) if g < n1 else G2.put(g - n1, it))
        for i in range(32): put(2*i, sm_E(sb, i))
        for p in range(16): put(4*p+3, sm_C(sb, p))
    def sm_stream(sb):
        r = []
        for p in range(16):
            r += [sm_E(sb, 2*p), sm_E(sb, 2*p+1)]
            if p: r.append(sm_C(sb, p-1))
        r.append(sm_C(sb, 15))
        return r
    def dma_at(G, g, it):
        G.put(g, it); G.cap[g] = 0
    def spaced(dm, first, stride):
        out = []; nd = 0
        for it in dm:
            if isinstance(it, tuple): out.append({"i": it, "at": first + nd * stride}); nd += 1
            else: out.append(it)
        return out
    SKB, STM, SMK, SMV, SEF, SINC = SM0K, SM0V, SKL, SVL, ST2, SROT
    def piece(kind, skip=False):
        srd, so = (SK, SKO) if kind == "k" else (SV, SVO)
        if kind == "k": pre = [f"s_xor_b32 s{STM}, s{so}, 0xc000", f"s_and_b32 s{STM}, s{STM}, 0xf000", f"s_add_u32 m0, s{STM}, s{SKB}"]
        else: pre = [f"s_and_b32 s{STM}, s{so}, 0xf000", f"s_add_u32 m0, s{STM}, s{SVB}"]
        if skip:
            pre += [f"s_bitcmp1_b32 s{SMK if kind == 'k' else SMV}, s{SCNT}", f"s_cselect_b32 s{SEF}, 0x40000000, s{so}", f"s_cselect_b32 s{SINC}, 0, 4096"]
        ins = f"buffer_load_dwordx4 v{KDM if kind == 'k' else VDM}, {sr(srd,4)}, s{SEF if skip else so} offen{KVNT} lds"
        post = [f"s_add_u32 s{so}, s{so}, " + (f"s{SINC}" if skip else "4096")]
        return pre, ins, post
    def piece_at(G, g, kind, skip=False):
        pre, ins, post = piece(kind, skip)
        for j, p in enumerate(pre):
            G.put(g - len(pre) + j, p)
        if not opt.get("no_dma"): dma_at(G, g, ins)
        G.put(g + 1, post[0])
    def piece_now(kind):
        pre, ins, post = piece(kind)
        return pre + ["s_nop 0", ins] + post
    def pkmul(r, s): return f"v_pk_mul_f32 {vr(r,2)}, {vr(r,2)}, {s}"

    for it in later + w_dma(1): a.emit_item(it)
    if opt.get("start2", False): touches()
    fstamp()
    a(f"s_waitcnt vmcnt({a.vm_need(['w0','x0'])})")
    a("s_barrier")
    for r in x_reads(0) + w_reads(0, 1, 0): a(r)
    a(f"s_mov_b32 s{SCNT}, 0")
    stamp()
    def half_step(k, st, hd, nxt, wait, dm, extra=None, order=None):
        a(wait)
        if opt.get("qfine") and k < 8 and k % 2 == 1:
            a("s_memtime s[88:89]\ns_waitcnt lgkmcnt(0)")
            for j in range(12): a(f"s_mov_b32 s{64+2*j}, s{66+2*j}")
        if k > 24: fstamp()
        idx = [(s, y, qt) for s in range(4) for y in range(2) for qt in range(4)]
        if order: idx = [(s, y, qt) for qt in order for s in range(4) for y in range(2)]
        m = []
        for s, y, qt in idx:
            d = vr(QACC(qt, s, y), 4) if hd == 0 else Q2ACC(qt, s, y)
            m.append(f"{MF} {d}, {ar(WSET[k&1]+(2*s+y)*4,4)}, {ar(XSET[st&1]+qt*4,4)}, {d}")
        G = Sched(m)
        if nxt is None: rd = k_reads(0)
        else: rd = (x_reads(nxt[0]) if nxt[1] == 1 else []) + w_reads(nxt[0], nxt[1], (k+1) & 1)
        G.fill(rd, 0, 26, maxper=1)
        nd = sum(isinstance(x, tuple) for x in dm)
        G.fill(spaced(dm, 1 if nd > 8 else 2, {16: 2, 8: 4, 2: 16}.get(nd, 7)), 0, 32, maxper=(2 if nd > 8 else 1))
        post = G.post; G.post = []
        left = None
        if extra:
            G.fill(extra[0], extra[1], 32)
            left = G.post; G.post = []
        G.post = post
        G.emit(a)
        return left
    NPF = opt.get("l2pf", 0)
    SPF = 50
    PFS = opt.get("l2pf_stride", 16384)
    def pf_dma():
        r = []
        for i in range(NPF):
            kind = "k" if (i & 1) == 0 or not opt.get("l2pf_v") else "v"
            r += [(f"buffer_load_dwordx4 {vr(Q2V + 4*(i%4),4)}, v{KDM if kind == 'k' else VDM}, {sr(SK if kind == 'k' else SV,4)}, s{SPF} offen{opt.get('l2pf_pol','')}", "pf")]
            if kind == "v" or not opt.get("l2pf_v"): r += [f"s_add_u32 s{SPF}, s{SPF}, {PFS}"]
        return r
    a(f"s_mov_b32 s{SPF}, {opt.get('l2pf_first', 4)*16384}")
    half_step(0, 0, 1, (0, 0), "s_waitcnt lgkmcnt(0)", w_dma(2) + x_dma(1) + w_dma(3))
    for it in pf_dma(): a.emit_item(it)
    nw = 0
    if opt.get("wo_start"):
        a(f"s_mov_b32 s{STMP}, 4096"); nw = 8
        for j in range(8): a(f"buffer_load_dwordx4 a[248:251], v{LN16}, {sr(SQ,4)}, {'0' if j < 4 else 's%d' % STMP} offen offset:{(j%4)*1024}")
    a(f"s_waitcnt vmcnt({16+NPF+nw}) lgkmcnt(0)")
    a("s_branch K1_QENTRY")
    a(".p2align 6\nK1_QLOOP:")
    for st in range(4):
        half_step(2*st, st, 1, (st, 0), "s_waitcnt lgkmcnt(0)", x_dma((st+3)//2) if st & 1 else pf_dma())
        dm = w_dma(st + 4)
        if st == 3: dm += [f"s_add_u32 s{SCNT}, s{SCNT}, 1", f"s_cmp_lt_u32 s{SCNT}, 3"]
        n = 16 + (NPF if st & 1 else 2*NPF)
        half_step(2*st+1, st, 0, (st+1, 1), f"s_waitcnt vmcnt({n}) lgkmcnt(0)\n" + ("K1_QENTRY:\n" if st == 0 else "") + "s_barrier", dm)
    a("s_cbranch_scc1 K1_QLOOP")
    stamp()
    a.vm = ["w13"]*4 + ["pf"]*NPF + ["w14"]*4 + ["x7"]*8 + ["w15"]*4
    finv = []
    for qt in (2, 3):
        for s in range(4):
            b = 128 + (qt-2)*32 + s*8
            finv += [f"v_mul_f32 v{b+i}, s{SC}, v{b+i}" for i in range(8)]
            finv += [f"v_cvt_pk_bf16_f32 v{Q2V+((qt-2)*4+s)*4+p}, v{b+2*p}, v{b+2*p+1}" for p in range(4)]
    def bar(tag): return f"s_waitcnt vmcnt({a.vm_need(tag)}) lgkmcnt(0)\ns_barrier"
    L0 = "s_waitcnt lgkmcnt(0)"
    def kvh(kind, tile, h):
        base = kslot(tile) if kind == "k" else vslot(tile)
        r = []
        for i in (2*h, 2*h+1):
            r += [f"s_mov_b32 s3, {tile*16384 + 4096*i}", f"s_add_u32 m0, s{SW1K}, {base + 4096*i}",
                  (f"buffer_load_dwordx4 v{KDM if kind == 'k' else VDM}, {sr(SK if kind == 'k' else SV,4)}, s3 offen{KVNT} lds", f"{kind}{tile}")]
        return r
    EVEN = opt.get("even_prefill", True)
    if EVEN: pf = [kvh("k", 0, 0), kvh("k", 0, 1), kvh("k", 1, 0), kvh("k", 1, 1), kvh("v", 0, 0), kvh("v", 0, 1), kvh("k", 2, 0), kvh("k", 2, 1)]
    else: pf = [kv_dma("k", 0), [], kv_dma("k", 1), [], kv_dma("v", 0), kv_dma("k", 2), kv_dma("v", 1), kvh("v", 2, 0)]
    u0, u1, u2, u3 = 210, 211, 212, 213
    T1A = f"""s_and_b32 s{SN}, s2, 3
    s_lshl_b32 s{SN}, s{SN}, 20
    s_bfe_u32 s{STMP}, s2, 0x20003
    s_lshl_b32 s{STMP}, s{STMP}, 8
    s_add_u32 s{SN}, s{SN}, s{STMP}
    s_sub_u32 s{SW+2}, 1048576, s{STMP}
    s_and_b32 s{SA_}, s2, 3
    s_lshl_b32 s{SA_}, s{SA_}, 2
    s_lshl_b32 s{SBB}, s{SW1K}, 3
    s_lshl_b32 s{STMP}, s{SW1K}, 7
    v_mbcnt_lo_u32_b32 v{u0}, -1, 0
    v_mbcnt_hi_u32_b32 v{u0}, -1, v{u0}
    v_lshlrev_b32 v214, 20, v{u0}
    v_lshrrev_b32 v{u1}, 4, v{u0}
    v_and_b32 v{u0}, 15, v{u0}
    v_lshlrev_b32 v{u2}, 1, v{u1}
    v_xor_b32 v{u2}, v{u2}, v{u0}
    v_xor_b32 v{u2}, s{SA_}, v{u2}
    v_lshlrev_b32 v{u2}, 4, v{u2}
    v_lshl_add_u32 v{u2}, v{u1}, 10, v{u2}
    v_add_u32 v{WD2}, s{SBB}, v{u2}
    v_xor_b32 v{WD2+1}, 128, v{WD2}
    v_add_u32 v{WD2+1}, 3072, v{WD2+1}
    v_lshlrev_b32 v{u2}, 11, v{u0}
    v_and_b32 v{u3}, 1, v{u1}
    v_lshl_add_u32 v{u2}, v{u3}, 5, v{u2}
    v_lshrrev_b32 v{u3}, 1, v{u1}
    v_lshl_add_u32 v{u2}, v{u3}, 4, v{u2}
    v_add_u32 v{OUTV}, s{STMP}, v{u2}"""
    T1A = [x.strip() for x in T1A.split("\n")]
    T1B = [f"s_mov_b32 s{SX}, s32", f"s_mov_b32 s{SX+1}, s33", f"s_mov_b32 s{SX+2}, 4", f"s_andn2_b32 s{SN}, s34, 30", f"s_or_b32 s{SN}, s{SN}, 1",
           f"v_mov_b32 v{u2}, s{SN}", f"v_mov_b32 v{u3}, 0"]
    assert not half_step(24, 12, 1, (12, 0), L0, pf[0], extra=(T1A, 3))
    a(f"s_add_u32 s{SW}, s{SPTR+8}, s{SN}\ns_addc_u32 s{SW+1}, s{SPTR+9}, 0")
    half_step(25, 12, 0, (13, 1), bar("w13") + "\ns_load_dwordx2 s[32:33], s[0:1], 88\ns_memrealtime s[34:35]", pf[1])
    assert not half_step(26, 13, 1, (13, 0), L0, pf[2], extra=(T1B, 3))
    half_step(27, 13, 0, (14, 1), bar(["w14", "x7"]), pf[3])
    half_step(28, 14, 1, (15, 1), bar("w15"), pf[4])
    left = half_step(29, 15, 1, (14, 0), L0, pf[5], extra=(finv, 20), order=(2, 3, 0, 1))
    left = half_step(30, 14, 0, (15, 0), L0, pf[6], extra=(left, 0))
    fina = []
    for qt in (0, 1):
        for s in range(4):
            tb = 128 + ((qt*4+s) % 4) * 16
            src = OA(qt, 2*s)
            fina += [f"v_accvgpr_read_b32 v{tb+i}, a{src+i}" for i in range(8)]
            fina += [f"v_mul_f32 v{tb+i}, s{SC}, v{tb+i}" for i in range(8)]
            fina += [f"v_cvt_pk_bf16_f32 v{tb+8+p}, v{tb+2*p}, v{tb+2*p+1}" for p in range(4)]
            fina.append(f"ds_write_b128 v{QST}, {vr(tb+8,4)} offset:{(qt*4+s)*1024}")
    left = half_step(31, 15, 0, None, bar("k0"), pf[7], extra=(left + fina, 0), order=(0, 1, 2, 3))
    stamp()
    fp = (kvh("v", 1, 0) + kvh("v", 1, 1) + kvh("v", 2, 0)) if EVEN else []
    def fpiece():
        for y in fp[:3]: a.emit_item(y)
        del fp[:3]
    fpiece()
    i = 0
    while i < len(left):
        x = left[i]
        if x.startswith("v_mul_f32") and i + 1 < len(left) and left[i+1].startswith("v_mul_f32"):
            r = int(x.split()[1][1:-1])
            if r % 2 == 0:
                a(pkmul(r, sr(SC, 2))); i += 2; continue
        a(x); i += 1
        if i >= len(left) // 2 and len(fp) == 15: fpiece()
    for qt in range(4):
        fpiece()
        for s in range(4):
            b = QACC(qt, s, 0)
            for i in range(4): a(pkmul(b+2*i, sr(SC, 2)))
        if qt == 0: a("s_waitcnt lgkmcnt(0)")
        for s in range(4):
            b = QACC(qt, s, 0)
            for p in range(4): a(f"v_cvt_pk_bf16_f32 v{QF(qt,s)+p}, v{b+2*p}, v{b+2*p+1}")
    a(f"""
    s_mov_b32 s{SKO}, {3*16384}
    s_mov_b32 s{SVO}, {2*16384 + 8192}
    s_mov_b32 s{SEV}, 15
    s_mov_b32 s{SVB}, s{SW1K}
    s_add_u32 s{SKB}, s{SW1K}, {KRING}
    s_mov_b32 s{SMK}, {opt.get('mk0', 0x1111)}
    s_mov_b32 s{SMV}, {opt.get('mv0', 0x4444)}
    """)
    if opt.get("desync", False):
        a(f"""
        s_mov_b32 s{SN}, 0x5110
        s_bitcmp1_b32 s2, 3
        s_cselect_b32 s{SMK}, 0x2aab, s{SMK}
        s_cselect_b32 s{SMV}, 0x8888, s{SMV}
        s_cselect_b32 s3, 0x2222, s{SN}
        s_bitcmp1_b32 s2, 5
        s_cselect_b32 s{SMV}, s3, s{SMV}
        """)
    a(f"""
    """)
    if opt.get("trip_ts"):
        a("s_mov_b32 s34, 0\ns_mov_b32 s32, 0\nv_mbcnt_lo_u32_b32 v205, -1, 0\nv_mbcnt_hi_u32_b32 v205, -1, v205\nv_mov_b32 v207, 0")
    a(f"v_mov_b32 v{VLZ}, v214")
    a.emit_item((f"buffer_atomic_cmpswap {vr(u2,2)}, v{VLZ}, {sr(SX,4)}, s{SW1K} offen sc1", "nonce"))
    if opt.get("wo_loop") is not None: a(f"s_mov_b32 s37, {0x10000 if not opt.get('wo_loop0') else (-1024*opt['wo_loop']) & 0xffffffff}")
    if opt.get("lead"): a(f"s_mov_b32 s35, s{SPF}")
    pro_vm = list(a.vm)
    a("K1_PRO:")
    stamp()
    a("s_waitcnt lgkmcnt(0)")
    zm = [f"{MF32} {ar(16*i,16)}, {Z}, {Z}, 0" for i in range(9)]
    G = Sched(qk_mfmas(0, True, KF, True) + zm + qk_mfmas(1, False, VF, True))
    assert not fp
    for gp, kd in ((7, "k"), (20, "v"), (33, "k"), (43, "v"), (55, "k"), (67, "k")): piece_at(G, gp, kd)
    G.fill(k_reads(1, VF), 0, 16, maxper=1)
    G.tail(40, "s_waitcnt lgkmcnt(0)")
    mx = []
    for qt in range(4):
        s0 = S(0, qt); m_ = TMPQ(qt); t_ = m_ + 1; ng = NEGM(qt)
        bias = f"s{SBIAS}" if qt == 3 else "0"
        ch = [f"v_max3_f32 v{m_}, v{s0}, v{s0+1}, v{s0+2}", f"v_max3_f32 v{t_}, v{s0+3}, v{s0+4}, v{s0+5}",
              f"v_max3_f32 v{m_}, v{m_}, v{s0+6}, v{s0+7}", f"v_max_f32 v{m_}, v{m_}, v{t_}", f"v_mov_b32 v{t_}, v{m_}",
              {"i": f"v_permlane16_swap_b32 v{m_}, v{t_}", "new": True}, f"v_max_f32 v{m_}, v{m_}, v{t_}", f"v_mov_b32 v{t_}, v{m_}",
              {"i": f"v_permlane32_swap_b32 v{m_}, v{t_}", "new": True}, f"v_max_f32 v{m_}, v{m_}, v{t_}",
              f"v_sub_f32 v{ng}, {bias}, v{m_}"] + [f"v_mov_b32 v{ng+i}, v{ng}" for i in range(1, 4)] + \
             [f"v_add_f32 v{s0+i}, v{s0+i}, v{ng}" for i in range(8)]
        ch[0] = {"i": ch[0], "at": 8*qt + 11}
        mx += ch
    g = G.fill(mx, 0, len(G.m))
    assert not G.post, len(G.post)
    for qt in range(4):
        gg = [i for i, v in enumerate(G.V) if f"v_mov_b32 v{NEGM(qt)+3}, v{NEGM(qt)}" in v][0]
        assert gg < 41 + 8*qt - 1, (qt, gg)
    G.fill(sm_stream(0), g, len(G.m))
    tailv = G.post; G.post = []
    G.emit(a)
    a.vm = list(pro_vm)
    for s in range(4): a(f"v_subrev_u32 v{KRD+s}, 16384, v{KRD+s}")
    a(f"s_waitcnt vmcnt(8) lgkmcnt(0)")
    a("s_barrier")
    kr = k_reads(0)
    for i in range(2):
        pre, ins, post = piece("k")
        for p in pre: a(p)
        for r in kr[4*i:4*i+4]: a(r)
        a(ins)
        for p in post: a(p)
    a(f"""
    s_mov_b32 s{SA_}, {kslot(1) - KRING}
    s_mov_b32 s{SBB}, 0
    s_mov_b32 s{SCNT}, 0
    """)
    for it in tailv: a(it)
    a("s_waitcnt lgkmcnt(0)")
    stamp()
    a(".p2align 6")
    a("K1_LOOP:")
    def trip(last=None, mid=False):
        G1 = Sched(qk_mfmas(0, False)); G2 = Sched(pv_mfmas(0)); G3 = Sched(qk_mfmas(1, False)); G4 = Sched(pv_mfmas(1))
        sm_place(G1, G2, 1); sm_place(G3, G4, 0)
        if last: xw = last(G1, G2, G3, G4)
        else:
            xw = opt.get('xwait', 8)
            if opt.get("cluster"):
                piece_at(G4, 29, "k"); piece_at(G4, 33, "k"); piece_at(G1, 5, "k"); piece_at(G1, 13, "k", True)
                piece_at(G2, 29, "v"); piece_at(G2, 33, "v"); piece_at(G3, 5, "v"); piece_at(G3, 13, "v", True)
            else:
                piece_at(G4, 9, "k"); piece_at(G4, 25, "k"); piece_at(G1, 9, "k", True); piece_at(G1, 25, "k")
                piece_at(G2, 9, "v"); piece_at(G2, 25, "v"); piece_at(G3, 9, "v", True); piece_at(G3, 25, "v")
            NLP = opt.get("lead", 0)
            spots = [(G2, 1, G2, 17), (G4, 1, G4, 17), (G1, 17, G3, 17)][:NLP]
            for Ga, ga, Gb, gb in spots:
                e = 36 if Ga is Gb else 37
                if ga >= 2: Ga.put(ga - 2, f"s_cmp_gt_u32 s35, s{SKO}"); Ga.put(ga - 1, f"s_cselect_b32 s{e}, s35, 0x40000000")
                else: Ga.put(0, f"s_cmp_gt_u32 s35, s{SKO}"); Ga.put(0, f"s_cselect_b32 s{e}, s35, 0x40000000")
                Ga.put(ga + 1, "s_add_u32 s35, s35, 4096")
                dma_at(Ga, ga, f"buffer_load_dwordx4 a[248:251], v{KDM}, {sr(SK,4)}, s{e} offen{KVNT}")
                dma_at(Gb, gb, f"buffer_load_dwordx4 a[252:255], v{VDM}, {sr(SV,4)}, s{e} offen{KVNT}")
            xw += 2 * NLP
            if opt.get("wo_loop") is not None:
                G4.put(12, "s_cmp_lt_u32 s37, 8192"); G4.put(13, "s_cselect_b32 s36, s37, 0x40000000"); G4.put(14, "s_add_u32 s37, s37, 1024")
                dma_at(G4, 17, f"buffer_load_dwordx4 a[248:251], v{LN16}, {sr(SQ,4)}, s36 offen")
        G1.fill(v_reads(0), 0, 30); G1.put(31, "s_waitcnt lgkmcnt(0)")
        G2.fill(k_reads(1), 0, 30, maxper=1)
        G2.put(35, "s_waitcnt lgkmcnt(0)")
        G3.fill(v_reads(1), 0, 30)
        G3.put(31, f"s_waitcnt vmcnt({xw}) lgkmcnt(0)" if not opt.get("no_dma") else "s_waitcnt lgkmcnt(0)")
        G3.tail(31, "s_barrier")
        if last:
            if mid:
                G2.fill([f"v_subrev_u32 v{KRD+s}, 16384, v{KRD+s}" for s in range(4)], 32, 36)
                G4.fill(k_reads(0), 0, 30, maxper=1)
                G4.put(35, "s_waitcnt lgkmcnt(0)")
            G4.fill([f"v_add_u32 v{VRD+dt}, 16384, v{VRD+dt}" for dt in range(8)], 21, 36)
        else:
            sal = [f"s_sub_u32 s{SN}, s{SA_}, 16384", f"s_and_b32 s{SN}, s{SN}, 0xffff", f"s_sub_u32 s{SDK}, s{SN}, s{SA_}", f"s_mov_b32 s{SA_}, s{SN}",
                   f"s_add_u32 s{SN}, s{SBB}, 16384", f"s_and_b32 s{SN}, s{SN}, 0xffff", f"s_sub_u32 s{SDV}, s{SN}, s{SBB}", f"s_mov_b32 s{SBB}, s{SN}",
                   f"s_add_u32 s{SCNT}, s{SCNT}, 1"]
            G2.fill(sal, 12, 22, maxper=1)
            G2.fill([f"v_add_u32 v{KRD+s}, s{SDK}, v{KRD+s}" for s in range(4)], 32, 36)
            G4.fill(k_reads(0), 0, 30, maxper=1)
            G4.fill([f"v_add_u32 v{VRD+dt}, s{SDV}, v{VRD+dt}" for dt in range(8)], 17 if opt.get("cluster") else 21, 36)
            G4.put(34, f"s_cmp_lt_u32 s{SCNT}, s{SEV}")
            G4.put(35, "s_waitcnt lgkmcnt(0)")
            G4.tail(35, "s_cbranch_scc1 K1_LOOP")
        if opt.get("exp_slow") and not last:
            for G in (G1, G2, G3, G4):
                for j in range(opt["exp_slow"]): G.tail(2 + 6*j, "s_nop 3")
        for G in (G1, G2, G3, G4):
            assert not G.post
            G.emit(a)
    trip()
    a(f"s_cmp_eq_u32 s{SR}, 1\ns_cbranch_scc1 K1_FINAL")
    OSTNT = opt.get("o_store", " sc1"); OSTNT2 = opt.get("o_store2", OSTNT)
    def oepi(qt, final):
        r = []
        for s in range(4):
            tb = [0, 8, 32, 40][s]
            pb = [64, 68, 72, 76][s]
            if not final and qt >= 2: pb = Q2V + ((qt-2)*4+s)*4
            if final: tb = 224 + 8*(s & 1); pb = 240 + 4*s
            src = OA(qt, 2*s)
            r += [f"v_accvgpr_read_b32 v{tb+i}, a{src+i}" for i in range(8)]
            r += [f"v_pk_mul_f32 {vr(tb+2*i,2)}, {vr(tb+2*i,2)}, {vr(RCP+2*qt,2)}" for i in range(4)]
            r += [f"v_cvt_pk_bf16_f32 v{pb+p}, v{tb+2*p}, v{tb+2*p+1}" for p in range(4)]
            if final: r.append(f"buffer_store_dwordx4 {vr(pb,4)}, v{OST}, {sr(SO,4)}, s{SOO+qt} offen offset:{s*1024}{OSTNT2}")
            elif qt < 2: r.append(f"ds_write_b128 v{QST}, {vr(pb,4)} offset:{(qt*4+s)*1024}")
        return r
    nk = 2 - 4 + bin(opt.get('mk0', 0x1111)).count('1'); nv = 4 - 2 + bin(opt.get('mv0', 0x4444)).count('1')
    assert nk >= 0
    order = ["k", "k"][:nk]
    while len(order) < nk + nv:
        if order.count("v") < nv: order.append("v")
        if order.count("k") < nk: order.append("k")
    lread = [f"v_accvgpr_read_b32 v{RCP+2*qt}, a{LA(qt)}" for qt in range(4)]
    rest_m = [f"ds_read_b128 {vr(QF(j//4, j%4),4)}, v{QST} offset:{j*1024}" for j in range(8)]
    rcps = [f"v_rcp_f32 v{RCP+2*qt}, v{RCP+2*qt}" for qt in range(4)] + [f"v_mov_b32 v{RCP+2*qt+1}, v{RCP+2*qt}" for qt in range(4)]
    rest_v = [f"v_mov_b32 v{QF(2,0)+i}, v{Q2V+i}" for i in range(32)]
    def drain(final, hook30=None, hook31=None):
        for r in v_reads(0): a(r)
        sm = sm_stream(1)
        for x in sm[:9]: a(x)
        a("s_waitcnt lgkmcnt(0)")
        G = Sched(pv_mfmas(0))
        V2 = KF if final else XF
        G.fill(v_reads(1, V2), 0, 36, maxper=2)
        if final: hook30(G)
        else:
            for j in range(min(3, len(order))): piece_at(G, 9 + 11*j, order[j])
        G.fill(sm[9:], 0, 36)
        G.emit(a)
        a("s_waitcnt lgkmcnt(0)")
        G = Sched(pv_mfmas(1, V2, True))
        if final: hook31(G)
        else:
            for j in range(min(2, len(order) - 3)): piece_at(G, 3 + 10*j, order[3+j])
        st1 = [f"v_subrev_u32 v{VRD+dt}, {3*16384}, v{VRD+dt}" for dt in range(8)]
        st1 += [{"i": lread[0], "at": 9}] + lread[1:]
        masks = ["s[32:33]", "s[34:35]", "s[36:37]", "vcc"]
        st1 += [f"v_cmp_nge_f32 {masks[qt]}, s{STMP}, v{RCP+2*qt}" for qt in range(4)]
        G.put(3, f"s_mov_b32 s{STMP}, 0x{opt.get('thresh', 0x53800000):08x}")
        g = G.fill(st1, 0, 16)
        assert not G.post
        G.put(16, "s_or_b64 s[32:33], s[32:33], s[34:35]")
        G.put(17, "s_or_b64 s[36:37], s[36:37], vcc")
        G.put(18, "s_or_b64 s[32:33], s[32:33], s[36:37]")
        G.tail(18, "s_cbranch_scc1 K1_SLOW")
        G.fill(rcps, g + 1, 36)
        if not final:
            G.fill(rest_m, 19, 36)
            G.fill(rest_v, 19, 36)
        G.emit(a)
    def dump_stamps(rnd, vt):
        if opt.get('dbg_span'):
            a('s_waitcnt lgkmcnt(0)\ns_mov_b32 s96, s66\ns_mov_b32 s98, s86')
            return
        if not stamps: return
        if opt.get('qfine'):
            if rnd: return
            nstamp[0] = 16
        a("s_waitcnt lgkmcnt(0)")
        a(f"""
        s_add_u32 s{SDMP}, s{SWS}, 0x4000000
        s_addc_u32 s{SDMP+1}, s{SWS+1}, 0
        s_mov_b32 s{SDMP+2}, 0x100000
        s_mov_b32 s{SDMP+3}, 0x20000
        s_mul_i32 s3, s2, 3
        s_add_u32 s3, s3, {rnd}
        s_lshl_b32 s3, s3, 10
        s_lshr_b32 s{STMP}, s{SW4K}, 4
        s_add_u32 s3, s3, s{STMP}
        v_mov_b32 v{vt}, s3
        """)
        for i in range(0, nstamp[0], 2):
            for j in range(4): a(f"v_mov_b32 v{vt+4+j}, s{STS+2*i+j}")
            a(f"buffer_store_dwordx4 {vr(vt+4,4)}, v{vt}, {sr(SDMP,4)}, 0 offen offset:{8*i}")
            a("s_nop 1")
    nl = nstamp[0]
    stamp()
    drain(False)
    a("K1_SLOW_RET:")
    stamp()
    a("s_waitcnt lgkmcnt(0)")
    F0 = opt.get('flush_at', 11)
    rem = order[5:]
    ep = [x for qt in range(3) for x in oepi(qt, False)] + [f"ds_read_b128 {ar(XF+4*j,4)}, v{QST} offset:{j*1024}" for j in range(8)] + oepi(3, False)
    step = len(ep) // max(len(rem), 1)
    for j, x in enumerate(ep):
        if j % step == 0 and j // step < len(rem):
            for y in piece_now(rem[j // step]): a(y)
        a(x)
    n0 = nstamp[0]
    dump_stamps(0, 96)
    a(f"""
    buffer_load_dword v{VTAG}, v{VLZ}, {sr(SX,4)}, 0 offen sc1
    s_add_u32 s{SX}, s{SWS}, {FLAGOFF}
    s_addc_u32 s{SX+1}, s{SWS+1}, 0
    s_mov_b32 s{SX+2}, 0x40000
    s_lshl_b32 s3, s{SBR}, 3
    s_add_u32 s3, s3, s{SB_}
    s_lshl_b32 s3, s3, 2
    s_and_b32 s{STMP}, s2, 3
    s_add_u32 s3, s3, s{STMP}
    s_lshl_b32 s3, s3, 9
    s_lshr_b32 s{STMP}, s{SW1K}, 3
    s_add_u32 s{SFO}, s3, s{STMP}
    s_mov_b32 s{SR}, 1
    s_mov_b32 s{SEV}, 13
    s_mov_b32 s35, 0
    s_mov_b32 s37, {(-1024*opt.get('wo_loop', 0)) & 0xffffffff if not opt.get('wo_loop0') else 0x10000}
    s_mov_b32 s{SMK}, {opt.get('mk1', 585)}
    s_mov_b32 s{SMV}, {opt.get('mv1', 0)}
    s_bitcmp1_b32 s2, 3
    {"s_cselect_b32 s%d, 0xaaa, s%d" % (SMK, SMK) if opt.get("desync", False) else ""}
    s_branch K1_PRO
    K1_FINAL:
    """)
    stash_rd = []
    nstamp[0] = nl
    import optail
    optail.gen(a, opt, globals(), locals())
    KA, VA, LNv = RCP, RCP + 1, RCP + 2
    SU, SU2, SE_ = 32, 33, 34
    def VFR(dt): return S(1, dt >> 1) + 4 * (dt & 1)
    def kload():
        for kt in range(2):
            for s_ in range(4):
                a(f"buffer_load_dwordx4 {ar(VF+(kt*4+s_)*4,4)}, v{KA}, {sr(SK,4)}, s{SU2 if kt else SU} offen offset:{s_*64}")
    a(f"""
    K1_SLOW:
    s_waitcnt vmcnt(0)
    s_nop 7
    s_nop 7
    v_mbcnt_lo_u32_b32 v{LNv}, -1, 0
    v_mbcnt_hi_u32_b32 v{LNv}, -1, v{LNv}
    v_and_b32 v{VA}, 15, v{LNv}
    v_lshrrev_b32 v{LNv}, 4, v{LNv}
    v_lshlrev_b32 v{KA}, 8, v{VA}
    v_lshl_add_u32 v{KA}, v{LNv}, 4, v{KA}
    v_lshlrev_b32 v{VA}, 1, v{VA}
    v_lshl_add_u32 v{VA}, v{LNv}, 10, v{VA}
    s_lshl_b32 s{SU}, s{SR}, 18
    s_add_u32 s{SE_}, s{SU}, 262144
    """)
    for qt in range(4): a(f"v_mov_b32 v{TMPQ(qt)}, 0xff800000")
    a(f"K1_SL1:\ns_add_u32 s{SU2}, s{SU}, 4096")
    kload()
    a("s_waitcnt vmcnt(0)")
    for m in qk_mfmas(0, True, VF): a(m)
    a("s_nop 7")
    for qt in range(4):
        for i in range(0, 8, 2): a(f"v_max3_f32 v{TMPQ(qt)}, v{TMPQ(qt)}, v{S(0,qt)+i}, v{S(0,qt)+i+1}")
    a(f"s_add_u32 s{SU}, s{SU}, 8192\ns_cmp_lt_u32 s{SU}, s{SE_}\ns_cbranch_scc1 K1_SL1")
    for qt in range(4):
        m_ = TMPQ(qt); t_ = m_ + 1; ng = NEGM(qt)
        bias = f"s{SBIAS}" if qt == 3 else "0"
        for x in [f"v_mov_b32 v{t_}, v{m_}", f"v_permlane16_swap_b32 v{m_}, v{t_}", f"v_max_f32 v{m_}, v{m_}, v{t_}", f"v_mov_b32 v{t_}, v{m_}",
                  f"v_permlane32_swap_b32 v{m_}, v{t_}", f"v_max_f32 v{m_}, v{m_}, v{t_}", f"v_sub_f32 v{ng}, {bias}, v{m_}"] + \
                 [f"v_mov_b32 v{ng+i}, v{ng}" for i in range(1, 4)]: a(x)
    for x in zm: a(x)
    a(f"s_lshl_b32 s{SU}, s{SR}, 18\nK1_SL2:\ns_add_u32 s{SU2}, s{SU}, 4096")
    kload()
    for aa in range(2):
        def HT(dt, jp): n = dt*2 + jp; return P(1, n >> 2) + (n & 3)
        for dt in range(8):
            for j in range(4):
                d = HT(dt, j >> 1) if j & 1 else VFR(dt) + aa*2 + (j >> 1)
                a(f"buffer_load_ushort v{d}, v{VA}, {sr(SV,4)}, s{SU2 if aa else SU} offen offset:{j*256+dt*32}")
        a("s_waitcnt vmcnt(0)")
        for dt in range(8):
            for jp in range(2):
                d = VFR(dt) + aa*2 + jp
                a(f"v_lshl_or_b32 v{d}, v{HT(dt,jp)}, 16, v{d}")
    for m in qk_mfmas(0, False, VF): a(m)
    a("s_nop 7")
    for x in sm_stream(0): a(x)
    a("s_nop 1")
    for dt in range(8):
        for qt in range(4):
            d = ar(OA(qt, dt), 4)
            a(f"{MF} {d}, {vr(VFR(dt),4)}, {vr(P(0,qt),4)}, {d}")
    for qt in range(4):
        d = ar(LA(qt), 4)
        a(f"{MF} {d}, {ar(ONES,4)}, {vr(P(0,qt),4)}, {d}")
    a(f"s_add_u32 s{SU}, s{SU}, 8192\ns_cmp_lt_u32 s{SU}, s{SE_}\ns_cbranch_scc1 K1_SL2")
    a("s_nop 7")
    for x in lread + rcps: a(x)
    a(f"s_cmp_eq_u32 s{SR}, 1\ns_cbranch_scc1 K1_SLOW_RET2")
    for x in rest_m + rest_v: a(x)
    a(f"""
    s_branch K1_SLOW_RET
    K1_END:
    s_endpgm
    """)

def desc(name, vgpr=512, acc=256, sgpr=102):
    return f""".amdhsa_kernel {name}
  .amdhsa_next_free_vgpr {vgpr}
  .amdhsa_next_free_sgpr {sgpr}
  .amdhsa_accum_offset {acc}
  .amdhsa_group_segment_fixed_size 0
  .amdhsa_kernarg_size 104
  .amdhsa_user_sgpr_count 2
  .amdhsa_user_sgpr_kernarg_segment_ptr 1
  .amdhsa_system_sgpr_workgroup_id_x 1
.end_amdhsa_kernel
"""
```

```python
from asmlib import *
def gen(a, opt, G_, L_):
    g = dict(G_); g.update(L_)
    for k in ("MF MF32 SK SV SX SW SO SQ SWS SBR SB_ STMP SW1K SW4K SFO SCNT SOO VRD OST LN16 WD2 OUTV VLZ VTAG KF VF XF Q2V QST RCP ZERO "
              "stamp dump_stamps nstamp Z n0 SEV drain dma_at OA trip piece").split():
        globals()[k] = g[k]
    R = opt.get('R', 8)
    def ACC(q, l): return ((l >> 1)*4 + q)*8 + (l & 1)*4
    def AFR(k, l):
        if k >= 24 and l < 2: return "a", 176 + ((k-24)*2+l)*4
        if k >= 32-R and l < 2: return "v", Q2V + ((k-20)*2+l)*4
        return "a", KF + l*4
    def AFs(k, l, off=0, n=4): f, b = AFR(k, l); return (ar if f == "a" else vr)(b + off, n)
    def O1(q, s): return ar(XF+(q*4+s)*4, 4) if q < 2 else vr(Q2V+((q-2)*4+s)*4, 4)
    def O2r(q, s): return 128 + (s*4+q)*4
    def BF(k, q):
        if k < 4: return O1(q, k)
        if k < 8: return vr(O2r(q, k-4), 4)
        if 32-R <= k < 24: return vr(O2r(q, k-20), 4)
        return ar(OA(q, k & 7), 4)
    KT = [(0, 0, s) for s in range(4)] + [(0, 1, s) for s in range(4)] + \
         [(x, 0, s) for s in range(4) for x in (1, 2, 3)] + [(x, 1, s) for s in range(4) for x in (1, 2, 3)]
    SRO, SE, SD = SK, SV, SQ
    SB4 = [46, 47, 50, 51]
    SWO, SW2K, STAG, SF2, SXF, SP = 52, 53, 54, 28, 29, 30
    SO2 = [45, 48, 49, 101]
    VL4, FLV = 204, 208
    def ucalc(dst, k, sh):
        x, hd, s = KT[k]
        return [f"s_xor_b32 s{dst}, s{SP}, {x*8 + hd*4 + s}", f"s_lshl_b32 s{dst}, s{dst}, {sh}"]
    def d_ops(k):
        return ucalc(SWO, k, 15) + [f"s_add_u32 m0, s{SW2K}, {(k & 7)*8192}",
             (f"buffer_load_dwordx4 v{WD2}, {sr(SW,4)}, s{SWO} offen{opt.get('wo_pol','')} lds", f"d{k}"),
             (f"buffer_load_dwordx4 v{WD2+1}, {sr(SW,4)}, s{SWO} offen offset:1024{opt.get('wo_pol','')} lds", f"d{k}")]
    def b_ops(k):
        r = ucalc(SB4[0], k, 10)
        for q in range(4):
            if q: r.append(f"s_add_u32 s{SB4[0]}, s{SB4[0]}, 131072")
            r.append((f"buffer_load_dwordx4 {BF(k,q)}, v{OST}, {sr(SRO,4)}, s{SB4[0]} offen sc1", f"b{k}"))
        return r
    def a_reads(k, l):
        return [f"ds_read_b64_tr_b16 {AFs(k,l,aa*2,2)}, v{VRD+l} offset:{(k&7)*8192 + aa*4096}" for aa in range(2)]
    def st1(q, s): return (f"buffer_store_dwordx4 {O1(q,s)}, v{OST}, {sr(SO,4)}, s{SOO+q} offen offset:{s*1024} sc1", "o1")
    def st2(q, s): return (f"buffer_store_dwordx4 {vr(O2r(q,s),4)}, v{OST}, {sr(SO,4)}, s{SO2[q]} offen offset:{s*1024} sc1", "o2" if s < 2 else "o3")
    wopf = [(f"buffer_load_dwordx4 a[248:251], v{LN16}, {sr(SQ,4)}, {'0' if j < 4 else 's%d' % SB4[2]} offen offset:{(j%4)*1024}{opt.get('wopf_pol','')}", "wo") for j in range(8)]
    def place(G, ops, gaps):
        gi = iter(gaps); pend = []; prev = -1
        for x in ops:
            if isinstance(x, tuple):
                gp = next(gi)
                assert gp > prev
                c = [j for j in range(prev + 1, gp) if not G.S[j]] or list(range(prev + 1, gp)) or [gp]
                for i, y in enumerate(pend): G.put(c[max(0, len(c) - len(pend) + i)], y)
                pend = []; prev = gp
                G.put(gp, x); G.cap[gp] = min(G.cap[gp], 0)
            else: pend.append(x)
        assert not pend
    a.vm = ["v31"]*4 + ["kd"]*2
    a(f"""
    s_lshl_b32 s{SW2K}, s{SW1K}, 1
    s_and_b32 s{SP}, s2, 24
    s_mov_b32 s{SB4[2]}, 4096
    """)
    if opt.get("code_pf2", False):
        a(f"""
        s_getpc_b64 s[32:33]
        s_mov_b32 s34, TAIL_BYTES
        s_mov_b32 s35, 0x20000
        s_lshr_b32 s3, s2, 3
        s_lshl_b32 s3, s3, 10
        s_lshl_b32 s{STMP}, s{SW1K}, 9
        v_subrev_u32 v{FLV}, s{STMP}, v{OST}
        s_lshl_b32 s{STMP}, s{SW1K}, 5
        s_add_u32 s3, s3, s{STMP}
        """)
        a.emit_item((f"buffer_load_dwordx4 a[252:255], v{FLV}, s[32:35], s3 offen", "cpf"))
    o1 = [st1(q, s) for s in range(4) for q in range(4)]
    seq = (wopf + o1) if opt.get("wo_first", True) else (o1[:8] + wopf + o1[8:])
    if opt.get("wo_mix"): seq = [x for i in range(8) for x in (wopf[i], o1[i])] + o1[8:]
    if not opt.get("wo_pf", True): seq = o1
    NVL = bin(opt.get("mv1", 0)).count("1"); NKL = bin(opt.get("mk1", 585)).count("1")
    assert NVL <= 4 and NKL <= 6
    vp = []
    for i in range(NVL):
        pre, ins, post = piece("v")
        vp.append(([f"s_add_u32 s47, s47, 4096"] if i else []) + pre + [(ins, "v31")])
    items = vp + [[x] for x in seq]
    taken = [0]
    def take(n):
        r = [y for x in items[:n] for y in x]; taken[0] += len(items[:n]); del items[:n]; return r
    lo = len(items) <= 20
    def t13(G1, G2, G3, G4):
        if lo: place(G1, take(2), [9, 25]); place(G2, take(3), [5, 17, 29]); place(G3, take(2), [9, 25])
        else: place(G1, take(3), [5, 13, 25]); place(G2, take(4), [5, 13, 21, 29]); place(G3, take(3), [1, 13, 25])
        n = taken[0]
        place(G4, take(3), [5, 17, 33])
        return n + 6 if (NKL <= 4 and NVL == 0) else n
    def t14(G1, G2, G3, G4):
        place(G1, take(3), [1, 13, 25])
        if lo: place(G2, take(4), [5, 13, 21, 29])
        else: place(G2, take(5), [1, 9, 17, 25, 33])
        place(G3, take(3), [1, 13, 25])
        w = taken[0] - NVL
        n = min(2, len(items))
        place(G4, d_ops(0) + d_ops(1) + d_ops(2) + take(n), [3, 5, 9, 13, 17, 19, 29, 33][:6+n])
        return w
    trip(t13, True)
    trip(t14)
    stamp()
    def h30(G):
        n = len(items)
        place(G, d_ops(3) + d_ops(4) + take(n), [9, 12, 16, 19, 25, 32][:4+n])
    def h31(G): pass
    drain(True, h30, h31)
    a("K1_SLOW_RET2:")
    stamp()
    a(f"""
    s_load_dwordx2 s[36:37], s[0:1], 80
    s_lshl_b32 s{STMP}, s{SP}, 10
    s_sub_u32 s{SRO}, s{SO}, s{STMP}
    s_subb_u32 s{SRO+1}, s{SO+1}, 0
    s_add_u32 s{SRO+2}, s{SO+2}, s{STMP}
    s_lshr_b32 s3, s{SP}, 1
    s_add_u32 s{SF2}, s3, s{SFO}
    s_mov_b32 s{SEV}, 0
    v_readfirstlane_b32 s{STAG}, v{VTAG}
    v_lshrrev_b32 v{VL4}, 18, v{VLZ}
    v_min_u32 v{VL4}, 12, v{VL4}
    """)
    for q in range(4): a(f"s_add_u32 s{SO2[q]}, s{SOO+q}, 4096")
    a(f"s_waitcnt vmcnt({a.vm_need(['d0','d1'])}) lgkmcnt(0)\ns_barrier")
    for l in range(8):
        for r in a_reads(0, l): a(r)
    def ep(q, s, pk):
        t = O2r(q, s); src = OA(q, 2*s)
        r = [f"v_accvgpr_read_b32 v{t+i}, a{src+i}" for i in range(8)]
        if pk: r += [f"v_pk_mul_f32 {vr(t+2*i,2)}, {vr(t+2*i,2)}, {vr(RCP+2*q,2)}" for i in range(4)]
        else: r += [f"v_mul_f32 v{t+i}, v{t+i}, v{RCP+2*q}" for i in range(8)]
        r += [f"v_cvt_pk_bf16_f32 v{t+p}, v{t+2*p}, v{t+2*p+1}" for p in range(4)]
        return r
    NPRE = opt.get("ep_pre", 4)
    grp = [(q, s) for s in range(4) for q in range(4)]
    for q, s in grp[:NPRE]:
        for x in ep(q, s, True): a(x)
    eps = [(s, ep(q, s, False)) for q, s in grp[NPRE:]]
    setup = f"""s_and_b32 s35, s2, 3
    s_lshl_b32 s{STMP}, s35, 15
    s_sub_u32 s{SE}, s{SO}, s{STMP}
    s_subb_u32 s{SE+1}, s{SO+1}, 0
    s_add_u32 s{SE+2}, s{SO+2}, s{STMP}
    s_lshl_b32 s3, s{SBR}, 3
    s_add_u32 s3, s3, s{SB_}
    s_lshl_b32 s3, s3, 5
    s_add_u32 s3, s3, s{SP}
    s_lshl_b32 s{SXF}, s3, 8
    s_add_u32 s{SXF}, s{SXF}, 32768
    s_lshr_b32 s3, s{SW1K}, 3
    s_add_u32 s{SXF}, s{SXF}, s3
    s_lshl_b32 s3, s{SBR}, 10
    s_lshl_b32 s{STMP}, s{SP}, 5
    s_add_u32 s3, s3, s{STMP}
    s_lshl_b32 s{STMP}, s35, 6
    s_add_u32 s3, s3, s{STMP}
    s_sub_u32 s{SD+2}, {240*2048}, s3
    s_mul_i32 s{STMP}, s{SB_}, {240*2048}
    s_add_u32 s3, s3, s{STMP}
    s_add_u32 s{SD}, s36, s3
    s_addc_u32 s{SD+1}, s37, 0"""
    a(setup)
    nstamp[0] = 0
    stamp()
    a("s_waitcnt lgkmcnt(0)")
    plan = {k: [] for k in range(32)}
    for k in range(0, 27): plan[k] = d_ops(k+5)
    PUB = {1: opt.get("pub1", 0), 2: opt.get("pub2", 11), 3: opt.get("pub3", 18), 4: 21}
    POL = {1: opt.get("pol1", 2), 2: opt.get("pol2", 14), 3: opt.get("pol3", 20), 4: 28}
    o2 = [st2(q, s) for s in range(4) for q in range(4)]
    S2 = opt.get("o2_first", 0)
    LB = opt.get("lb", 4)
    for kb in range(8, 32):
        f, k0 = (1, 8) if kb < 20 else ((2, 20) if kb < 26 else (3, 26))
        at = max(kb - LB, POL[f] + 2 + (kb - k0) // 2)
        assert at < kb
        assert kb >= 16 or at >= 4 + ((kb & 7) >> 1) - (NPRE // 4 > ((kb & 7) >> 1)) * 9, (kb, at)
        plan[at] += b_ops(kb)
    for i, x in enumerate(o2): plan[S2 + i].append(x)
    assert R == 8 or S2 + 16 <= 20 - LB
    for f in POL: plan[POL[f]].insert(0, (f"buffer_load_dword v{FLV}, v{VL4}, {sr(SX,4)}, s{SFO} offen offset:{16*(f-1)} sc1", f"f{f}"))
    chk = f"v_cmp_ne_u32 vcc, s{STAG}, v{FLV}"
    for k in range(32):
        need = []
        if k >= 8: need.append(f"b{k}")
        if k & 1: need += [f"d{k+1}", f"d{k+2}"]
        for f in PUB:
            if k == PUB[f]: need.append(f"o{f}"); assert not any(isinstance(x, tuple) and x[1] == f"o{f}" for kk in range(k, 32) for x in plan[kk])
        if any(t in a.vm for t in need): a(f"s_waitcnt vmcnt({a.vm_need(need)})")
        if k & 1 and k < 31: a("s_barrier")
        for f in PUB:
            if k == PUB[f]: a.emit_item((f"buffer_store_dword v{VTAG}, v{VLZ}, {sr(SX,4)}, s{SF2} offen offset:{16*(f-1)} sc1", "p"))
        ls = list(range(8)) if k < 32 - R else list(range(2, 8))
        m = [f"{MF} {vr(ACC(q,l),4)}, {AFs(k,l)}, {BF(k,q)}, {vr(ACC(q,l),4) if k else '0'}" for l in ls for q in range(4)]
        G = Sched(m); n = len(m)
        if k < 31:
            extra = [] if len(ls) == 8 else a_reads(k+1, 0) + a_reads(k+1, 1)
            for j, x in enumerate(extra): G.put(j, x)
            for i, l in enumerate(ls):
                rd = a_reads(k+1, l)
                if i < len(ls) - 1: G.put(4*i + 4, rd[0]); G.put(4*i + 5, rd[1])
                else: G.tail(n - 1, rd)
        for i in range(len(ls)): G.put(4*i + 3, f"s_waitcnt lgkmcnt({6 if k < 31 else max(0, 8 - 2*i)})")
        nv = sum(isinstance(x, tuple) for x in plan[k])
        slots = [x for x in range(3, n) if x % 4 in (2, 3)]
        if nv > len(slots): slots = list(range(3, n))
        if nv: slots = [slots[(i * len(slots)) // nv] for i in range(nv)]
        place(G, plan[k], slots)
        if S2 <= k < S2 + 16: assert 16 - len(eps) > k - S2, (k, len(eps))
        if eps:
            flat = [x for _, e in eps for x in e]
            G.fill(flat, 0, n)
            left = G.post; G.post = []
            used = len(flat) - len(left)
            new = []
            for s_, e in eps:
                if used >= len(e): used -= len(e); continue
                e = e[used:]; used = 0
                if s_ <= k + 1 - 4: G.post += e
                else: new.append((s_, e))
            eps = new
        G.emit(a)
        for f in POL:
            if k == POL[f] + 1:
                a(f"s_waitcnt vmcnt({a.vm_need('f%d' % f)})\n{chk}\ns_cmp_eq_u32 vcc_lo, 0\ns_cbranch_scc0 K1_SPIN{f}\nK1_CHK{f}_OK:")
        if opt.get("op_fine"):
            if k in opt["op_fine"]:
                a(f"s_memtime s[{64+2*(1+opt['op_fine'].index(k))}:{65+2*(1+opt['op_fine'].index(k))}]\ns_waitcnt lgkmcnt(0)")
        elif k == 7 or k == 31: stamp(); (a("s_waitcnt lgkmcnt(0)") if g["stamps"] else None)
    m = [f"{MF} {vr(ACC(q,l),4)}, {AFs(k,l)}, {BF(k,q)}, {vr(ACC(q,l),4)}" for k in range(32-R, 32) for l in range(2) for q in range(4)]
    G = Sched(m)
    snd = []
    for j in range(1, 4):
        for q in range(4):
            r = 32*j + 8*q
            snd += [f"v_cvt_pk_bf16_f32 v{r+p}, v{r+2*p}, v{r+2*p+1}" for p in range(4)]
            snd.append((f"buffer_store_dwordx4 {vr(r,4)}, v{OST}, {sr(SO,4)}, s{SOO+q} offen offset:{j*1024} sc1", f"x{j}"))
    gl = G.fill(snd, 0, len(m))
    sal = []
    for j in range(4): sal += [f"s_xor_b32 s3, s35, {j}", f"s_lshl_b32 s{32+j if j < 3 else 36}, s3, 15" if j else "s_nop 0", "s_lshl_b32 s3, s3, 9", f"s_add_u32 s{SB4[j]}, s3, s{SXF}"]
    sal += [f"s_mov_b32 s{SEV}, 0"]
    G.fill(sal, gl + 1, len(m), maxper=1)
    G.emit(a)
    SXR = {1: 33, 2: 34, 3: 36}
    for j in range(1, 4):
        a(f"s_waitcnt vmcnt({a.vm_need('x%d' % j)})")
        a.emit_item((f"buffer_store_dword v{VTAG}, v{VLZ}, {sr(SX,4)}, s{SB4[j]} offen offset:{4*j} sc1", "p"))
    for q in range(1, 4): a(f"v_add_u32 v{191+q}, {q*131072}, v{OST}")
    for q in range(4): a(f"s_mov_b32 s{SOO+q}, {q*32768}")
    a(f"""
    K1_POLLX:
    buffer_load_dword v{FLV}, v{VL4}, {sr(SX,4)}, s{SB4[0]} offen sc1
    s_add_u32 s{SEV}, s{SEV}, 1
    s_waitcnt vmcnt(0)
    {chk}
    s_cmp_gt_u32 s{SEV}, 0x20000
    s_cbranch_scc1 K1_GOX
    s_and_b32 s3, vcc_lo, 14
    s_cbranch_scc1 K1_POLLX
    K1_GOX:
    """)
    if not opt.get("op_fine"): stamp()
    for q in range(4):
        for j in range(1, 4):
            a(f"buffer_load_dwordx4 {vr(32*j+8*q,4)}, v{191+q if q else OST}, {sr(SE,4)}, s{SXR[j]} offen offset:{j*1024} sc1")
    a(f"s_mov_b32 s3, 0xffff0000")
    for q in range(4):
        a(f"s_waitcnt vmcnt({3*(3-q) + q})")
        for j in range(1, 4):
            r = 32*j + 8*q
            for p in (3, 2, 1, 0):
                a(f"v_and_b32 v{r+2*p+1}, s3, v{r+p}")
                a(f"v_lshlrev_b32 v{r+2*p}, 16, v{r+p}")
            for p in range(4): a(f"v_pk_add_f32 {vr(8*q+2*p,2)}, {vr(8*q+2*p,2)}, {vr(r+2*p,2)}")
        r = 8*q
        for p in range(4): a(f"v_cvt_pk_bf16_f32 v{r+p}, v{r+2*p}, v{r+2*p+1}")
        a(f"v_permlane16_swap_b32 v{r}, v{r+2}\nv_permlane16_swap_b32 v{r+1}, v{r+3}")
        a(f"buffer_store_dwordx4 {vr(r,4)}, v{OUTV}, {sr(SD,4)}, s{SOO+q} offen{opt.get('out_pol', ' sc1')}")
    if g["stamps"] and not opt.get("dbg_span"):
        a("s_waitcnt vmcnt(0)")
        a(f"s_memtime s[4:5]\ns_memrealtime s[6:7]\ns_waitcnt lgkmcnt(0)")
        nstamp[0] = 16
        dump_stamps(1, 224)
        a("s_waitcnt vmcnt(0)")
        for j in range(4): a(f"s_mov_b32 s{64+j}, s{4+j}")
        nstamp[0] = 2
        dump_stamps(2, 224)
    if opt.get("dbg_span"):
        a("s_waitcnt vmcnt(0)\ns_memrealtime s[6:7]\ns_load_dwordx2 s[8:9], s[0:1], 88\ns_waitcnt lgkmcnt(0)\ns_mov_b32 s10, 64\ns_mov_b32 s11, 0x20000")
        a("s_sub_u32 s6, s6, s96\ns_lshl_b32 s6, s6, 16\ns_sub_u32 s7, s90, s96\ns_or_b32 s6, s6, s7")
        a("s_sub_u32 s4, s82, s96\ns_lshl_b32 s4, s4, 16\ns_sub_u32 s7, s98, s96\ns_or_b32 s4, s4, s7")
        a(f"v_mov_b32 v0, s6\nv_mov_b32 v1, s4\ns_lshl_b32 s3, s2, 3\ns_add_u32 s3, s3, s{SW1K}\ns_cmp_eq_u32 s3, 0\ns_cselect_b32 s3, 4096, s3")
        a(f"buffer_store_dwordx2 v[0:1], v{VLZ}, s[8:11], s3 offen")
    a("s_endpgm")
    for f in POL:
        a(f"""
        K1_SPIN{f}:
        s_add_u32 s{SEV}, s{SEV}, 1
        s_cmp_gt_u32 s{SEV}, 0x20000
        s_cbranch_scc1 K1_CHK{f}_OK
        buffer_load_dword v{FLV}, v{VL4}, {sr(SX,4)}, s{SFO} offen offset:{16*(f-1)} sc1
        s_waitcnt vmcnt(0)
        {chk}
        s_cmp_eq_u32 vcc_lo, 0
        s_cbranch_scc0 K1_SPIN{f}
        s_branch K1_CHK{f}_OK
        """)
```
